```python
import torch

def _softmax(x, axis=-1):
    return torch.softmax(x, dim=axis)
def _gelu(x):
    return torch.nn.functional.gelu(x, approximate="tanh")
def _silu(x):
    return torch.nn.functional.silu(x)
def _sigmoid(x):
    return torch.sigmoid(x)
def _layernorm(x, axis=-1, eps=1e-5):
    m = x.mean(dim=axis, keepdim=True)
    v = x.var(dim=axis, keepdim=True, unbiased=False)
    return (x - m) / torch.sqrt(v + eps)
def _scatter_add(tgt, idx, src, axis=0):
    return tgt.clone().index_add_(axis, idx, src)
def _segment_sum(src, seg, n):
    out = torch.zeros((n,) + src.shape[1:], dtype=src.dtype)
    return out.index_add_(0, seg, src)
def _pad(x, pw):
    flat = tuple(v for pair in reversed(pw) for v in pair)
    return torch.nn.functional.pad(x, flat)

kernel_name = 'gather_scatter__molecular_angular_gemnet__graph'

def setup_inputs():

    _w = (lambda a: (lambda t: t.to(torch.bfloat16) if t.is_floating_point() else t)(torch.as_tensor(a)))
    N, deg, De, L = 10000, 64, 4, 1
    E = N * deg
    T = E * deg
    NR = 8
    dist = torch.rand(E).to(float)
    angle = (torch.rand(T) * torch.pi).to(float)
    centers = torch.linspace(0.0, 1.0, NR).to(float)
    ang_freq = torch.arange(1, L + 1).to(float)
    return {
        "m": _w((lambda *s: torch.randn(*s, dtype=torch.bfloat16) * 0.05)(E, De)),
        "idx_in": _w((lambda lo, hi, *s: torch.randint(lo, hi, s))(0, E, T).to(torch.int64)),
        "idx_out": _w((lambda lo, hi, *s: torch.randint(lo, hi, s))(0, E, T).to(torch.int64)),
        "dist": _w(dist),
        "angle": _w(angle),
        "centers": _w(centers),
        "ang_freq": _w(ang_freq),
        "w_rbf": _w((lambda *s: torch.randn(*s, dtype=torch.bfloat16) * 0.2)(NR, De)),
        "w_sbf": _w((lambda *s: torch.randn(*s, dtype=torch.bfloat16) * 0.2)(NR * L, De)),
        "w_down": _w((lambda *s: torch.randn(*s, dtype=torch.bfloat16) * 0.2)(De, De)),
        "w_up": _w((lambda *s: torch.randn(*s, dtype=torch.bfloat16) * 0.2)(De, De)),
    }

def reference(m, idx_in, idx_out, dist, angle, centers, ang_freq, w_rbf, w_sbf, w_down, w_up):
    E, De = m.shape[0], m.shape[1]
    NR = centers.shape[0]
    L = ang_freq.shape[0]
    rbf = torch.exp(-10.0 * (dist[:, None] - centers[None, :]) ** 2)
    cbf = torch.cos(ang_freq[None, :] * angle[:, None])
    rbf_t = rbf[idx_out]
    sbf = torch.reshape(rbf_t[:, :, None] * cbf[:, None, :], (-1, NR * L))
    x = (m[idx_in] @ w_down) * (sbf @ w_sbf)
    agg = _segment_sum(x, idx_out, E)
    return m + (agg @ w_up) * (rbf @ w_rbf)
```

```python
NAME = "gather_scatter__molecular_angular_gemnet__graph"
E, T = 640000, 40960000
WS_BYTES = 655360000
KA = dict(m=0, idx_in=8, idx_out=16, dist=24, angle=32, centers=40, ang_freq=48, w_rbf=56, w_sbf=64,
          w_down=72, w_up=80, out=88, dbg=96, ws=104)

HEADER = """; Kernarg layout for this problem (112 bytes, ptrs only, base s[0:1]):
"""


class K:
    def __init__(self, name, grid, block, lds, vgpr, sgpr=96, denorm32=0):
        self.name, self.grid, self.block, self.lds = name, grid, block, lds
        self.vgpr, self.sgpr, self.denorm32 = vgpr, sgpr, denorm32
        self.L = []
        self.nlab = 0

    def __call__(self, s=""):
        for line in s.strip("\n").split("\n"):
            line = line.strip()
            if not line:
                continue
            self.L.append(line if line.endswith(":") else "    " + line)

    def c(self, text):
        self.L.append("    ; " + text)

    def lab(self, tag):
        self.nlab += 1
        return f"L_{self.name}_{tag}_{self.nlab}"

    def ldptr(self, sreg, arg):
        self(f"s_load_dwordx2 s[{sreg}:{sreg+1}], s[0:1], {KA[arg]}")

    def srd_finish(self, sreg, nbytes, add=0):
        if add:
            self(f"s_add_u32 s{sreg}, s{sreg}, {add}")
            self(f"s_addc_u32 s{sreg+1}, s{sreg+1}, 0")
        self(f"s_mov_b32 s{sreg+2}, {nbytes}")
        self(f"s_mov_b32 s{sreg+3}, 0x00020000")

    def text(self):
        t = [f".globl {self.name}", ".p2align 8", f".type {self.name},@function", f"{self.name}:"]
        return "\n".join(t + self.L) + "\n"

    def desc(self):
        acc = (self.vgpr + 3) // 4 * 4
        return f""".p2align 6
.amdhsa_kernel {self.name}
  .amdhsa_next_free_vgpr {self.vgpr}
  .amdhsa_next_free_sgpr {self.sgpr}
  .amdhsa_accum_offset {acc}
  .amdhsa_group_segment_fixed_size 0
  .amdhsa_kernarg_size 112
  .amdhsa_user_sgpr_count 2
  .amdhsa_user_sgpr_kernarg_segment_ptr 1
  .amdhsa_system_sgpr_workgroup_id_x 1
  .amdhsa_float_denorm_mode_32 {self.denorm32}
.end_amdhsa_kernel
"""


def assemble_file(kernels, launches=None, notes=""):
    launches = launches or kernels
    s = HEADER + "".join("; " + l + "\n" for l in notes.strip("\n").split("\n") if notes)
    for k in launches:
        s += f"; @launch kernel={k.name} grid=({k.grid},1,1) block=({k.block},1,1) lds={k.lds}\n"
    s += '.amdgcn_target "amdgcn-amd-amdhsa--gfx950"\n.text\n'
    for k in kernels:
        s += k.text()
    s += '.section .rodata,"a"\n'
    for k in kernels:
        s += k.desc()
    return s
```

```python
import sys
from asmlib import *

def k_zero():
    k = K("zero_kernel", 2500, 256, 0, 8)
    k.ldptr(4, "ws"); k("s_waitcnt lgkmcnt(0)"); k.srd_finish(4, E*16)
    k("""s_lshl_b32 s3, s2, 8
    v_add_u32 v1, s3, v0
    v_lshlrev_b32 v1, 4, v1
    v_mov_b32 v4, 0
    v_mov_b32 v5, 0
    v_mov_b32 v6, 0
    v_mov_b32 v7, 0
    buffer_store_dwordx4 v[4:7], v1, s[4:7], 0 offen
    s_endpgm""")
    return k

def k_atom():
    k = K("atom_kernel", T//256, 256, 0, 16)
    k.ldptr(4, "ws"); k.ldptr(8, "idx_in"); k.ldptr(12, "idx_out"); k.ldptr(16, "angle"); k.ldptr(20, "m")
    k("s_waitcnt lgkmcnt(0)")
    k.srd_finish(4, E*16); k.srd_finish(8, T*4); k.srd_finish(12, T*4); k.srd_finish(16, T*2); k.srd_finish(20, E*8)
    k(f"""s_cmp_ge_u32 s2, {T//256}
    s_cbranch_scc1 L_atom_end
    s_lshl_b32 s3, s2, 8
    v_add_u32 v1, s3, v0
    v_lshlrev_b32 v2, 2, v1
    v_lshlrev_b32 v3, 1, v1
    buffer_load_dword v4, v2, s[8:11], 0 offen
    buffer_load_dword v5, v2, s[12:15], 0 offen
    buffer_load_ushort v6, v3, s[16:19], 0 offen
    s_waitcnt vmcnt(0)
    v_lshlrev_b32 v4, 3, v4
    buffer_load_dwordx2 v[8:9], v4, s[20:23], 0 offen
    v_lshlrev_b32 v5, 4, v5
    v_lshlrev_b32 v6, 16, v6
    v_mul_f32 v6, 0.15915494, v6
    v_fract_f32 v6, v6
    v_cos_f32 v6, v6
    s_waitcnt vmcnt(0)
    v_lshlrev_b32 v10, 16, v8
    v_and_b32 v11, 0xffff0000, v8
    v_lshlrev_b32 v12, 16, v9
    v_and_b32 v13, 0xffff0000, v9
    v_mul_f32 v10, v6, v10
    v_mul_f32 v11, v6, v11
    v_mul_f32 v12, v6, v12
    v_mul_f32 v13, v6, v13
    buffer_atomic_add_f32 v10, v5, s[4:7], 0 offen
    buffer_atomic_add_f32 v11, v5, s[4:7], 0 offen offset:4
    buffer_atomic_add_f32 v12, v5, s[4:7], 0 offen offset:8
    buffer_atomic_add_f32 v13, v5, s[4:7], 0 offen offset:12
    L_atom_end:
    s_endpgm""")
    return k

def rnd2(k, a, b, t):
    k(f"""v_cvt_pk_bf16_f32 v{t}, v{a}, v{b}
    v_lshlrev_b32 v{a}, 16, v{t}
    v_and_b32 v{b}, 0xffff0000, v{t}""")

def epilogue_weights(k, sb):
    pass

def k_epi():
    k = K("epi_kernel", 2500, 256, 0, 128)
    k.ldptr(4, "ws"); k.ldptr(8, "m"); k.ldptr(12, "dist"); k.ldptr(16, "out")
    k("""s_load_dwordx2 s[20:21], s[0:1], 40
    s_load_dwordx4 s[24:27], s[0:1], 56
    s_load_dwordx4 s[28:31], s[0:1], 72
    s_waitcnt lgkmcnt(0)""")
    k.srd_finish(4, E*16); k.srd_finish(8, E*8); k.srd_finish(12, E*2); k.srd_finish(16, E*8)
    k("""s_load_dwordx4 s[32:35], s[20:21], 0
    s_load_dwordx16 s[36:51], s[24:25], 0
    s_load_dwordx16 s[52:67], s[26:27], 0
    s_load_dwordx8 s[68:75], s[28:29], 0
    s_load_dwordx8 s[76:83], s[30:31], 0
    s_lshl_b32 s3, s2, 8
    v_add_u32 v1, s3, v0
    v_lshlrev_b32 v2, 4, v1
    v_lshlrev_b32 v3, 3, v1
    v_lshlrev_b32 v1, 1, v1
    buffer_load_dwordx4 v[4:7], v2, s[4:7], 0 offen
    buffer_load_dwordx2 v[8:9], v3, s[8:11], 0 offen
    buffer_load_ushort v10, v1, s[12:15], 0 offen
    s_waitcnt lgkmcnt(0)""")
    def sw(base, i):
        if i & 1: k(f"s_and_b32 s84, s{base+i//2}, 0xffff0000")
        else: k(f"s_lshl_b32 s84, s{base+i//2}, 16")
    k("s_waitcnt vmcnt(0)\nv_lshlrev_b32 v10, 16, v10")
    R = 16
    for r in range(8):
        sw(32, r); k(f"v_subrev_f32 v{R+r}, s84, v10")
    for r in range(0, 8, 2): rnd2(k, R+r, R+r+1, 11)
    for r in range(8): k(f"v_mul_f32 v{R+r}, v{R+r}, v{R+r}")
    for r in range(0, 8, 2): rnd2(k, R+r, R+r+1, 11)
    for r in range(8): k(f"v_mul_f32 v{R+r}, 0xc1200000, v{R+r}")
    for r in range(0, 8, 2): rnd2(k, R+r, R+r+1, 11)
    for r in range(8): k(f"v_mul_f32 v{R+r}, 0x3fb8aa3b, v{R+r}")
    for r in range(8): k(f"v_exp_f32 v{R+r}, v{R+r}")
    k("s_nop 0")
    for r in range(0, 8, 2): rnd2(k, R+r, R+r+1, 11)
    H, G, D, U = 24, 28, 32, 36
    for (dst, base) in ((H, 36), (G, 52)):
        for c in range(4):
            for r in range(8):
                sw(base, r*4+c)
                k(f"v_mul_f32 v{dst+c}, s84, v{R+r}" if r == 0 else f"v_fmac_f32 v{dst+c}, s84, v{R+r}")
    for c in range(4):
        for j in range(4):
            sw(68, j*4+c)
            k(f"v_mul_f32 v{D+c}, s84, v{4+j}" if j == 0 else f"v_fmac_f32 v{D+c}, s84, v{4+j}")
    for c in range(4): k(f"v_mul_f32 v{D+c}, v{D+c}, v{G+c}")
    for c in range(4):
        for j in range(4):
            sw(76, j*4+c)
            k(f"v_mul_f32 v{U+c}, s84, v{D+j}" if j == 0 else f"v_fmac_f32 v{U+c}, s84, v{D+j}")
    k("""v_lshlrev_b32 v12, 16, v8
    v_and_b32 v13, 0xffff0000, v8
    v_lshlrev_b32 v14, 16, v9
    v_and_b32 v15, 0xffff0000, v9""")
    for c in range(4): k(f"v_fmac_f32 v{12+c}, v{U+c}, v{H+c}")
    k("""v_cvt_pk_bf16_f32 v8, v12, v13
    v_cvt_pk_bf16_f32 v9, v14, v15
    buffer_store_dwordx2 v[8:9], v3, s[16:19], 0 offen
    s_endpgm""")
    k.vgpr = 40
    return k

if __name__ == "__main__":
    open(sys.argv[1], "w").write(assemble_file([k_zero(), k_atom(), k_epi()]))
```

```python
import sys
from asmlib import *

C = 40000
NCH = 1024
R = 10000
CH_BYTES = C * 6
TAB_ROW = 4 * 65 * 32
OFF_REC = 8192
OFF_TAB = OFF_REC + NCH * CH_BYTES
OFF_INFO1 = OFF_TAB + NCH * TAB_ROW
OFF_INFO2 = OFF_INFO1 + 4096
OFF_P16 = OFF_INFO2 + 4096
OFF_P32 = OFF_P16 + 4 * E * 8
assert OFF_P32 + 4 * E * 16 <= WS_BYTES
MAGIC_DIV = (2**32 + R - 1) // R
LDS_ALL = 163840
SD = "dst_sel:DWORD dst_unused:UNUSED_PAD src0_sel:DWORD"


class Cnt:
    def __init__(self, k, name, mx):
        self.k, self.name, self.mx, self.q = k, name, mx, []
    def issue(self, tag=None):
        self.q.append(tag)
    def wait(self, tag):
        idx = [i for i, t in enumerate(self.q) if t == tag]
        if not idx:
            return
        n = len(self.q) - 1 - idx[-1]
        self.k(f"s_waitcnt {self.name}({min(n, self.mx)})")
        self.q = self.q[len(self.q) - min(n, self.mx):] if n else []
    def wait_all(self):
        self.k(f"s_waitcnt {self.name}(0)")
        self.q = []


def scan64(k, v, op="v_add_u32"):
    for sh in (1, 2, 4, 8):
        k(f"s_nop 1\n{op}_dpp v{v}, v{v}, v{v} row_shr:{sh} row_mask:0xf bank_mask:0xf bound_ctrl:0")
    k(f"s_nop 1\n{op}_dpp v{v}, v{v}, v{v} row_bcast:15 row_mask:0xa bank_mask:0xf")
    k(f"s_nop 1\n{op}_dpp v{v}, v{v}, v{v} row_bcast:31 row_mask:0xc bank_mask:0xf")


def scan16(k, v, op="v_add_u32"):
    for sh in (1, 2, 4, 8):
        k(f"s_nop 1\n{op}_dpp v{v}, v{v}, v{v} row_shr:{sh} row_mask:0xf bank_mask:0xf bound_ctrl:0")


def pass1(stflag="sc1", pf_plan=None):
    k = K("p1_kernel", 256, 1024, LDS_ALL, 128)
    vm = Cnt(k, "vmcnt", 63)
    sWS, sIN, sOUT, sANG, sREC, sTAB, sM = 4, 8, 12, 16, 20, 24, 28
    sCI, sOI, sOA, sT0, sT1, sNEG, sKC, sWAVE, sIT, sLO, sTO, sPERM = 32, 33, 34, 35, 36, 37, 38, 39, 40, 41, 42, 43
    sM9 = 44
    vA16, vA8, vA12, vONE, vNAN, vKF, vOOB = 1, 2, 3, 4, 5, 16, 17
    TMP = list(range(6, 16))
    SLOT = [18, 28, 38]
    RB = 48
    H, H2, CA, SP = 0, 16384, 16384, 160000
    Wr = lambda j: RB + (j // 2) * 4 + (j & 1)
    Xr = lambda j: RB + (j // 2) * 4 + 2 + (j & 1)
    end = "L_p1_end"
    k(f"s_cmp_ge_u32 s2, 256\ns_cbranch_scc1 {end}")
    k.ldptr(sWS, "ws"); k.ldptr(sIN, "idx_in"); k.ldptr(sOUT, "idx_out"); k.ldptr(sANG, "angle"); k.ldptr(sM, "m")
    k.ldptr(6, "ang_freq")
    k(f"""v_lshlrev_b32 v{vA16}, 4, v0
    v_lshlrev_b32 v{vA8}, 3, v0
    v_mul_u32_u24 v{vA12}, 12, v0
    v_lshrrev_b32 v6, 6, v0
    v_mov_b32 v{vONE}, 1
    v_mov_b32 v{vNAN}, 0
    v_readfirstlane_b32 s{sWAVE}, v6
    v_cmp_gt_u32 vcc, 784, v0
    s_mov_b32 s{sCI}, s2
    s_mul_i32 s{sOI}, s2, {C*4}
    s_mul_i32 s{sOA}, s2, {C*2}
    s_mov_b64 s[{sM9}:{sM9+1}], vcc
    v_mov_b32 v6, 0x7f000000
    v_cndmask_b32 v{vOOB}, v6, v{vNAN}, vcc
    s_waitcnt lgkmcnt(0)
    s_load_dword s3, s[6:7], 0""")
    k.srd_finish(sIN, T*4); k.srd_finish(sOUT, T*4); k.srd_finish(sANG, T*2)

    def load_group(g, base, abase, nxt=False, only=None, tag=None):
        addI = g*16384 + (256*C*4 if nxt else 0)
        addA = g*8192 + (256*C*2 if nxt else 0)
        a16, a8 = vA16, vA8
        if g == 9:
            a16, a8 = TMP[2], TMP[3]
            k(f"v_or_b32 v{a16}, v{vA16}, v{vOOB}\nv_or_b32 v{a8}, v{vA8}, v{vOOB}")
        if only in (None, 0):
            k(f"s_add_u32 s{sT0}, s{sOI}, {addI}\nbuffer_load_dwordx4 v[{base}:{base+3}], v{a16}, s[{sIN}:{sIN+3}], s{sT0} offen nt"); vm.issue(tag)
        if only in (None, 1):
            k(f"s_add_u32 s{sT0}, s{sOI}, {addI}\nbuffer_load_dwordx4 v[{base+4}:{base+7}], v{a16}, s[{sOUT}:{sOUT+3}], s{sT0} offen nt"); vm.issue(tag)
        if only in (None, 2):
            k(f"s_add_u32 s{sT0}, s{sOA}, {addA}\nbuffer_load_dwordx2 v[{abase}:{abase+1}], v{a8}, s[{sANG}:{sANG+3}], s{sT0} offen nt"); vm.issue(tag)

    k(f"""s_mul_i32 s{sT1}, s2, 20000
    s_add_u32 s{sM+2}, s{sT1}, 20000
    s_mov_b32 s{sM+3}, 0x00020000
    s_add_u32 s{sT0}, s{sT1}, 16384
    buffer_load_dwordx4 v[{RB}:{RB+3}], v{vA16}, s[{sM}:{sM+3}], s{sT1} offen
    buffer_load_dwordx4 v[{RB+4}:{RB+7}], v{vA16}, s[{sM}:{sM+3}], s{sT0} offen""")
    vm.issue("m"); vm.issue("m")
    for g in range(3):
        load_group(g, SLOT[g], SLOT[g]+8, tag=f"g{g}")
    k(f"""s_mov_b32 s{sREC}, s{sWS}
    s_mov_b32 s{sREC+1}, s{sWS+1}
    s_mov_b32 s{sREC+2}, 0
    s_mov_b32 s{sREC+3}, 0x00020000
    s_add_u32 s{sTAB}, s{sWS}, {OFF_TAB}
    s_addc_u32 s{sTAB+1}, s{sWS+1}, 0
    s_mov_b32 s{sTAB+2}, {NCH*TAB_ROW + 4096}
    s_mov_b32 s{sTAB+3}, 0x00020000
    s_mov_b32 s{sNEG}, {(-R) & 0xffffffff}
    s_mov_b32 s{sKC}, {256 | (4 << 16)}
    s_mov_b32 s{sLO}, 0xffff
    s_mov_b32 s{sPERM}, 0x05040100
    s_mov_b32 s{sIT}, 0
    v_mov_b32 v8, 0
    v_mov_b32 v9, 0
    v_mov_b32 v10, 0
    v_mov_b32 v11, 0
    ds_write_b128 v{vA16}, v[8:11] offset:{H}
    s_waitcnt lgkmcnt(0)
    s_lshl_b32 s3, s3, 16
    v_mov_b32 v{vKF}, s3
    v_mul_f32 v{vKF}, 0.15915494, v{vKF}""")
    vm.wait("m")
    k("v_mov_b32 v12, 0x3f803f80")
    for i in range(8):
        k(f"v_and_b32 v{RB+i}, 0x7fff7fff, v{RB+i}")
    for i in range(8):
        k(f"v_pk_max_u16 v8, v8, v{RB+i}\nv_dot2c_f32_bf16 v9, v{RB+i}, v12")
    k(f"v_lshrrev_b32 v10, 16, v8\nv_and_b32 v8, 0xffff, v8\nv_max_u32 v8, v8, v10\ns_nop 0")
    scan64(k, 8, "v_max_u32"); scan64(k, 9, "v_add_f32")
    k(f"""s_lshl_b32 s{sT0}, s{sWAVE}, 4
    s_add_u32 s{sT0}, s{sT0}, {SP+64}
    v_mov_b32 v10, s{sT0}
    s_mov_b32 exec_lo, 0
    s_brev_b32 exec_hi, 1
    ds_write_b64 v10, v[8:9]
    s_mov_b64 exec, -1
    s_waitcnt lgkmcnt(0)
    s_barrier""")

    def store_quad(q):
        off = q*1024*12
        k(f"s_mov_b32 s{sT1}, {off}\nbuffer_store_dwordx3 v[{RB+4*q}:{RB+4*q+2}], v{vA12}, s[{sREC}:{sREC+3}], s{sT1} offen {stflag}")
        vm.issue("st")

    def transform(I, O, A, Wd, Xd, Xsrc=None):
        for j in range(4): k(f"v_lshl_add_u32 v{Wd[j]}, v{O+j}, 16, v{I+j}")
        for j in range(4): k(f"v_mul_hi_u32_u24 v{I+j}, {MAGIC_DIV}, v{I+j}\nv_mul_hi_u32_u24 v{O+j}, {MAGIC_DIV}, v{O+j}")
        for j in range(4): k(f"v_lshl_or_b32 v{I+j}, v{O+j}, 16, v{I+j}")
        for j in range(4): k(f"v_dot2_u32_u16 v{O+j}, v{I+j}, s{sKC}, 0")
        for j in range(4): k(f"v_mad_i32_i24 v{Wd[j]}, v{I+j}, s{sNEG}, v{Wd[j]}")
        for j in range(4): k(f"ds_add_u32 v{O+j}, v{vONE} offset:{H}")
        k(f"""v_lshlrev_b32 v{I}, 16, v{A}
        v_lshlrev_b32 v{I+2}, 16, v{A+1}
        v_and_b32 v{I+1}, 0xffff0000, v{A}
        v_and_b32 v{I+3}, 0xffff0000, v{A+1}""")
        for j in range(4): k(f"v_mul_f32 v{I+j}, v{vKF}, v{I+j}")
        for j in range(4): k(f"v_fract_f32 v{I+j}, v{I+j}")
        for j in range(4): k(f"v_cos_f32 v{I+j}, v{I+j}")
        for j in range(4): k(f"v_cvt_pk_bf16_f32 v{I+j}, 0, v{I+j}")
        order = range(4) if Xsrc is None else Xsrc
        for j in order: k(f"v_or_b32 v{Xd[j]}, v{I+j}, v{O+j}")
        k(f"v_or3_b32 v{vNAN}, v{Xd[0]}, v{Xd[1]}, v{vNAN}\nv_or3_b32 v{vNAN}, v{Xd[2]}, v{Xd[3]}, v{vNAN}")

    loop = "L_p1_loop"
    entry_q = list(vm.q)
    k(f"{loop}:")
    G9 = RB + 72
    store_quad(18); store_quad(19)
    k("s_nop 0")
    load_group(9, G9, TMP[0], tag="g9")
    for g in range(9):
        store_quad(2*g); store_quad(2*g+1)
        vm.wait(f"g{g}")
        s = SLOT[g % 3]
        k("s_nop 0")
        transform(s, s+4, s+8, [Wr(4*g+j) for j in range(4)], [Xr(4*g+j) for j in range(4)])
        if g + 3 < 9:
            load_group(g+3, s, s+8, tag=f"g{g+3}")
    vm.wait("g9")
    k(f"s_mov_b64 exec, s[{sM9}:{sM9+1}]")
    tw = TMP[2:6]
    transform(G9, G9+4, TMP[0], tw, [G9+6, G9+7, G9+2, G9+3], Xsrc=[2, 3, 0, 1])
    k(f"""v_mov_b32 v{G9}, v{tw[2]}
    v_mov_b32 v{G9+1}, v{tw[3]}
    v_mov_b32 v{G9+4}, v{tw[0]}
    v_mov_b32 v{G9+5}, v{tw[1]}
    s_mov_b64 exec, -1""")
    plan = pf_plan or ["b1", "b3", "pos1", "pos2", "r1a", "r1b", "rb1", "r2a", "r2b"]
    pend = [(g, o) for g in range(3) for o in range(3)]
    def pf(site):
        while plan and plan[0] == site:
            plan.pop(0)
            g, o = pend.pop(0)
            load_group(g, SLOT[g], SLOT[g]+8, nxt=True, only=o, tag=f"g{g}")
    pf("pre")
    k(f"""s_and_b32 s{sT0}, s{sCI}, 15
    s_lshl_b32 s{sT0}, s{sT0}, 6
    s_lshr_b32 s{sT1}, s{sCI}, 4
    s_add_u32 s{sT0}, s{sT0}, s{sT1}
    s_mul_i32 s{sTO}, s{sT0}, {TAB_ROW}
    s_mul_i32 s{sT0}, s{sT0}, {CH_BYTES}
    s_add_u32 s{sT0}, s{sT0}, {OFF_REC}
    s_add_u32 s{sREC}, s{sWS}, s{sT0}
    s_addc_u32 s{sREC+1}, s{sWS+1}, 0
    s_mov_b32 s{sREC+2}, {CH_BYTES}
    s_waitcnt lgkmcnt(0)
    s_barrier""")
    k(f"ds_read_b128 v[8:11], v{vA16} offset:{H}")
    pf("b1")
    k(f"""s_lshl_b32 s{sT0}, s{sWAVE}, 2
    s_add_u32 s{sT0}, s{sT0}, {SP}
    v_mov_b32 v7, s{sT0}
    v_and_b32 v14, 15, v0
    v_lshlrev_b32 v14, 2, v14
    v_add_u32 v14, {SP}, v14
    s_waitcnt lgkmcnt(0)
    v_add_u32 v9, v8, v9
    v_add_u32 v10, v9, v10
    v_add_u32 v11, v10, v11
    v_mov_b32 v6, v11""")
    scan64(k, 6)
    k(f"""s_mov_b32 exec_lo, 0
    s_brev_b32 exec_hi, 1
    ds_write_b32 v7, v6
    s_mov_b64 exec, -1
    v_sub_u32 v6, v6, v11
    s_waitcnt lgkmcnt(0)
    s_barrier
    ds_read_b32 v7, v14""")
    pf("b2")
    k("s_waitcnt lgkmcnt(0)\nv_mov_b32 v15, v7")
    scan16(k, 7)
    k(f"""v_sub_u32 v7, v7, v15
    s_nop 0
    v_readlane_b32 s{sT0}, v7, s{sWAVE}
    s_nop 1
    v_add_u32 v12, s{sT0}, v6
    v_add_u32 v13, v12, v8
    v_add_u32 v14, v12, v9
    v_add_u32 v15, v12, v10
    ds_write_b128 v{vA16}, v[12:15] offset:{H}
    ds_write_b128 v{vA16}, v[12:15] offset:{H2}
    v_mov_b32 v6, {H2 + 16384}
    v_mov_b32 v7, {C}
    s_mov_b64 exec, 1
    ds_write_b32 v6, v7
    s_mov_b64 exec, -1
    s_waitcnt lgkmcnt(0)
    s_barrier""")
    pf("b3")
    k(f"""v_and_b32 v6, 63, v0
    s_lshl_b32 s{sT0}, s{sWAVE}, 10
    v_lshl_add_u32 v7, v6, 2, s{sT0}
    v_lshl_add_u32 v12, v6, 8, s{sT0}
    ds_read_b32 v8, v7 offset:{H2}
    ds_read_b32 v9, v7 offset:{H2+256}
    ds_read_b32 v10, v7 offset:{H2+512}
    ds_read_b32 v11, v7 offset:{H2+768}
    s_mov_b64 exec, 15
    ds_read_b32 v12, v12 offset:{H2+256}
    s_mov_b64 exec, -1
    s_lshr_b32 s{sT0}, s{sWAVE}, 2
    s_mul_i32 s{sT0}, s{sT0}, {65*32}
    s_and_b32 s{sT1}, s{sWAVE}, 3
    s_lshl_b32 s{sT1}, s{sT1}, 3
    s_add_u32 s{sT0}, s{sT0}, s{sT1}
    v_lshl_add_u32 v7, v6, 5, s{sT0}
    v_lshl_add_u32 v13, v6, 1, s{sT0}
    s_waitcnt lgkmcnt(1)
    v_perm_b32 v8, v9, v8, s{sPERM}
    v_perm_b32 v9, v11, v10, s{sPERM}
    buffer_store_dwordx2 v[8:9], v7, s[{sTAB}:{sTAB+3}], s{sTO} offen
    s_waitcnt lgkmcnt(0)
    s_mov_b64 exec, 15
    buffer_store_short v12, v13, s[{sTAB}:{sTAB+3}], s{sTO} offen offset:{64*32}
    s_mov_b64 exec, -1""")
    vm.issue("tab"); vm.issue("tab")
    B = 5
    batches = [list(range(i, i+B)) for i in range(0, 35, B)] + [[35], [36, 37, 38, 39]]
    def pos_issue(bi):
        t = TMP[(bi % 2)*B:]
        m9 = batches[bi][0] >= 36
        if m9: k(f"s_mov_b64 exec, s[{sM9}:{sM9+1}]")
        for i, j in enumerate(batches[bi]): k(f"v_and_b32 v{t[i]}, 0xffff, v{Xr(j)}")
        for i, j in enumerate(batches[bi]): k(f"ds_add_rtn_u32 v{t[i]}, v{t[i]}, v{vONE} offset:{H}")
        if m9: k("s_mov_b64 exec, -1")
    def pos_merge(bi):
        t = TMP[(bi % 2)*B:]
        for i, j in enumerate(batches[bi]): k(f"v_bfi_b32 v{Xr(j)}, s{sLO}, v{t[i]}, v{Xr(j)}")
    k("s_nop 0")
    pos_issue(0)
    for bi in range(len(batches)):
        if bi + 1 < len(batches):
            pos_issue(bi+1)
            k(f"s_waitcnt lgkmcnt({len(batches[bi+1])})")
        else:
            k("s_waitcnt lgkmcnt(0)")
        pos_merge(bi)
        if bi == 2: pf("pos1")
        if bi == 5: pf("pos2")
    k("s_barrier")
    def scatter(shift, ins, reg, off, sa, sb):
        for j in range(40):
            if j == 36: k(f"s_mov_b64 exec, s[{sM9}:{sM9+1}]")
            t = TMP[j % 8]
            k(f"v_lshlrev_b32_sdwa v{t}, {shift}, v{Xr(j)} {SD} src1_sel:WORD_0\n{ins} v{t}, v{reg(j)} offset:{off}")
            if j == 5: pf(sa)
            if j == 22: pf(sb)
        k("s_mov_b64 exec, -1")
    scatter(2, "ds_write_b32", Wr, 0, "r1a", "r1b")
    k(f"""v_add_u32 v6, 65536, v{vA8}
    v_add_u32 v7, 131072, v{vA8}
    s_waitcnt lgkmcnt(0)
    s_barrier""")
    for q in range(20):
        a = (vA8, 6, 7)[q // 8]
        k(f"ds_read_b64 v[{RB+4*q}:{RB+4*q+1}], v{a} offset:{(q % 8)*8192}")
    pf("rb1")
    k(f"""v_mov_b32 v12, 0
    v_mov_b32 v13, 0
    v_mov_b32 v14, 0
    v_mov_b32 v15, 0
    s_waitcnt lgkmcnt(0)
    s_barrier
    ds_write_b128 v{vA16}, v[12:15] offset:{H}""")
    TMPsave = list(TMP)
    TMP[:] = [6, 7, 8, 9, 10, 11, 6, 7, 8, 9]
    def scatter6():
        for j in range(40):
            if j == 36: k(f"s_mov_b64 exec, s[{sM9}:{sM9+1}]")
            t = 6 + j % 6
            k(f"v_lshlrev_b32_sdwa v{t}, 1, v{Xr(j)} {SD} src1_sel:WORD_0\nds_write_b16_d16_hi v{t}, v{Xr(j)} offset:{CA}")
            if j == 5: pf("r2a")
            if j == 22: pf("r2b")
        k("s_mov_b64 exec, -1")
    scatter6()
    TMP[:] = TMPsave
    k(f"""v_lshlrev_b32 v6, 2, v0
    v_add_u32 v7, 40960, v6
    s_waitcnt lgkmcnt(0)
    s_barrier""")
    for q in [18, 19] + list(range(18)):
        a = (6, 7)[q // 10]
        k(f"ds_read_b32 v{RB+4*q+2}, v{a} offset:{CA + (q % 10)*4096}")
    pf("rb2")
    assert not plan and not pend
    k(f"""s_add_u32 s{sCI}, s{sCI}, 256
    s_add_u32 s{sOI}, s{sOI}, {256*C*4}
    s_add_u32 s{sOA}, s{sOA}, {256*C*2}
    s_add_u32 s{sIT}, s{sIT}, 1
    s_cmp_lt_u32 s{sIT}, 4
    s_waitcnt lgkmcnt(0)
    s_cbranch_scc1 {loop}""")
    tail = [t for t in vm.q if t != "tab"]
    assert tail[-9:] == entry_q[-9:], (tail, entry_q)
    for q in range(20):
        store_quad(q)
    k(f"""v_and_b32 v6, 0x40000000, v{vNAN}
    v_cmp_ne_u32 vcc, 0, v6
    s_lshl_b32 s{sT0}, s{sWAVE}, 4
    s_add_u32 s{sT0}, s{sT0}, {SP+64+8}
    v_mov_b32 v10, s{sT0}
    s_cmp_lg_u64 vcc, 0
    s_cselect_b32 s{sT1}, 1, 0
    v_mov_b32 v11, s{sT1}
    ds_write_b32 v10, v11
    s_waitcnt lgkmcnt(0)
    s_barrier
    s_cmp_lg_u32 s{sWAVE}, 0
    s_cbranch_scc1 {end}
    v_and_b32 v6, 15, v0
    v_lshlrev_b32 v6, 4, v6
    v_add_u32 v6, {SP+64}, v6
    ds_read_b128 v[8:11], v6
    s_waitcnt lgkmcnt(0)""")
    scan16(k, 8, "v_max_u32"); scan16(k, 9, "v_add_f32"); scan16(k, 10, "v_or_b32")
    k(f"""s_lshl_b32 s{sT0}, s2, 4
    s_add_u32 s{sT0}, s{sT0}, {NCH*TAB_ROW}
    v_mov_b32 v6, 0
    v_mov_b32 v11, 0
    s_mov_b64 exec, 0x8000
    buffer_store_dwordx4 v[8:11], v6, s[{sTAB}:{sTAB+3}], s{sT0} offen
    {end}:
    s_endpgm""")
    return k


BIAS = 0x4000
NW = 6
CAP = 64 * (NW + 1)


def pass2(force_slow=False, opts=None):
    o = dict(pf=1, na=3)
    o.update(opts or {})
    k = K("p2_kernel", 256, 1024, LDS_ALL, 128, sgpr=102)
    vm = Cnt(k, "vmcnt", 63); lg = Cnt(k, "lgkmcnt", 15)
    sREC, sM = 4, 8
    sOB, sQ, sWAVE, sT0, sT1, sMAG, sPERM, sTILE, sSCR, sFAIL = 3, 12, 13, 14, 15, 16, 17, 18, 19, 2
    sNB = 20
    sMOFF, sSTR, sIT, sTB, sSO, sWOFF = 22, 23, 24, 25, 26, 27
    sTOT = [28, 29]
    sMM = 30
    sK = [44, 72]
    sUNIT, sJ = 100, 101
    TILE, SP = 80000, 160000
    RAW = [0, 28]
    RAW = [[8 + 4*j for j in range(7)], [36 + 4*j for j in range(7)]]
    holes = [r + 3 for r in RAW[0] + RAW[1]]
    GD = 64
    MP = 88
    RT = 108
    TM = list(range(112, 122))
    OS = holes[:8]; OE = holes[8:14] + [122, 123]
    vA16, vL12, vWA, vCHK, vWI, vSC, vMK = 1, 2, 3, 4, 5, 6, 7
    vWA2, vDUM, vS2 = 124, 125, 126
    end = "L_p2_end"
    k(f"s_cmp_ge_u32 s2, 256\ns_cbranch_scc1 {end}")
    k.ldptr(sREC, "ws"); k.ldptr(sM, "m")
    k(f"""s_and_b32 s{sT0}, s2, 7
    s_lshr_b32 s{sJ}, s2, 3
    s_and_b32 s{sOB}, s{sT0}, 1
    s_lshl_b32 s{sOB}, s{sOB}, 5
    s_add_u32 s{sOB}, s{sOB}, s{sJ}
    s_lshr_b32 s{sQ}, s{sT0}, 1
    v_lshrrev_b32 v{TM[0]}, 6, v0
    v_lshlrev_b32 v{vA16}, 4, v0
    v_and_b32 v{TM[1]}, 63, v0
    v_readfirstlane_b32 s{sWAVE}, v{TM[0]}
    v_mul_u32_u24 v{TM[2]}, {TAB_ROW}, v0
    v_lshlrev_b32 v{TM[3]}, 6, v{TM[1]}
    s_mul_i32 s{sT0}, s{sQ}, 65
    s_add_u32 s{sT0}, s{sT0}, s{sOB}
    s_lshl_b32 s{sT0}, s{sT0}, 5
    s_add_u32 s{sT0}, s{sT0}, {OFF_TAB}
    s_mov_b32 s{sT1}, {OFF_INFO1}
    s_mul_i32 s{sMOFF}, s{sQ}, {16*R*8}
    s_mov_b32 s{sFAIL}, {1 if force_slow else 0}
    s_waitcnt lgkmcnt(0)""")
    k.srd_finish(sREC, WS_BYTES)
    k(f"s_add_u32 s{sM+2}, s{sMOFF}, {16*R*8}\ns_mov_b32 s{sM+3}, 0x00020000")
    for i in range(4):
        k(f"buffer_load_dwordx4 v[{GD+4*i}:{GD+4*i+3}], v{TM[2]}, s[{sREC}:{sREC+3}], s{sT0} offen offset:{16*i}"); vm.issue("tab")
    for i in range(4):
        k(f"buffer_load_dwordx3 v[{36+4*i}:{36+4*i+2}], v{TM[3]}, s[{sREC}:{sREC+3}], s{sT1} offen offset:{16*i}"); vm.issue("info")

    def mload(only=None):
        for u in range(5):
            if only is not None and u not in only: continue
            k(f"s_add_u32 s{sT0}, s{sMOFF}, {u*16384}\nbuffer_load_dwordx4 v[{MP+4*u}:{MP+4*u+3}], v{vA16}, s[{sM}:{sM+3}], s{sT0} offen"); vm.issue("m")
    def mprefetch(dist):
        if not o["pf"]: return
        k(f"""s_and_b32 s{sT0}, s{sJ}, 3
        s_lshl_b32 s{sT0}, s{sT0}, 8
        s_lshr_b32 s{sT1}, s{sJ}, 2
        s_lshl_b32 s{sT1}, s{sT1}, 14
        s_add_u32 s{sT0}, s{sT0}, s{sT1}
        s_add_u32 s{sT0}, s{sT0}, s{sMOFF}
        s_add_u32 s{sT0}, s{sT0}, {dist*R*8}
        s_mov_b64 exec, 0x101
        buffer_load_dword v{vDUM}, v{vA16}, s[{sM}:{sM+3}], s{sT0} offen
        s_mov_b64 exec, -1"""); vm.issue("pf")
    def mwrite():
        for u in range(4):
            k(f"ds_write_b128 v{vWA}, v[{MP+4*u}:{MP+4*u+3}] offset:{u*16384}"); lg.issue("w")
        k(f"ds_write_b128 v{vWA2}, v[{MP+16}:{MP+19}]"); lg.issue("w")
    mload()
    mprefetch(1)
    k(f"""v_mul_u32_u24 v{vL12}, 12, v{TM[1]}
    v_add_u32 v{vL12}, {OFF_REC - CAP*12}, v{vL12}
    v_add_u32 v{vWA}, {TILE}, v{vA16}
    v_add_u32 v{vWA2}, {TILE + 65536}, v{vA16}
    v_add_u32 v{TM[5]}, 65536, v{vA16}
    v_mov_b32 v{TM[4]}, 0x7f000000
    v_cmp_gt_u32 vcc, 904, v0
    s_mul_i32 s{sSCR}, s{sWAVE}, 240
    s_add_u32 s{sSCR}, s{sSCR}, {SP}
    v_cndmask_b32 v{vWA2}, v{TM[4]}, v{vWA2}, vcc
    v_cndmask_b32 v{TM[5]}, v{TM[4]}, v{TM[5]}, vcc
    v_lshl_add_u32 v{vSC}, v{TM[1]}, 2, s{sSCR}
    v_lshl_add_u32 v{vS2}, v{TM[1]}, 1, s{sSCR}
    v_cmp_gt_u32 vcc, 42, v{TM[1]}
    s_mul_i32 s{sWOFF}, s{sWAVE}, {64*CH_BYTES}
    s_mov_b32 s{sSTR}, {CH_BYTES}
    v_cndmask_b32 v{vSC}, v{TM[4]}, v{vSC}, vcc
    v_lshrrev_b32 v{TM[6]}, 1, v{TM[1]}
    v_subrev_u32 v{TM[7]}, 28, v{TM[1]}
    v_cmp_gt_u32 vcc, 28, v{TM[1]}
    s_mov_b32 s{sPERM}, 0x05040100
    s_mov_b32 s{sTILE}, {TILE}
    v_cndmask_b32 v{vWI}, v{TM[7]}, v{TM[6]}, vcc
    v_lshlrev_b32 v{vWI}, 5, v{vWI}
    s_mov_b64 exec, 0x5555555
    v_mov_b32 v{vWI}, -64
    s_mov_b64 exec, -1
    s_mov_b32 s{sNB}, {(-(BIAS*0x0001000100010001)) & 0xffffffff}
    s_mov_b32 s{sNB+1}, {((-(BIAS*0x0001000100010001)) >> 32) & 0xffffffff}
    v_mov_b32 v{vCHK}, 0""")
    for i in range(4): k(f"v_mov_b32 v{RT+i}, {BIAS*0x10001}")
    for u in range(4): k(f"ds_write_b128 v{vA16}, v[{RT}:{RT+3}] offset:{u*16384}")
    k(f"ds_write_b128 v{TM[5]}, v[{RT}:{RT+3}]")
    vm.wait("tab")
    for i in range(8): k(f"v_mov_b32 v{OS[i]}, v{GD+i}")
    for i in range(8): k(f"v_mov_b32 v{OE[i]}, v{GD+8+i}")

    def setup(half, st):
        a, b, c, d, e, f = TM[0:6]
        g2, h2 = TM[6], TM[7]
        assert g2 % 2 == 0
        w = f"WORD_{half}"
        k(f"""v_lshrrev_b32_sdwa v{a}, 1, v{OS[0]} {SD} src1_sel:{w}
        v_add_u32_sdwa v{b}, 1, v{OE[0]} {SD} src1_sel:{w}
        v_lshrrev_b32 v{b}, 1, v{b}
        v_sub_u32 v{b}, v{b}, v{a}
        v_cmp_eq_u32 vcc, 0, v{b}
        v_max_u32 v{b}, 1, v{b}
        v_mov_b32 v{c}, v{b}
        v_and_b32_sdwa v{d}, 1, v{OS[0]} {SD} src1_sel:{w}
        v_and_b32_sdwa v{e}, 1, v{OE[0]} {SD} src1_sel:{w}
        v_add_u32_dpp v{c}, v{c}, v{c} row_shr:1 row_mask:0xf bank_mask:0xf bound_ctrl:0
        v_cndmask_b32 v{d}, v{d}, v{b}, vcc
        v_cndmask_b32 v{e}, v{e}, v{b}, vcc
        v_add_u32_dpp v{c}, v{c}, v{c} row_shr:2 row_mask:0xf bank_mask:0xf bound_ctrl:0
        v_add_u32 v{a}, {CAP}, v{a}
        s_nop 0
        v_add_u32_dpp v{c}, v{c}, v{c} row_shr:4 row_mask:0xf bank_mask:0xf bound_ctrl:0
        s_nop 1
        v_add_u32_dpp v{c}, v{c}, v{c} row_shr:8 row_mask:0xf bank_mask:0xf bound_ctrl:0
        s_nop 1
        v_add_u32_dpp v{c}, v{c}, v{c} row_bcast:15 row_mask:0xa bank_mask:0xf
        s_nop 1
        v_add_u32_dpp v{c}, v{c}, v{c} row_bcast:31 row_mask:0xc bank_mask:0xf
        s_nop 0
        v_readlane_b32 s{sTOT[st]}, v{c}, 63
        v_sub_u32 v{b}, v{c}, v{b}
        v_add_u32 v{c}, -1, v{c}
        v_sub_u32 v{a}, v{a}, v{b}
        s_cmp_gt_u32 s{sTOT[st]}, {CAP}
        s_cselect_b32 s{sTOT[st]}, 0, s{sTOT[st]}
        s_cselect_b32 s{sFAIL}, 1, s{sFAIL}
        s_cselect_b64 vcc, 0, -1
        v_sub_u32 v{f}, s{sTOT[st]}, v{vWI}
        v_med3_i32 v{f}, v{f}, 0, 32
        v_lshlrev_b64 v[{g2}:{h2}], v{f}, -1
        v_lshlrev_b32 v{d}, v{b}, v{d}
        v_lshrrev_b32 v{b}, 5, v{b}
        ds_write_b32 v{vSC}, v{g2}
        v_lshl_add_u32 v{b}, v{b}, 2, s{sSCR}
        v_lshlrev_b32 v{h2}, v{c}, v{e}
        v_lshlrev_b32_e64 v{g2}, v{c}, 1
        v_lshrrev_b32 v{c}, 5, v{c}
        v_lshl_add_u32 v{c}, v{c}, 3, s{sSCR}
        s_mov_b64 exec, vcc
        ds_or_b32 v{b}, v{d} offset:112
        ds_or_b64 v{c}, v[{g2}:{h2}]
        s_mov_b64 exec, -1
        ds_read_b32 v{vMK}, v{vSC}
        ds_write_b16 v{vS2}, v{a}""")
        for t in ("x", "x", "x", "mk", "x"): lg.issue(t)
    def setup2(st):
        lg.wait("mk")
        for j in range(NW):
            k(f"v_readlane_b32 s{sMM+2*j}, v{vMK}, {4*j}\nv_readlane_b32 s{sMM+2*j+1}, v{vMK}, {4*j+2}")
        k(f"s_mov_b32 s{sTB}, s{sSCR}\ns_mov_b32 s{sSO}, s{sWOFF}")
    def readk(j, st):
        K0 = sK[st] + 4*j
        k(f"""v_readlane_b32 s{K0}, v{vMK}, {28+2*j}
        v_readlane_b32 s{K0+1}, v{vMK}, {29+2*j}
        v_readlane_b32 s{K0+2}, v{vMK}, {4*j+1}
        v_readlane_b32 s{K0+3}, v{vMK}, {4*j+3}""")
    def agen1(j, st):
        r = RAW[st][j]
        k(f"""v_mbcnt_lo_u32_b32 v{r}, s{sMM+2*j}, 0
        v_mbcnt_hi_u32_b32 v{r}, s{sMM+2*j+1}, v{r}
        s_bcnt1_i32_b64 s{sT0}, s[{sMM+2*j}:{sMM+2*j+1}]
        v_lshl_add_u32 v{r+1}, v{r}, 1, s{sTB}
        ds_read_u16 v{r+1}, v{r+1}
        v_mad_u32_u24 v{r}, v{r}, s{sSTR}, v{vL12}
        s_mov_b32 s{sMM+2*j}, s{sSO}
        s_lshl1_add_u32 s{sTB}, s{sT0}, s{sTB}
        s_mul_i32 s{sT0}, s{sT0}, s{sSTR}
        s_add_u32 s{sSO}, s{sSO}, s{sT0}
        s_add_u32 s{sSO}, s{sSO}, 768""")
        lg.issue(f"d{j}")
        readk(j, st)
    def agen2(j, st, track=True):
        r = RAW[st][j]; K0 = sK[st] + 4*j
        lg.wait(f"d{j}")
        k(f"""v_mad_u32_u24 v{r}, v{r+1}, 12, v{r}
        s_nand_b64 exec, s[{K0}:{K0+1}], s[{K0+2}:{K0+3}]
        buffer_load_dwordx3 v[{r}:{r+2}], v{r}, s[{sREC}:{sREC+3}], s{sMM+2*j} offen
        s_mov_b64 exec, -1""")
        if track: vm.issue(f"r{st}_{j}")
    def agen_rare(st):
        lab = k.lab("norare")
        k(f"s_cmp_le_u32 s{sTOT[st]}, {64*NW}\ns_cbranch_scc1 {lab}")
        j = NW
        k(f"v_readlane_b32 s{sMM+2*j}, v{vMK}, {4*j}\nv_readlane_b32 s{sMM+2*j+1}, v{vMK}, {4*j+2}\ns_nop 1")
        save = list(lg.q)
        agen1(j, st); agen2(j, st, track=False)
        lg.q = save
        k(f"{lab}:")
    def gather(j, st, g):
        r = RAW[st][j]
        k(f"""v_mad_u32_u16 v{g}, v{r}, 8, s{sTILE}
        v_mad_u32_u16 v{g+2}, v{r+1}, 8, s{sTILE}
        ds_read_b64 v[{g}:{g+1}], v{g}
        ds_read_b64 v[{g+2}:{g+3}], v{g+2}""")
        lg.issue(f"g{j}"); lg.issue(f"g{j}")
    def check():
        lg.wait("rt")
        k(f"v_or3_b32 v{vCHK}, v{RT}, v{RT+1}, v{vCHK}\nv_or3_b32 v{vCHK}, v{RT+2}, v{RT+3}, v{vCHK}")
    def accum(j, st, g):
        r = RAW[st][j]; K0 = sK[st] + 4*j
        t = TM
        k(f"""v_and_b32 v{t[0]}, 0xffff, v{r+2}
        v_lshrrev_b32 v{t[2]}, 16, v{r+2}
        v_lshlrev_b32 v{t[1]}, 16, v{r+2}
        v_and_b32 v{r+2}, 0xffff0000, v{r+2}
        v_lshlrev_b32_sdwa v{r}, 3, v{r} {SD} src1_sel:WORD_1
        v_lshlrev_b32_sdwa v{r+1}, 3, v{r+1} {SD} src1_sel:WORD_1""")
        lg.wait(f"g{j}")
        k(f"""v_dot2_f32_bf16 v{t[3]}, v{g}, v{t[0]}, s{sMAG}
        v_dot2_f32_bf16 v{g}, v{g}, v{t[1]}, s{sMAG}
        v_dot2_f32_bf16 v{t[4]}, v{g+1}, v{t[0]}, s{sMAG}
        v_dot2_f32_bf16 v{g+1}, v{g+1}, v{t[1]}, s{sMAG}
        v_dot2_f32_bf16 v{t[5]}, v{g+2}, v{t[2]}, s{sMAG}
        v_dot2_f32_bf16 v{g+2}, v{g+2}, v{r+2}, s{sMAG}
        v_dot2_f32_bf16 v{t[6]}, v{g+3}, v{t[2]}, s{sMAG}
        v_dot2_f32_bf16 v{g+3}, v{g+3}, v{r+2}, s{sMAG}
        v_perm_b32 v{g}, v{g}, v{t[3]}, s{sPERM}
        v_perm_b32 v{g+1}, v{g+1}, v{t[4]}, s{sPERM}
        v_perm_b32 v{g+2}, v{g+2}, v{t[5]}, s{sPERM}
        v_perm_b32 v{g+3}, v{g+3}, v{t[6]}, s{sPERM}
        v_lshl_add_u64 v[{g}:{g+1}], v[{g}:{g+1}], 0, s[{sNB}:{sNB+1}]
        v_lshl_add_u64 v[{g+2}:{g+3}], v[{g+2}:{g+3}], 0, s[{sNB}:{sNB+1}]""")
        check()
        k(f"""s_not_b64 exec, s[{K0}:{K0+1}]
        ds_add_rtn_u64 v[{RT}:{RT+1}], v{r}, v[{g}:{g+1}]
        s_not_b64 exec, s[{K0+2}:{K0+3}]
        ds_add_rtn_u64 v[{RT+2}:{RT+3}], v{r+1}, v[{g+2}:{g+3}]
        s_mov_b64 exec, -1""")
        lg.issue("rt"); lg.issue("rt")
    def rare(st):
        lab = k.lab("norare2")
        k(f"s_cmp_le_u32 s{sTOT[st]}, {64*NW}\ns_cbranch_scc1 {lab}\ns_waitcnt vmcnt(0)")
        save = list(lg.q)
        lg.q = ["rt"]
        gather(NW, st, GD); accum(NW, st, GD)
        k("s_waitcnt lgkmcnt(0)")
        lg.q = save
        k(f"{lab}:")

    setup(0, 0); setup2(0)
    k("s_nop 0")
    for j in range(NW): agen1(j, 0)
    for j in range(NW): agen2(j, 0)
    agen_rare(0)
    vm.wait("info")
    k(f"""v_max3_u32 v36, v36, v40, v44
    v_add_f32 v37, v37, v41
    v_or3_b32 v38, v38, v42, v46
    v_add_f32 v45, v45, v49
    v_max_u32 v36, v36, v48
    v_or_b32 v38, v38, v50
    v_add_f32 v37, v37, v45
    v_cmp_ne_u32 vcc, 0, v38""")
    scan64(k, 36, "v_max_u32"); scan64(k, 37, "v_add_f32")
    import struct
    f2u = lambda x: struct.unpack("<I", struct.pack("<f", x))[0]
    k(f"""s_cmp_lg_u64 vcc, 0
    s_cselect_b32 s{sFAIL}, 1, s{sFAIL}
    v_lshlrev_b32 v36, 16, v36
    v_mul_f32 v38, {f2u(64.0/(4*E))}, v37
    v_mul_f32 v37, {f2u(33.0/(4*E))}, v37
    v_cmp_nle_f32 vcc, v36, v38
    v_max_u32 v36, v36, v37
    s_nop 0
    v_readlane_b32 s{sT0}, v36, 63
    s_bitcmp1_b32 vcc_hi, 31
    s_cselect_b32 s{sFAIL}, 1, s{sFAIL}
    s_lshr_b32 s{sT0}, s{sT0}, 23
    s_add_u32 s{sT0}, s{sT0}, 1
    s_cmp_lt_u32 s{sT0}, 40
    s_cselect_b32 s{sFAIL}, 1, s{sFAIL}
    s_cmp_gt_u32 s{sT0}, 230
    s_cselect_b32 s{sFAIL}, 1, s{sFAIL}
    s_sub_u32 s{sUNIT}, s{sT0}, 14
    s_lshl_b32 s{sUNIT}, s{sUNIT}, 23
    s_add_u32 s{sMAG}, s{sUNIT}, {(23 << 23) + 0x400000 + BIAS}""")
    vm.wait("m")
    mwrite()
    k(f"s_add_u32 s{sMOFF}, s{sMOFF}, {R*8}")
    mload()
    setup(1, 1)
    k(f"s_mov_b32 s{sIT}, 0")
    lg.wait("w")
    k("s_barrier")
    loop = "L_p2_loop"
    k(f"{loop}:")
    vm_entry = list(vm.q); lg_entry = list(lg.q)
    lg.q = ["rt", "rt"] + lg.q
    for st in (0, 1):
        nx = 1 - st
        rare(st)
        setup2(nx)
        mprefetch(1)
        for j in range(NW):
            vm.wait(f"r{st}_{j}")
            gather(j, st, GD + 4*j)
            agen1(j, nx)
        na = o["na"]
        for j in range(na):
            agen2(2*j, nx); agen2(2*j+1, nx)
            accum(j, st, GD + 4*j)
        for j in range(2*na, NW): agen2(j, nx)
        agen_rare(nx)
        lg.wait(f"g{NW-1}")
        k("s_barrier")
        vm.wait("m")
        mwrite()
        k(f"s_add_u32 s{sMOFF}, s{sMOFF}, {R*8}")
        rest = list(range(na, NW))
        ml = [[0, 1], [2, 3], [4]] if len(rest) == 3 else [list(range(5))] + [[]]*len(rest)
        for i, j in enumerate(rest):
            accum(j, st, GD + 4*j)
            mload(ml[i])
        if st == 0:
            for i in range(7): k(f"v_mov_b32 v{OS[i]}, v{OS[i+1]}\nv_mov_b32 v{OE[i]}, v{OE[i+1]}")
            k(f"v_mov_b32 v{OS[7]}, 0\nv_mov_b32 v{OE[7]}, 0")
        setup(st, st)
        lg.wait("w")
        if st == 1:
            k(f"s_add_u32 s{sIT}, s{sIT}, 1\ns_cmp_lt_u32 s{sIT}, 8")
        k("s_barrier")
    k(f"s_cbranch_scc1 {loop}")
    strip = lambda q: [t for t in q if t != "pf"]
    assert strip(vm.q)[-11:] == strip(vm_entry)[-11:], (vm.q, vm_entry)
    assert lg.q[-5:] == lg_entry[-5:], (lg.q, lg_entry)
    check()
    k(f"""s_waitcnt vmcnt(0) lgkmcnt(0)
    s_barrier
    v_subrev_u32 v{TM[0]}, {TILE}, v{vWA2}""")
    for u in range(4): k(f"ds_read_b128 v[{MP+4*u}:{MP+4*u+3}], v{vA16} offset:{u*16384}")
    k(f"""ds_read_b128 v[{MP+16}:{MP+19}], v{TM[0]}
    s_mul_i32 s{sT0}, s{sQ}, {E*8}
    s_mul_i32 s{sT1}, s{sOB}, {R*8}
    s_add_u32 s{sSO}, s{sT0}, s{sT1}
    s_add_u32 s{sSO}, s{sSO}, {OFF_P16}""")
    for u in range(5):
        k(f"s_waitcnt lgkmcnt({4-u})")
        if u < 4: k(f"s_add_u32 s{sT0}, s{sSO}, {u*16384}\nbuffer_store_dwordx4 v[{MP+4*u}:{MP+4*u+3}], v{vA16}, s[{sREC}:{sREC+3}], s{sT0} offen")
        else: k(f"buffer_store_dwordx4 v[{MP+4*u}:{MP+4*u+3}], v{TM[0]}, s[{sREC}:{sREC+3}], s{sSO} offen")
        k(f"v_or3_b32 v{vCHK}, v{MP+4*u}, v{MP+4*u+1}, v{vCHK}\nv_or3_b32 v{vCHK}, v{MP+4*u+2}, v{MP+4*u+3}, v{vCHK}")
    k(f"""v_and_b32 v{vCHK}, 0x80008000, v{vCHK}
    v_cmp_ne_u32 vcc, 0, v{vCHK}
    v_mov_b32 v{TM[1]}, s{sSCR}
    v_and_b32 v{TM[3]}, 15, v0
    v_mul_u32_u24 v{TM[3]}, 240, v{TM[3]}
    v_add_u32 v{TM[3]}, {SP}, v{TM[3]}
    s_cmp_lg_u64 vcc, 0
    s_cselect_b32 s{sFAIL}, 1, s{sFAIL}
    v_mov_b32 v{TM[2]}, s{sFAIL}
    s_mov_b64 exec, 1
    ds_write_b32 v{TM[1]}, v{TM[2]}
    s_mov_b64 exec, -1
    s_waitcnt lgkmcnt(0)
    s_barrier
    ds_read_b32 v{TM[2]}, v{TM[3]}
    s_lshl_b32 s{sT0}, s{sOB}, 4
    s_lshl_b32 s{sT1}, s{sQ}, 2
    s_add_u32 s{sTB}, s{sT0}, s{sT1}
    s_add_u32 s{sTB}, s{sTB}, {OFF_INFO2}
    s_waitcnt lgkmcnt(0)
    v_cmp_ne_u32 vcc, 0, v{TM[2]}
    v_mov_b32 v{TM[1]}, 0
    s_nop 1
    s_cmp_lg_u64 vcc, 0
    s_cselect_b32 s{sT0}, 0, s{sUNIT}
    v_mov_b32 v{TM[2]}, s{sT0}
    s_mov_b64 exec, 1
    buffer_store_dword v{TM[2]}, v{TM[1]}, s[{sREC}:{sREC+3}], s{sTB} offen
    s_mov_b64 exec, -1
    s_cbranch_scc0 {end}""")
    k(f"""s_barrier
    v_mov_b32 v8, 0
    v_mov_b32 v9, 0
    v_mov_b32 v10, 0
    v_mov_b32 v11, 0
    v_mov_b32 v12, v{vA16}""")
    for u in range(10):
        k("ds_write_b128 v12, v[8:11]\nv_add_u32 v12, 16384, v12")
    k(f"""v_mul_u32_u24 v13, {TAB_ROW}, v0
    v_mul_lo_u32 v14, v0, s{sSTR}
    v_add_u32 v14, {OFF_REC}, v14
    s_mul_i32 s{sTB}, s{sQ}, 65
    s_add_u32 s{sTB}, s{sTB}, s{sOB}
    s_lshl_b32 s{sTB}, s{sTB}, 5
    s_add_u32 s{sTB}, s{sTB}, {OFF_TAB}
    s_mul_i32 s{sMOFF}, s{sQ}, {16*R*8}
    s_mov_b32 s{sIT}, 0
    s_waitcnt lgkmcnt(0)
    s_barrier
    L_p2_sstep:
    buffer_load_ushort v15, v13, s[{sREC}:{sREC+3}], s{sTB} offen
    buffer_load_ushort v16, v13, s[{sREC}:{sREC+3}], s{sTB} offen offset:32
    s_waitcnt vmcnt(0)
    L_p2_srec:
    v_cmp_lt_u32 vcc, v15, v16
    s_nop 1
    s_and_b64 exec, exec, vcc
    s_cbranch_execz L_p2_sdone
    v_lshrrev_b32 v17, 1, v15
    v_and_b32 v18, 1, v15
    v_mad_u32_u24 v17, v17, 12, v14
    v_lshl_add_u32 v19, v18, 2, v17
    v_lshl_add_u32 v17, v18, 1, v17
    buffer_load_dword v20, v19, s[{sREC}:{sREC+3}], 0 offen
    buffer_load_ushort v21, v17, s[{sREC}:{sREC+3}], 0 offen offset:8
    v_add_u32 v15, 1, v15
    s_waitcnt vmcnt(0)
    v_lshlrev_b32_sdwa v19, 3, v20 {SD} src1_sel:WORD_0
    buffer_load_dwordx2 v[22:23], v19, s[{sM}:{sM+3}], s{sMOFF} offen
    v_lshlrev_b32_sdwa v20, 4, v20 {SD} src1_sel:WORD_1
    v_lshlrev_b32 v21, 16, v21
    s_waitcnt vmcnt(0)
    v_lshlrev_b32 v24, 16, v22
    v_and_b32 v25, 0xffff0000, v22
    v_lshlrev_b32 v26, 16, v23
    v_and_b32 v27, 0xffff0000, v23
    v_mul_f32 v24, v21, v24
    v_mul_f32 v25, v21, v25
    v_mul_f32 v26, v21, v26
    v_mul_f32 v27, v21, v27
    ds_add_f32 v20, v24
    ds_add_f32 v20, v25 offset:4
    ds_add_f32 v20, v26 offset:8
    ds_add_f32 v20, v27 offset:12
    s_branch L_p2_srec
    L_p2_sdone:
    s_mov_b64 exec, -1
    s_add_u32 s{sTB}, s{sTB}, 2
    s_add_u32 s{sMOFF}, s{sMOFF}, {R*8}
    s_add_u32 s{sIT}, s{sIT}, 1
    s_cmp_lt_u32 s{sIT}, 16
    s_cbranch_scc1 L_p2_sstep
    s_waitcnt lgkmcnt(0)
    s_barrier
    s_mul_i32 s{sT0}, s{sQ}, {E*16}
    s_mul_i32 s{sT1}, s{sOB}, {R*16}
    s_add_u32 s{sSO}, s{sT0}, s{sT1}
    s_add_u32 s{sSO}, s{sSO}, {OFF_P32}
    v_mov_b32 v12, v{vA16}
    s_mov_b32 s{sIT}, 0
    L_p2_sout:
    v_cmp_gt_u32 vcc, {R*16}, v12
    ds_read_b128 v[8:11], v12
    s_nop 0
    s_and_b64 exec, exec, vcc
    s_cbranch_execz {end}
    s_waitcnt lgkmcnt(0)
    buffer_store_dwordx4 v[8:11], v12, s[{sREC}:{sREC+3}], s{sSO} offen
    s_waitcnt vmcnt(0)
    v_add_u32 v12, 16384, v12
    s_branch L_p2_sout
    {end}:
    s_endpgm""")
    return k


def rnd2(k, a, b, t):
    k(f"""v_cvt_pk_bf16_f32 v{t}, v{a}, v{b}
    v_lshlrev_b32 v{a}, 16, v{t}
    v_and_b32 v{b}, 0xffff0000, v{t}""")


def pass3():
    k = K("p3_kernel", E // 512, 256, 0, 64, sgpr=102)
    end = "L_p3_end"
    k(f"s_cmp_ge_u32 s2, {E//512}\ns_cbranch_scc1 {end}")
    k.ldptr(4, "ws"); k.ldptr(8, "m"); k.ldptr(12, "dist"); k.ldptr(16, "out")
    k(f"""s_load_dwordx2 s[20:21], s[0:1], 40
    s_load_dwordx4 s[24:27], s[0:1], 56
    s_load_dwordx4 s[28:31], s[0:1], 72
    s_lshl_b32 s3, s2, 8
    v_add_u32 v0, s3, v0
    v_lshlrev_b32 v1, 4, v0
    v_lshlrev_b32 v2, 2, v0
    v_mul_hi_u32_u24 v3, {(2**32 + R//2 - 1)//(R//2)}, v0
    v_lshlrev_b32 v3, 4, v3
    s_waitcnt lgkmcnt(0)""")
    k.srd_finish(4, WS_BYTES); k.srd_finish(8, E*8); k.srd_finish(12, E*2); k.srd_finish(16, E*8)
    k(f"""s_load_dwordx4 s[96:99], s[20:21], 0
    s_load_dwordx16 s[32:47], s[24:25], 0
    s_load_dwordx16 s[48:63], s[26:27], 0
    s_load_dwordx8 s[64:71], s[28:29], 0
    s_load_dwordx8 s[80:87], s[30:31], 0
    buffer_load_dword v4, v2, s[12:15], 0 offen
    s_mov_b32 s3, {OFF_INFO2}
    buffer_load_dwordx4 v[8:11], v3, s[4:7], s3 offen""")
    for q in range(4):
        k(f"s_mov_b32 s3, {OFF_P16 + q*E*8}\nbuffer_load_dwordx4 v[{12+4*q}:{15+4*q}], v1, s[4:7], s3 offen")
    k("buffer_load_dwordx4 v[28:31], v1, s[8:11], 0 offen\ns_waitcnt lgkmcnt(0)")
    for base in (32, 48):
        for p in range(4):
            b = base + 4*p
            k(f"""s_pack_ll_b32_b16 s20, s{b}, s{b+2}
            s_pack_hh_b32_b16 s21, s{b}, s{b+2}
            s_pack_ll_b32_b16 s22, s{b+1}, s{b+3}
            s_pack_hh_b32_b16 s{b+3}, s{b+1}, s{b+3}
            s_mov_b32 s{b}, s20
            s_mov_b32 s{b+1}, s21
            s_mov_b32 s{b+2}, s22""")
    for base in (64, 80):
        for i in range(7, -1, -1):
            k(f"s_and_b32 s{base+2*i+1}, s{base+i}, 0xffff0000\ns_lshl_b32 s{base+2*i}, s{base+i}, 16")
    for i in range(4):
        k(f"s_lshl_b32 s{20+2*i}, s{96+i}, 16\ns_and_b32 s{21+2*i}, s{96+i}, 0xffff0000")
    k("s_waitcnt vmcnt(6)\nv_and_b32 v5, 0xffff0000, v4\nv_lshlrev_b32 v4, 16, v4")
    RB_, PK, H, G = 32, 40, (44, 52), (48, 56)
    for e in range(2):
        for r in range(8): k(f"v_subrev_f32 v{RB_+r}, s{20+r}, v{4+e}")
        for r in range(0, 8, 2): rnd2(k, RB_+r, RB_+r+1, 6)
        for r in range(8): k(f"v_mul_f32 v{RB_+r}, v{RB_+r}, v{RB_+r}")
        for r in range(0, 8, 2): rnd2(k, RB_+r, RB_+r+1, 6)
        for r in range(8): k(f"v_mul_f32 v{RB_+r}, 0xc1200000, v{RB_+r}")
        for r in range(0, 8, 2): rnd2(k, RB_+r, RB_+r+1, 6)
        for r in range(8): k(f"v_mul_f32 v{RB_+r}, 0x3fb8aa3b, v{RB_+r}")
        for r in range(8): k(f"v_exp_f32 v{RB_+r}, v{RB_+r}")
        for p in range(4): k(f"v_cvt_pk_bf16_f32 v{PK+p}, v{RB_+2*p}, v{RB_+2*p+1}")
        for p in range(4):
            for dst, base in ((H[e], 32), (G[e], 48)):
                for c in range(4):
                    k(f"v_dot2_f32_bf16 v{dst+c}, v{PK+p}, s{base+4*p+c}, {'0' if p == 0 else 'v%d' % (dst+c)}")
    k("s_waitcnt vmcnt(1)")
    for q in range(4):
        for i in range(8):
            src = 12 + 4*q + i//2
            k(f"v_cvt_f32_u32_sdwa v{40+i%4}, v{src} dst_sel:DWORD dst_unused:UNUSED_PAD src0_sel:WORD_{i & 1}")
            k(f"v_add_f32 v{40+i%4}, {0xc6800000}, v{40+i%4}")
            k(f"v_mul_f32 v{32+i}, v{8+q}, v{40+i%4}" if q == 0 else f"v_fmac_f32 v{32+i}, v{8+q}, v{40+i%4}")
    assert BIAS == 0x4000
    k(f"""v_min_u32 v6, v8, v9
    v_min3_u32 v6, v6, v10, v11
    v_cmp_eq_u32 vcc, 0, v6
    s_nop 1
    s_cbranch_vccz L_p3_fast
    v_lshlrev_b32 v7, 5, v0""")
    for q in range(4):
        lab = k.lab("q")
        k(f"""v_cmp_eq_u32 vcc, 0, v{8+q}
        s_nop 1
        s_and_b64 exec, exec, vcc
        s_cbranch_execz {lab}
        s_mov_b32 s3, {OFF_P32 + q*E*16}
        buffer_load_dwordx4 v[12:15], v7, s[4:7], s3 offen
        buffer_load_dwordx4 v[16:19], v7, s[4:7], s3 offen offset:16
        s_waitcnt vmcnt(0)""")
        for i in range(8): k(f"v_add_f32 v{32+i}, v{32+i}, v{12+i}")
        k(f"{lab}:\ns_mov_b64 exec, -1")
    k("L_p3_fast:")
    D, U = 12, 16
    k("s_waitcnt vmcnt(0)")
    for e in range(2):
        S = 32 + 4*e
        for j in range(4):
            for c in range(4):
                k(f"v_mul_f32 v{D+c}, s{64+j*4+c}, v{S+j}" if j == 0 else f"v_fmac_f32 v{D+c}, s{64+j*4+c}, v{S+j}")
        for c in range(4): k(f"v_mul_f32 v{D+c}, v{D+c}, v{G[e]+c}")
        for j in range(4):
            for c in range(4):
                k(f"v_mul_f32 v{U+c}, s{80+j*4+c}, v{D+j}" if j == 0 else f"v_fmac_f32 v{U+c}, s{80+j*4+c}, v{D+j}")
        k(f"""v_lshlrev_b32 v20, 16, v{28+2*e}
        v_and_b32 v21, 0xffff0000, v{28+2*e}
        v_lshlrev_b32 v22, 16, v{29+2*e}
        v_and_b32 v23, 0xffff0000, v{29+2*e}""")
        for c in range(4): k(f"v_fmac_f32 v{20+c}, v{U+c}, v{H[e]+c}")
        k(f"v_cvt_pk_bf16_f32 v{28+2*e}, v20, v21\nv_cvt_pk_bf16_f32 v{29+2*e}, v22, v23")
    k(f"""buffer_store_dwordx4 v[28:31], v1, s[16:19], 0 offen
    {end}:
    s_endpgm""")
    return k


if __name__ == "__main__":
    if sys.argv[1] == "p1var":
        plans = {
          "a": None,
          "b": ["pre"]*9,
          "c": ["b1"]*3 + ["b3"]*3 + ["pos1"]*3,
          "d": ["pos1", "pos2", "r1a", "r1b", "rb1", "r2a", "r2b", "rb2", "rb2"],
          "e": ["rb2"]*9,
        }
        for n, p in plans.items():
            for sf in ("sc1", "", "nt"):
                open(f"p1_{n}_{sf or 'pl'}.s", "w").write(assemble_file([pass1(sf, list(p) if p else None)]))
    else:
        ks = [pass1(), pass2(force_slow=(len(sys.argv) > 2 and sys.argv[2] == "slow")), pass3()]
        open(sys.argv[1], "w").write(assemble_file(ks))
```

```python
import sys
from asmlib import *

C = 40000
NCH = 1024
R = 10000
CMAX = 40064
CH_BYTES = (((CMAX + 2) // 3 * 16 + 127) // 128 | 1) * 128
CQ = 511
TAB_PITCH = NCH * 32 + 128
TAB_BYTES = 4 * 65 * TAB_PITCH
OFF_REC = 8192
OFF_TAB = OFF_REC + NCH * CH_BYTES
OFF_INFO1 = OFF_TAB + TAB_BYTES
OFF_INFO2 = OFF_INFO1 + 4096
OFF_CNT = OFF_INFO2 + 4096
OFF_MC = OFF_CNT + 64 * 256
OFF_P16 = OFF_MC + E * 8
OFF_P32 = OFF_P16 + 4 * E * 8
assert OFF_P32 + 4 * E * 16 <= WS_BYTES
MAGIC_DIV = (2**32 + R - 1) // R
LDS_ALL = 163840
SD = "dst_sel:DWORD dst_unused:UNUSED_PAD src0_sel:DWORD"


import struct
f2u = lambda x: struct.unpack("<I", struct.pack("<f", x))[0]


class Cnt:
    def __init__(self, k, name, mx):
        self.k, self.name, self.mx, self.q = k, name, mx, []
        self.rec, self.forced = [], None
    def issue(self, tag=None):
        self.q.append(tag)
    def wait(self, tag):
        idx = [i for i, t in enumerate(self.q) if t == tag]
        n = min(len(self.q) - 1 - idx[-1], self.mx) if idx else None
        if self.forced is not None:
            f = self.forced[len(self.rec)]
            assert n is None or (f is not None and f <= n)
            n = f
        self.rec.append(n)
        if n is None:
            return
        self.k(f"s_waitcnt {self.name}({n})")
        if len(self.q) > n:
            self.q = self.q[len(self.q) - n:] if n else []


def emit_loop(k, cnts, body):
    n0, lab0 = len(k.L), k.nlab
    entry = [list(c.q) for c in cnts]
    recs = []
    for trial in range(3):
        for c in cnts: c.rec, c.forced = [], None
        body()
        recs.append([list(c.rec) for c in cnts])
        del k.L[n0:]; k.nlab = lab0
    last = [list(c.q) for c in cnts]
    for i, c in enumerate(cnts):
        merged = []
        for col in zip(*[r[i] for r in recs]):
            v = [x for x in col if x is not None]
            merged.append(min(v) if v else None)
        c.q, c.rec, c.forced = entry[i], [], merged
    body()
    for i, c in enumerate(cnts):
        c.forced, c.rec, c.q = None, [], last[i]


def stamp(k, i, sa, v=127, real=False):
    k(f"""s_waitcnt lgkmcnt(0)
    {'s_memrealtime' if real else 's_memtime'} s[{sa}:{sa+1}]
    s_waitcnt lgkmcnt(0)""")
    if isinstance(i, str):
        k(f"s_mov_b32 m0, {i}\nv_writelane_b32 v{v}, s{sa}, m0")
    else:
        k(f"v_writelane_b32 v{v}, s{sa}, {i}")


def stamp_dump(k, cond, sa, v=127, vt=126):
    lab = k.lab("nodump")
    k(cond)
    k(f"""s_cbranch_scc0 {lab}
    s_load_dwordx2 s[{sa}:{sa+1}], s[0:1], 96
    s_waitcnt lgkmcnt(0)
    s_mov_b32 s{sa+2}, 256
    s_mov_b32 s{sa+3}, 0x00020000
    v_and_b32 v{vt}, 63, v0
    v_lshlrev_b32 v{vt}, 2, v{vt}
    buffer_store_dword v{v}, v{vt}, s[{sa}:{sa+3}], 0 offen
    {lab}:""")


def timeline(k, idx):
    first = [i for i, l in enumerate(k.L) if "s_cbranch_scc1" in l][0]
    k.L[first+1:first+1] = ["    s_memrealtime s[98:99]", "    s_mov_b32 s97, s2", "    s_waitcnt lgkmcnt(0)", "    s_mov_b32 s96, s98"]
    k.L[first] = f"    s_cbranch_scc1 L_tl_{idx}"
    last = len(k.L) - 1
    assert "s_endpgm" in k.L[last]
    nw = k.block // 64
    k.L[last:last] = ["    " + l.strip() for l in f"""s_waitcnt vmcnt(0) lgkmcnt(0)
    s_load_dwordx2 s[4:5], s[0:1], 104
    s_memrealtime s[98:99]
    s_waitcnt lgkmcnt(0)
    s_mov_b32 s6, {WS_BYTES}
    s_mov_b32 s7, 0x00020000
    s_getreg_b32 s8, hwreg(HW_REG_HW_ID, 0, 4)
    s_mov_b64 exec, 1
    v_mov_b32 v2, s96
    v_mov_b32 v3, s98
    v_mov_b32 v4, 0
    s_lshl_b32 s97, s97, 3
    s_add_u32 s97, s97, {610000000 + idx*65536}
    buffer_store_dwordx2 v[2:3], v4, s[4:7], s97 offen""".split("\n")] + [f"L_tl_{idx}:"]
    k.sgpr = 102
    return k


def scan64(k, v, op="v_add_u32"):
    for sh in (1, 2, 4, 8):
        k(f"s_nop 1\n{op}_dpp v{v}, v{v}, v{v} row_shr:{sh} row_mask:0xf bank_mask:0xf bound_ctrl:0")
    k(f"s_nop 1\n{op}_dpp v{v}, v{v}, v{v} row_bcast:15 row_mask:0xa bank_mask:0xf")
    k(f"s_nop 1\n{op}_dpp v{v}, v{v}, v{v} row_bcast:31 row_mask:0xc bank_mask:0xf")


def scan16(k, v, op="v_add_u32"):
    for sh in (1, 2, 4, 8):
        k(f"s_nop 1\n{op}_dpp v{v}, v{v}, v{v} row_shr:{sh} row_mask:0xf bank_mask:0xf bound_ctrl:0")


def pass1(stflag="sc1", plan=None, diag=None, tabflag="", cplan=None, exp="", order=0):
    k = K("p1_kernel", 256, 1024, LDS_ALL, 128)
    def st_(n):
        if diag is not None:
            k(f"s_mul_i32 s82, s40, 12\ns_add_u32 s82, s82, {1+n}"); stamp(k, "s82", 80, v=5)
    vm = Cnt(k, "vmcnt", 63)
    sWS, sIN, sOUT, sANG, sREC, sTAB, sM = 4, 8, 12, 16, 20, 24, 28
    sCI, sOI, sOA, sT0, sT1, sNEG, sKC, sWAVE, sIT, sKF, sTO, sPERM = 32, 33, 34, 35, 36, 37, 38, 39, 40, 41, 42, 43
    sM9 = 44
    sNUL, sTOTAL, sBAD = 46, 54, 55
    sF4, sF2, sD3 = 48, 49, 50
    sE0, sE1 = 56, 64
    vA16, vA8, vTR, vONE, vNAN = 1, 2, 3, 4, 5
    TMP = list(range(6, 16))
    NPF = 4
    SLOT = [16 + 8*i for i in range(NPF)]
    RB = 48
    H, H2, CA, SP = 0, 16384, 16384, CMAX*4
    Q = [RB + 4*q for q in range(13)]
    B = [RB + 52 + 4*b for b in range(7)]
    XQ = 12
    wslots = [Q[q] + x for q in range(6) for x in range(3)] + [B[6] + 3] + [Q[q] + x for q in range(6, 13) for x in range(3)]
    pslots = [Q[q] + 3 for q in range(6)] + [B[5] + x for x in range(4)] + [B[6] + x for x in range(3)] + [Q[q] + 3 for q in range(6, 13)]
    Wr = lambda j: wslots[j]
    Pr = lambda j: pslots[j // 2]
    Cr = lambda j: B[0] + j // 2
    LAND = {g: (SLOT[g], SLOT[g] + 4) for g in range(NPF)}
    LAND.update({4: (Q[6], Q[7]), 5: (Q[8], B[0]), 6: (Q[9], B[1]), 7: (Q[10], B[2]), 8: (Q[11], B[3]), 9: (Q[12], B[4])})
    for g in range(10):
        busy = {r + x for h in range(g + 1, 10) for r in LAND[h] for x in range(4)}
        outs = [Wr(4*g + x) for x in range(4)] + [Pr(4*g), Pr(4*g + 2)]
        assert not busy & set(outs) and not {LAND[g][1] + x for x in range(4)} & set(outs[4:])
    M9 = f"s_mov_b64 exec, s[{sM9}:{sM9+1}]"
    end = "L_p1_end"
    k(f"s_cmp_ge_u32 s2, 256\ns_cbranch_scc1 {end}")
    k.ldptr(sWS, "ws"); k.ldptr(sIN, "idx_in"); k.ldptr(sOUT, "idx_out"); k.ldptr(sANG, "angle"); k.ldptr(sM, "m")
    k.ldptr(6, "ang_freq")
    k(f"""v_lshlrev_b32 v{vA16}, 4, v0
    v_lshlrev_b32 v{vA8}, 3, v0
    v_lshrrev_b32 v6, 6, v0
    v_mul_u32_u24 v{vTR}, {832-64}, v6
    v_add_lshl_u32 v{vTR}, v{vTR}, v0, 4
    v_mov_b32 v{vONE}, 1
    v_mov_b32 v{vNAN}, 0
    v_readfirstlane_b32 s{sWAVE}, v6
    v_cmp_gt_u32 vcc, 784, v0
    s_mov_b32 s{sCI}, s2
    s_lshl_b32 s{sOI}, s2, 14
    s_lshl_b32 s{sOA}, s2, 13
    s_mul_i32 s{sF4}, s2, {(4096-3136)*4}
    s_mul_i32 s{sF2}, s2, {(4096-3136)*2}
    s_mov_b64 s[{sM9}:{sM9+1}], vcc
    s_waitcnt lgkmcnt(0)
    s_load_dword s3, s[6:7], 0""")
    k.srd_finish(sIN, T*4); k.srd_finish(sOUT, T*4); k.srd_finish(sANG, T*2)
    if diag is not None:
        stamp(k, 0, 80, v=5); stamp(k, 60, 80, v=5, real=True)

    def load_idx(g, which, nxt=False):
        srd = (sIN, sOUT)[which]; d = LAND[g][which]
        k(f"s_add_u32 s{sT0}, s{sOI}, {g*16384*256 + (256*C*4 if nxt else 0)}")
        a = vA16
        if g == 9:
            a = d
            k(f"s_sub_u32 s{sT0}, s{sT0}, s{sF4}\nv_cndmask_b32 v{a}, 2.0, v{vA16}, s[{sM9}:{sM9+1}]")
        k(f"buffer_load_dwordx4 v[{d}:{d+3}], v{a}, s[{srd}:{srd+3}], s{sT0} offen nt"); vm.issue(f"g{g}")
    def load_ang(g):
        d = Cr(4*g)
        k(f"s_add_u32 s{sT0}, s{sOA}, {g*8192*256}")
        a = vA8
        if g == 9:
            a = d
            k(f"s_sub_u32 s{sT0}, s{sT0}, s{sF2}\nv_cndmask_b32 v{a}, 2.0, v{vA8}, s[{sM9}:{sM9+1}]")
        k(f"buffer_load_dwordx2 v[{d}:{d+1}], v{a}, s[{sANG}:{sANG+3}], s{sT0} offen nt"); vm.issue(f"a{g}")

    k(f"""s_mul_i32 s{sT1}, s2, 20000
    s_add_u32 s{sM+2}, s{sT1}, 20000
    s_mov_b32 s{sM+3}, 0x00020000
    s_add_u32 s{sT0}, s{sT1}, 16384
    buffer_load_dwordx4 v[{RB}:{RB+3}], v{vA16}, s[{sM}:{sM+3}], s{sT1} offen nt
    buffer_load_dwordx4 v[{RB+4}:{RB+7}], v{vA16}, s[{sM}:{sM+3}], s{sT0} offen nt""")
    vm.issue("m"); vm.issue("m")
    for g in range(NPF):
        load_idx(g, 0); load_idx(g, 1)
    k(f"""s_mov_b32 s{sREC}, s{sWS}
    s_mov_b32 s{sREC+1}, s{sWS+1}
    s_mov_b32 s{sREC+2}, 0
    s_mov_b32 s{sREC+3}, 0x00020000
    s_add_u32 s{sTAB}, s{sWS}, {OFF_TAB}
    s_addc_u32 s{sTAB+1}, s{sWS+1}, 0
    s_mov_b32 s{sTAB+2}, {OFF_MC - OFF_TAB}
    s_mov_b32 s{sTAB+3}, 0x00020000
    s_mov_b32 s{sNEG}, {((-R) & 0xffff) | ((0x8000 - R) << 16)}
    s_mov_b32 s{sBAD}, 0
    s_mov_b32 s{sD3}, 21845
    s_mov_b32 s{sKC}, {256 | (4 << 16)}
    s_mov_b32 s{sPERM}, 0x05040100
    s_mov_b32 s{sIT}, 0
    v_mov_b32 v8, 0
    v_mov_b32 v9, 0
    v_mov_b32 v10, 0
    v_mov_b32 v11, 0
    ds_write_b128 v{vA16}, v[8:11] offset:{H}
    s_waitcnt lgkmcnt(0)
    s_lshl_b32 s3, s3, 16
    v_mov_b32 v12, s3
    v_mul_f32 v12, 0.15915494, v12
    s_nop 0
    v_readfirstlane_b32 s{sKF}, v12""")
    vm.wait("m")
    k(f"""s_add_u32 s{sM}, s{sWS}, {OFF_MC}
    s_addc_u32 s{sM+1}, s{sWS+1}, 0
    s_mul_i32 s{sT1}, s2, 20000
    s_add_u32 s{sT0}, s{sT1}, 16384
    buffer_store_dwordx4 v[{RB}:{RB+3}], v{vA16}, s[{sM}:{sM+3}], s{sT1} offen
    buffer_store_dwordx4 v[{RB+4}:{RB+7}], v{vA16}, s[{sM}:{sM+3}], s{sT0} offen
    s_nop 0
    v_mov_b32 v12, 0x3f803f80""")
    for i in range(8):
        k(f"v_and_b32 v{RB+i}, 0x7fff7fff, v{RB+i}")
    for i in range(8):
        k(f"v_pk_max_u16 v8, v8, v{RB+i}\nv_dot2c_f32_bf16 v9, v{RB+i}, v12")
    k(f"v_lshrrev_b32 v10, 16, v8\nv_and_b32 v8, 0xffff, v8\nv_max_u32 v8, v8, v10\ns_nop 0")
    scan64(k, 8, "v_max_u32"); scan64(k, 9, "v_add_f32")
    k(f"""s_lshl_b32 s{sT0}, s{sWAVE}, 4
    s_add_u32 s{sT0}, s{sT0}, {SP+64}
    v_mov_b32 v10, s{sT0}
    s_mov_b32 exec_lo, 0
    s_brev_b32 exec_hi, 1
    ds_write_b64 v10, v[8:9]
    s_mov_b64 exec, -1
    s_waitcnt lgkmcnt(0)
    s_barrier
    s_branch L_p1_first""")

    QORD = [13, 6, 7, 0, 8, 1, 9, 2, 10, 3, 11, 4, 12, 5]
    STG = [B[0] + 2*n for n in range(14)]
    if order == 2:
        QORD = [13, 6, 7, 8, 9, 10, 11, 12, 0, 1, 2, 3, 4, 5]
        STG = [B[0] + 2*n for n in range(8)] + [B[5], B[5] + 2, B[6], B[6] + 2, 8, 10]
    def store_quad(q):
        r = Q[q] if q < 13 else XQ
        n = QORD.index(q); d = STG[n]; x = r + 3
        k(f"""s_waitcnt lgkmcnt({13-n})
        v_lshlrev_b32 v{x}, 22, v{d}
        v_lshrrev_b32 v{d}, 16, v{d}
        v_alignbit_b32 v{x}, v{d}, v{x}, 10
        v_alignbit_b32 v{x}, v{d+1}, v{x}, 10
        v_xor_b32 v{x}, 0x80200800, v{x}""")
        if q == 13:
            lab = k.lab("nox"); k(f"s_cmp_lg_u32 s{sWAVE}, 15\ns_cbranch_scc1 {lab}")
        k(f"s_mov_b32 s{sT1}, {q*1024}\nbuffer_store_dwordx4 v[{r}:{r+3}], v{vTR}, s[{sREC}:{sREC+3}], s{sT1} offen {stflag}")
        if q == 13: k(f"{lab}:")

    def transform(g):
        I, O = LAND[g]
        t = TMP[0:4]
        for j in range(4): k(f"v_perm_b32 v{t[j]}, v{O+j}, v{I+j}, s{sPERM}")
        for j in range(4): k(f"v_mul_hi_u32_u24 v{I+j}, {MAGIC_DIV}, v{I+j}\nv_mul_hi_u32_u24 v{O+j}, {MAGIC_DIV}, v{O+j}")
        for j in range(4): k(f"v_lshl_or_b32 v{I+j}, v{O+j}, 16, v{I+j}")
        for j in range(4): k(f"v_dot2_u32_u16 v{O+j}, v{I+j}, s{sKC}, 0")
        for j in range(4): k(f"v_pk_mad_u16 v{t[j]}, v{I+j}, s{sNEG}, v{t[j]}")
        for j in range(4): k(f"ds_add_u32 v{O+j}, v{vONE} offset:{H}")
        k(f"v_perm_b32 v{Pr(4*g+2)}, v{O+3}, v{O+2}, s{sPERM}\nv_perm_b32 v{Pr(4*g)}, v{O+1}, v{O}, s{sPERM}")
        for j in range(4): k(f"v_or_b32 v{Wr(4*g+j)}, 0x40000000, v{t[j]}")

    def cosines(g, t, vq):
        vm.wait(f"a{g}")
        A = Cr(4*g)
        k(f"""v_lshlrev_b32 v{t[0]}, 16, v{A}
        v_lshlrev_b32 v{t[1]}, 16, v{A+1}
        v_and_b32 v{A}, 0xffff0000, v{A}
        v_and_b32 v{A+1}, 0xffff0000, v{A+1}""")
        r = [t[0], A, t[1], A+1]
        for x in r: k(f"v_mul_f32 v{x}, s{sKF}, v{x}")
        for x in r: k(f"v_fract_f32 v{x}, v{x}")
        for x in r: k(f"v_cos_f32 v{x}, v{x}")
        for x in r: k(f"v_fmaak_f32 v{x}, v{vq}, v{x}, {0x4b400000 + 512}")
        if diag is None: k(f"v_or3_b32 v{vNAN}, v{r[0]}, v{r[1]}, v{vNAN}\nv_or3_b32 v{vNAN}, v{r[2]}, v{r[3]}, v{vNAN}")
        k(f"v_perm_b32 v{A}, v{A}, v{t[0]}, s{sPERM}\nv_perm_b32 v{A+1}, v{A+1}, v{t[1]}, s{sPERM}")

    cplan = (cplan or "r10 r11 r13 r14 r16 r17 r19 r21 r24 r27").split()
    def cos_at(site, t, vq, masked=False):
        for g in range(10):
            if cplan[g] == site:
                if g == 9 and not masked: k(M9)
                if g != 9 and masked: k("s_mov_b64 exec, -1")
                cosines(g, t, vq)
                if g == 9 and not masked: k("s_mov_b64 exec, -1")
                if g != 9 and masked: k(M9)

    loop = "L_p1_loop"
    k(f"{loop}:")
    save = list(vm.q)
    if order == 0:
        store_quad(13); store_quad(6)
        for g in range(NPF, 10):
            store_quad(g + 3); store_quad(g - NPF)
            load_idx(g, 0); load_idx(g, 1)
    elif order == 1:
        for q in QORD: store_quad(q)
        for g in range(NPF, 10): load_idx(g, 0); load_idx(g, 1)
    elif order == 2:
        store_quad(13); store_quad(6)
        for g in range(NPF, 10):
            store_quad(g + 3); k("s_nop 0")
            load_idx(g, 0); load_idx(g, 1)
        for q in range(6): store_quad(q)
    elif order == 3:
        store_quad(13); store_quad(6)
        for g in range(NPF, 10):
            store_quad(g + 3); k("s_nop 0"); load_idx(g, 0); store_quad(g - NPF); load_idx(g, 1)
    vm.q = save
    k("s_branch L_p1_join\nL_p1_first:")
    for g in range(NPF, 10):
        load_idx(g, 0); load_idx(g, 1)
    k("L_p1_join:")
    st_(0)
    plan = list(plan.split() if plan else "pre b1 b2 po1 po2 po3 po5 po6 po7 po8 r10 r13 r16 r19 rb1 r22 r25 r28".split())
    pend = [("a", g) for g in range(10)] + [(g, w) for g in range(NPF) for w in range(2)]
    def pf(site):
        while plan and plan[0] == site:
            plan.pop(0)
            a, b = pend.pop(0)
            if a == "a": load_ang(b)
            else: load_idx(a, b, nxt=True)
    for g in range(10):
        vm.wait(f"g{g}")
        if g == 9: k(M9)
        transform(g)
        if g == 9: k("s_mov_b64 exec, -1")
        pf(f"in{g}")
    pf("pre")
    st_(1)
    k(f"""s_and_b32 s{sT0}, s{sCI}, 15
    s_lshl_b32 s{sT0}, s{sT0}, 6
    s_lshr_b32 s{sT1}, s{sCI}, 4
    s_add_u32 s{sT0}, s{sT0}, s{sT1}
    s_lshl_b32 s{sTO}, s{sT0}, 4
    s_mul_i32 s{sT0}, s{sT0}, {CH_BYTES}
    s_add_u32 s{sT0}, s{sT0}, {OFF_REC}
    s_add_u32 s{sREC}, s{sWS}, s{sT0}
    s_addc_u32 s{sREC+1}, s{sWS+1}, 0""")
    k("s_waitcnt lgkmcnt(0)\ns_barrier")
    st_(2)
    k(f"ds_read_b128 v[8:11], v{vA16} offset:{H}")
    pf("b1")
    k(f"""s_lshl_b32 s{sT0}, s{sWAVE}, 2
    s_add_u32 s{sT0}, s{sT0}, {SP}
    v_mov_b32 v7, s{sT0}
    v_and_b32 v14, 15, v0
    v_lshlrev_b32 v14, 2, v14
    v_add_u32 v14, {SP}, v14
    s_waitcnt lgkmcnt(0)""")
    for i in range(4):
        k(f"""v_cmp_eq_u32 s[{sE0+2*i}:{sE0+2*i+1}], 0, v{8+i}
        v_cmp_ge_u32 s[{sE1+2*i}:{sE1+2*i+1}], 1, v{8+i}
        v_max_u32 v12, 2, v{8+i}
        v_lshl_or_b32 v{8+i}, v{8+i}, 16, v12""")
    k(f"""v_add_u32 v9, v8, v9
    v_add_u32 v10, v9, v10
    v_add_u32 v11, v10, v11
    v_mov_b32 v6, v11""")
    scan64(k, 6)
    k(f"""s_mov_b32 exec_lo, 0
    s_brev_b32 exec_hi, 1
    ds_write_b32 v7, v6
    s_mov_b64 exec, -1
    v_sub_u32 v6, v6, v11
    s_or_b64 s[{sNUL}:{sNUL+1}], s[{sE1}:{sE1+1}], s[{sE1+2}:{sE1+3}]
    s_or_b64 vcc, s[{sE1+4}:{sE1+5}], s[{sE1+6}:{sE1+7}]
    s_or_b64 s[{sNUL}:{sNUL+1}], s[{sNUL}:{sNUL+1}], vcc
    s_waitcnt lgkmcnt(0)
    s_barrier
    ds_read_b32 v7, v14""")
    pf("b2")
    k("s_waitcnt lgkmcnt(0)\nv_mov_b32 v15, v7")
    scan16(k, 7)
    k(f"""s_nop 0
    v_readlane_b32 s{sTOTAL}, v7, 15
    v_sub_u32 v7, v7, v15
    s_nop 0
    v_readlane_b32 s{sT0}, v7, s{sWAVE}
    s_and_b32 s{sTOTAL}, s{sTOTAL}, 0xffff
    s_cmp_ge_u32 s{sTOTAL}, {CMAX-1}
    s_cselect_b32 s{sT1}, 16, 0
    s_cselect_b32 s{sTOTAL}, {C}, s{sTOTAL}
    s_cselect_b32 s{sBAD}, 1, s{sBAD}
    s_cselect_b64 s[{sNUL}:{sNUL+1}], 0, s[{sNUL}:{sNUL+1}]
    v_add_u32 v12, s{sT0}, v6
    v_add_u32 v13, v12, v8
    v_add_u32 v14, v12, v9
    v_add_u32 v15, v12, v10
    v_bfe_u32 v12, v12, s{sT1}, 16
    v_bfe_u32 v13, v13, s{sT1}, 16
    v_bfe_u32 v14, v14, s{sT1}, 16
    v_bfe_u32 v15, v15, s{sT1}, 16
    ds_write_b128 v{vA16}, v[12:15] offset:{H}
    ds_write_b128 v{vA16}, v[12:15] offset:{H2}
    v_mov_b32 v6, {H2 + 16384}
    v_mov_b32 v7, s{sTOTAL}
    s_mov_b64 exec, 1
    ds_write_b32 v6, v7
    s_mov_b64 exec, -1
    s_add_u32 s{sT0}, s{sTOTAL}, 2
    s_mul_hi_u32 s{sT0}, s{sT0}, {(2**32 + 2)//3}
    s_lshl_b32 s{sT0}, s{sT0}, 4
    s_min_u32 s{sREC+2}, s{sT0}, {CH_BYTES}
    v_perm_b32 v15, v15, v14, s{sPERM}
    v_perm_b32 v14, v13, v12, s{sPERM}
    s_waitcnt lgkmcnt(0)
    s_barrier""")
    st_(3)
    pf("b3")
    k(f"""v_and_b32 v6, 63, v0
    s_lshl_b32 s{sT0}, s{sWAVE}, 10
    v_lshl_add_u32 v7, v6, 2, s{sT0}
    v_lshl_add_u32 v12, v6, 8, s{sT0}
    ds_read_b32 v8, v7 offset:{H2}
    ds_read_b32 v9, v7 offset:{H2+256}
    ds_read_b32 v10, v7 offset:{H2+512}
    ds_read_b32 v11, v7 offset:{H2+768}
    s_mov_b64 exec, 15
    ds_read_b32 v12, v12 offset:{H2+256}
    s_mov_b64 exec, -1
    s_lshr_b32 s{sT0}, s{sWAVE}, 2
    s_mul_i32 s{sT0}, s{sT0}, {65*TAB_PITCH}
    s_and_b32 s{sT1}, s{sWAVE}, 1
    s_lshl_b32 s{sT1}, s{sT1}, 3
    s_add_u32 s{sT0}, s{sT0}, s{sT1}
    s_and_b32 s{sT1}, s{sWAVE}, 2
    s_lshl_b32 s{sT1}, s{sT1}, 13
    s_add_u32 s{sT0}, s{sT0}, s{sT1}
    s_add_u32 s{sT0}, s{sT0}, s{sTO}
    s_add_u32 s{sT1}, s{sT0}, {64*TAB_PITCH}
    v_mul_u32_u24 v7, {TAB_PITCH}, v6
    {"v_mov_b32 v7, 2.0" if exp == "notab" else ""}
    {"v_mov_b32 v7, v%d" % vA8 if exp == "lintab" else ""}
    {"s_mul_i32 s%d, s%d, 520" % (sT0, sTO) if exp == "lintab" else ""}
    v_lshlrev_b32 v13, 1, v6
    s_waitcnt lgkmcnt(1)
    v_perm_b32 v8, v9, v8, s{sPERM}
    v_perm_b32 v9, v11, v10, s{sPERM}
    buffer_store_dwordx2 v[8:9], v7, s[{sTAB}:{sTAB+3}], s{sT0} offen {tabflag}
    s_waitcnt lgkmcnt(0)
    s_mov_b64 exec, 15
    buffer_store_short v12, v13, s[{sTAB}:{sTAB+3}], s{sT1} offen {tabflag}
    s_mov_b64 exec, -1""")
    vm.issue("tab"); vm.issue("tab")
    def pos_issue(g):
        t = TMP[(g % 2)*4:]
        if g == 9: k(M9)
        for i in range(2): k(f"v_and_b32 v{t[2*i]}, 0xffff, v{Pr(4*g+2*i)}\nv_lshrrev_b32 v{t[2*i+1]}, 16, v{Pr(4*g+2*i)}")
        for i in range(4): k(f"ds_add_rtn_u32 v{t[i]}, v{t[i]}, v{vONE} offset:{H}")
        if g == 9: k("s_mov_b64 exec, -1")
    k("s_nop 0")
    pos_issue(0)
    for g in range(10):
        if g < 9:
            pos_issue(g+1)
            k("s_waitcnt lgkmcnt(4)")
        else:
            k("s_waitcnt lgkmcnt(0)")
        t = TMP[(g % 2)*4:]
        for i in range(2): k(f"v_perm_b32 v{Pr(4*g+2*i)}, v{t[2*i+1]}, v{t[2*i]}, s{sPERM}")
        if f"po{g}" in cplan:
            k(f"v_mov_b32 v{t[2]}, {f2u(float(CQ))}"); cos_at(f"po{g}", t[0:2], t[2])
        pf(f"po{g}")
    st_(4)
    k("s_barrier")
    st_(5)
    lab = k.lab("nonull")
    k(f"""s_lshl_b32 s{sT0}, s{sTOTAL}, 2
    v_mov_b32 v6, s{sT0}
    v_mov_b32 v7, 0
    v_mov_b32 v12, {f2u(float(CQ))}
    s_mov_b64 exec, 1
    ds_write2_b32 v6, v7, v7 offset0:0 offset1:1
    s_cmp_eq_u64 s[{sNUL}:{sNUL+1}], 0
    s_cbranch_scc1 {lab}""")
    for i in range(4):
        k(f"""s_mov_b64 exec, s[{sE1+2*i}:{sE1+2*i+1}]
        v_lshlrev_b32_sdwa v6, 2, v{14+i//2} {SD} src1_sel:WORD_{i & 1}
        ds_write_b32 v6, v7 offset:4
        s_mov_b64 exec, s[{sE0+2*i}:{sE0+2*i+1}]
        ds_write_b32 v6, v7""")
    k(f"{lab}:\ns_mov_b64 exec, -1")
    for g in range(10):
        if g == 9: k(M9)
        for i in range(4): k(f"v_lshlrev_b32_sdwa v{6+i}, 2, v{Pr(4*g+i)} {SD} src1_sel:WORD_{i & 1}")
        for i in range(4): k(f"ds_write_b32 v{6+i}, v{Wr(4*g+i)}")
        cos_at(f"r1{g}", (10, 11), 12, g == 9)
        if g == 9: k("s_mov_b64 exec, -1")
        pf(f"r1{g}")
    k(f"""v_lshrrev_b32 v6, 2, v{vTR}
    v_sub_u32 v6, v{vTR}, v6
    s_waitcnt lgkmcnt(0)
    s_barrier""")
    st_(6)
    lab = k.lab("nox")
    k(f"s_cmp_lg_u32 s{sWAVE}, 15\ns_cbranch_scc1 {lab}")
    for x in range(3): k(f"ds_read_b32 v{XQ+x}, v6 offset:{13*768 + 4*x}")
    k(f"{lab}:")
    for q in range(13):
        for x in range(3): k(f"ds_read_b32 v{Q[q]+x}, v6 offset:{q*768 + 4*x}")
    pf("rb1")
    k(f"""v_mov_b32 v8, 0
    v_mov_b32 v9, 0
    v_mov_b32 v10, 0
    v_mov_b32 v11, 0
    v_mov_b32 v15, 16384
    s_waitcnt lgkmcnt(0)
    s_barrier
    ds_write_b128 v{vA16}, v[8:11] offset:{H}
    s_nop 1""")
    st_(7)
    for g in range(10):
        if f"r2{g}" in cplan:
            k(f"v_mov_b32 v6, {f2u(float(CQ))}"); cos_at(f"r2{g}", (10, 11), 6)
        if g == 9: k(M9)
        for i in range(4): k(f"v_mad_u32_u16 v{6+i}, v{Pr(4*g+i)}, s{sD3}, v15 op_sel:[{i & 1},0,0,0]")
        for i in range(4): k(f"v_add_u32_sdwa v{6+i}, v{6+i}, v{Pr(4*g+i)} dst_sel:DWORD dst_unused:UNUSED_PAD src0_sel:WORD_1 src1_sel:WORD_{i & 1}")
        for i in range(4): k(f"v_add_u32 v{6+i}, v{6+i}, v{6+i}")
        for i in range(4): k(f"ds_write_b16{'_d16_hi' if i & 1 else ''} v{6+i}, v{Cr(4*g+i)} offset:{CA}")
        if g == 9: k("s_mov_b64 exec, -1")
        pf(f"r2{g}")
    k(f"""v_lshrrev_b32 v6, 1, v{vTR}
    s_waitcnt lgkmcnt(0)
    s_barrier""")
    st_(8)
    for n, q in enumerate(QORD): k(f"ds_read_b64 v[{STG[n]}:{STG[n]+1}], v6 offset:{CA + q*512}")
    pf("rb2")
    assert not plan and not pend, (plan, pend)
    k(f"""s_add_u32 s{sCI}, s{sCI}, 256
    s_add_u32 s{sOI}, s{sOI}, {256*C*4}
    s_add_u32 s{sOA}, s{sOA}, {256*C*2}
    s_add_u32 s{sIT}, s{sIT}, 1
    s_cmp_lt_u32 s{sIT}, 4
    s_cbranch_scc1 {loop}""")
    if diag is not None: stamp(k, 56, 80, v=5)
    for q in QORD: store_quad(q)
    if diag is not None:
        stamp(k, 57, 80, v=5); k("s_waitcnt vmcnt(0)"); stamp(k, 58, 80, v=5); stamp(k, 61, 80, v=5, real=True)
        stamp_dump(k, f"s_lshl_b32 s82, s2, 4\ns_or_b32 s82, s82, s{sWAVE}\ns_cmp_eq_u32 s82, {diag}", 84, v=5, vt=6)
        k("v_mov_b32 v5, 0")
    k(f"""v_and_b32 v6, 0x34800000, v{vNAN}
    v_cmp_ne_u32 vcc, 0, v6
    s_lshl_b32 s{sT0}, s{sWAVE}, 4
    s_add_u32 s{sT0}, s{sT0}, {SP+64+8}
    v_mov_b32 v10, s{sT0}
    s_cmp_lg_u64 vcc, 0
    s_cselect_b32 s{sT1}, 1, s{sBAD}
    v_mov_b32 v11, s{sT1}
    ds_write_b32 v10, v11
    s_waitcnt lgkmcnt(0)
    s_barrier
    s_cmp_lg_u32 s{sWAVE}, 0
    s_cbranch_scc1 {end}
    v_and_b32 v6, 15, v0
    v_lshlrev_b32 v6, 4, v6
    v_add_u32 v6, {SP+64}, v6
    ds_read_b128 v[8:11], v6
    s_waitcnt lgkmcnt(0)""")
    scan16(k, 8, "v_max_u32"); scan16(k, 9, "v_add_f32"); scan16(k, 10, "v_or_b32")
    k(f"""s_lshl_b32 s{sT0}, s2, 3
    s_add_u32 s{sT0}, s{sT0}, {TAB_BYTES}
    v_mov_b32 v6, 0
    v_lshl_or_b32 v8, v10, 16, v8
    s_mov_b64 exec, 0x8000
    buffer_store_dwordx2 v[8:9], v6, s[{sTAB}:{sTAB+3}], s{sT0} offen
    s_lshl_b32 s{sT0}, s2, 8
    s_add_u32 s{sT0}, s{sT0}, {OFF_CNT - OFF_TAB}
    buffer_store_dword v6, v6, s[{sTAB}:{sTAB+3}], s{sT0} offen
    {end}:
    s_endpgm""")
    return k


BIAS = 0x4000
NW = 4
CAP = 64 * (NW + 1)


def pass2(force_slow=False, opts=None):
    o = dict(na=2, stamp=0)
    o.update(opts or {})
    k = K("p2_kernel", 256, 1024, LDS_ALL, 128, sgpr=102)
    vm = Cnt(k, "vmcnt", 63); lg = Cnt(k, "lgkmcnt", 15)
    sREC, sM = 4, 8
    sOB, sQ, sWAVE, sT0, sT1, sMAG, sPERM, sTILE, sSCR, sFAIL = 3, 12, 13, 14, 15, 16, 17, 18, 19, 2
    sNB = 20
    sMOFF, sSTR, sIT, sTB, sSO, sWOFF = 22, 23, 24, 25, 26, 27
    sTOT, sTOTC = 28, 51
    sMM = 30
    sK1, sK2 = 40, 41
    sRW = 44
    sUNIT, sJ, sACC, sTOTN = 48, 49, 50, 29
    sWR, sWS_, sWD, sWU = 52, 68, 84, 28
    GH = [72, 112]
    CEN = [53, 54, 56, 57]
    DD = [60, 61]
    vST = 52
    sDI = 100
    SQ = 3.798282560733770
    TILE, SP = 80000, 160000
    MOFF = 160
    RAW = [8 + 4*j for j in range(NW + 1)]
    OS, OE = 28, 36
    RT = 44
    vK3 = 50
    GD = 64
    MP = 88
    TM = list(range(108, 122))
    vA16, vL16, vWA, vCHK, vZ, vSC, vMK = 1, 2, 3, 4, 5, 6, 7
    vWA2, vS2 = 124, 126
    end = "L_p2_end"
    k(f"s_cmp_ge_u32 s2, 256\ns_cbranch_scc1 {end}")
    if o["stamp"]:
        k("v_mov_b32 v127, 0"); stamp(k, 0, 42); stamp(k, 60, 42, real=True)
    k.ldptr(sREC, "ws")
    k.ldptr(sDI, "dist")
    k("""s_load_dwordx2 s[30:31], s[0:1], 40
    s_load_dwordx4 s[32:35], s[0:1], 56
    s_load_dwordx4 s[36:39], s[0:1], 72""")
    k(f"""s_and_b32 s{sT0}, s2, 7
    s_lshr_b32 s{sJ}, s2, 3
    s_and_b32 s{sOB}, s{sT0}, 1
    s_lshl_b32 s{sOB}, s{sOB}, 5
    s_add_u32 s{sOB}, s{sOB}, s{sJ}
    s_lshr_b32 s{sQ}, s{sT0}, 1
    v_lshrrev_b32 v{TM[0]}, 6, v0
    v_lshlrev_b32 v{vA16}, 4, v0
    v_and_b32 v{TM[1]}, 63, v0
    v_readfirstlane_b32 s{sWAVE}, v{TM[0]}
    v_lshlrev_b32 v{TM[3]}, 4, v{TM[1]}
    s_mul_i32 s{sT0}, s{sQ}, 65
    s_add_u32 s{sT0}, s{sT0}, s{sOB}
    s_mul_i32 s{sT0}, s{sT0}, {TAB_PITCH}
    s_add_u32 s{sTB}, s{sT0}, {OFF_TAB}
    s_mul_i32 s{sMOFF}, s{sQ}, {16*R*8}
    s_mov_b32 s{sFAIL}, {1 if force_slow else 0}
    s_waitcnt lgkmcnt(0)""")
    k.srd_finish(sREC, WS_BYTES)
    k(f"s_add_u32 s{sM}, s{sREC}, {OFF_MC}\ns_addc_u32 s{sM+1}, s{sREC+1}, 0")
    k(f"s_add_u32 s{sM+2}, s{sMOFF}, {16*R*8}\ns_mov_b32 s{sM+3}, 0x00020000")
    def tabload(h):
        for i in range(2):
            k(f"s_add_u32 s{sT1}, s{sTB}, {h*16384 + i*TAB_PITCH}\nbuffer_load_dwordx4 v[{OS+8*i+4*h}:{OS+8*i+4*h+3}], v{vA16}, s[{sREC}:{sREC+3}], s{sT1} offen"); vm.issue(f"tab{h}")
    tabload(0)
    k(f"""s_load_dwordx4 s[40:43], s[30:31], 0
    s_load_dwordx16 s[{sWR}:{sWR+15}], s[32:33], 0
    s_load_dwordx16 s[{sWS_}:{sWS_+15}], s[34:35], 0
    s_load_dwordx8 s[{sWD}:{sWD+7}], s[36:37], 0
    s_load_dwordx8 s[92:99], s[38:39], 0""")
    def cnt_add(v, rtn):
        k(f"""s_lshl_b32 s{sT0}, s{sOB}, 8
        s_add_u32 s{sT0}, s{sT0}, {OFF_CNT}
        s_mov_b64 exec, 1
        buffer_atomic_add v{v}, off, s[{sREC}:{sREC+3}], s{sT0} {'sc0' if rtn else ''}
        s_mov_b64 exec, -1""")
    k(f"""v_mov_b32 v{vST}, 0x100
    s_cmp_lg_u32 s{sWAVE}, 0
    s_cbranch_scc1 L_p2_noann""")
    cnt_add(vST, False)
    k("L_p2_noann:")

    mplan = o.get("mplan", ["a9", "a9", "g0", "g1", "a0"])
    def mload(only=None, ahead=False):
        for u in range(5):
            if only is not None and u not in only: continue
            k(f"s_add_u32 s{sT0}, s{sMOFF}, {u*16384 + (R*8 if ahead else 0)}\nbuffer_load_dwordx4 v[{MP+4*u}:{MP+4*u+3}], v{vA16}, s[{sM}:{sM+3}], s{sT0} offen"); vm.issue("m")
    def mwrite(us=range(5)):
        for u in us:
            k(f"ds_write_b128 v{vWA if u < 4 else vWA2}, v[{MP+4*u}:{MP+4*u+3}] offset:{(u & 3)*16384}"); lg.issue("w")
    def dist_loads(sl):
        k(f"""s_lshl2_add_u32 s{sT0}, s{sOB}, s{sl}
        s_mul_i32 s{sT0}, s{sT0}, 5000
        s_add_u32 s{sT1}, s{sT0}, 4096
        v_min_u32 v{DD[1]}, 225, v0
        v_lshl_add_u32 v{DD[0]}, v0, 2, s{sT0}
        v_lshl_add_u32 v{DD[1]}, v{DD[1]}, 2, s{sT1}
        global_load_dword v{DD[0]}, v{DD[0]}, s[{sDI}:{sDI+1}] nt
        global_load_dword v{DD[1]}, v{DD[1]}, s[{sDI}:{sDI+1}] nt""")
    def gates(i):
        T = [14 + 2*r for r in range(8)]
        CA_, Gf, dd, tmp = 36, GH[i], 30, 32
        rnd = o.get("rnd", 1)
        k(f"v_lshlrev_b32 v{dd}, 16, v{DD[i]}\nv_and_b32 v{dd+1}, 0xffff0000, v{DD[i]}")
        if i == 0:
            for x in range(4): k(f"v_lshlrev_b32 v{CA_+2*x}, 16, v{CEN[x]}\nv_and_b32 v{CA_+2*x+1}, 0xffff0000, v{CEN[x]}")
        def rounds():
            if rnd:
                for r in range(8): rnd2(k, T[r], T[r]+1, tmp)
        for r in range(8):
            c0 = CA_ + (r & ~1)
            k(f"v_pk_add_f32 v[{T[r]}:{T[r]+1}], v[{dd}:{dd+1}], v[{c0}:{c0+1}] op_sel:[0,{r & 1}] op_sel_hi:[1,{r & 1}] neg_lo:[0,1] neg_hi:[0,1]")
        rounds()
        for r in range(8): k(f"v_pk_mul_f32 v[{T[r]}:{T[r]+1}], v[{T[r]}:{T[r]+1}], v[{T[r]}:{T[r]+1}]")
        rounds()
        k(f"v_mov_b32 v{dd}, {f2u(10.0 if rnd else SQ*SQ)}\nv_mov_b32 v{dd+1}, 0x3fb8aa3b")
        for r in range(8): k(f"v_pk_mul_f32 v[{T[r]}:{T[r]+1}], v[{T[r]}:{T[r]+1}], v[{dd}:{dd+1}] op_sel:[0,0] op_sel_hi:[1,0]")
        if rnd:
            rounds()
            for r in range(8): k(f"v_pk_mul_f32 v[{T[r]}:{T[r]+1}], v[{T[r]}:{T[r]+1}], v[{dd}:{dd+1}] op_sel:[0,1] op_sel_hi:[1,1]")
        for r in range(8): k(f"v_exp_f32 v{T[r]}, -v{T[r]}\nv_exp_f32 v{T[r]+1}, -v{T[r]+1}")
        for p in range(4):
            for e in range(2): k(f"v_cvt_pk_bf16_f32 v{T[2*p]+e}, v{T[2*p]+e}, v{T[2*p+1]+e}")
        for p in range(4):
            for dst, base in ((Gf, sWS_), (Gf + 8, sWR)):
                for c in range(4):
                    for e in range(2):
                        k(f"v_dot2_f32_bf16 v{dst+2*c+e}, v{T[2*p]+e}, s{base+4*p+c}, {'0' if p == 0 else 'v%d' % (dst+2*c+e)}")
    def gates2():
        lab = k.lab("g1")
        gates(0)
        k(f"s_cmp_ge_u32 s{sWAVE}, 4\ns_cbranch_scc1 {lab}")
        gates(1)
        k(f"{lab}:")
    mload()
    k(f"s_mov_b32 s{sT1}, {OFF_INFO1}")
    for i in range(2):
        k(f"buffer_load_dwordx4 v[{GD+16+4*i}:{GD+19+4*i}], v{TM[3]}, s[{sREC}:{sREC+3}], s{sT1} offen offset:{1024*i}"); vm.issue("info")
    tabload(1)
    STR = CH_BYTES
    k(f"""v_add_u32 v{vL16}, {OFF_REC - CAP*16}, v{TM[3]}
    v_mov_b32 v{vK3}, 21845
    v_add_u32 v{vWA}, {TILE}, v{vA16}
    v_add_u32 v{vWA2}, {TILE + 65536}, v{vA16}
    v_add_u32 v{TM[5]}, 65536, v{vA16}
    v_mov_b32 v{TM[4]}, 0x7f000000
    v_cmp_gt_u32 vcc, 904, v0
    s_mul_i32 s{sSCR}, s{sWAVE}, 240
    s_add_u32 s{sSCR}, s{sSCR}, {SP}
    v_cndmask_b32 v{vWA2}, v{TM[4]}, v{vWA2}, vcc
    v_cndmask_b32 v{TM[5]}, v{TM[4]}, v{TM[5]}, vcc
    v_lshl_add_u32 v{vSC}, v{TM[1]}, 2, s{sSCR}
    v_lshl_add_u32 v{vS2}, v{TM[1]}, 1, s{sSCR}
    v_cmp_gt_u32 vcc, {2*NW + 2}, v{TM[1]}
    s_mul_i32 s{sWOFF}, s{sWAVE}, {64*STR}
    s_mov_b32 s{sSTR}, {STR}
    v_cndmask_b32 v{vSC}, v{TM[4]}, v{vSC}, vcc
    s_mov_b32 s{sRW}, s{sREC}
    s_mov_b32 s{sRW+1}, s{sREC+1}
    s_add_u32 s{sRW+2}, s{sWOFF}, {OFF_REC + 64*CH_BYTES}
    s_mov_b32 s{sRW+3}, 0x00020000
    s_mov_b32 s{sPERM}, 0x05040100
    s_mov_b32 s{sTILE}, {TILE}
    s_and_b32 s{sACC}, s{sOB}, 1
    s_lshl_b32 s{sACC}, s{sACC}, 18
    s_sub_u32 s{sACC}, {(-0x4000*8) & 0xffffffff}, s{sACC}
    s_mov_b32 s{sNB}, {(-(BIAS*0x0001000100010001)) & 0xffffffff}
    s_mov_b32 s{sNB+1}, {((-(BIAS*0x0001000100010001)) >> 32) & 0xffffffff}
    v_mov_b32 v{vCHK}, 0
    v_mov_b32 v{vZ}, 0
    v_mov_b32 v{TM[6]}, {CAP}
    ds_write_b32 v{vSC}, v{vZ} offset:{MOFF}
    ds_write_b16 v{vS2}, v{TM[6]} offset:2""")
    for i in range(6): k(f"v_mov_b32 v{RT+i}, {BIAS*0x10001}")
    for u in range(4): k(f"ds_write_b128 v{vA16}, v[{RT}:{RT+3}] offset:{u*16384}")
    k(f"ds_write_b128 v{TM[5]}, v[{RT}:{RT+3}]")
    k("s_waitcnt lgkmcnt(0)")
    for i in range(4): k(f"v_mov_b32 v{CEN[i]}, s{40+i}")
    k(f"s_mov_b32 s{sK1}, {16384 + (CAP << 16)}\ns_mov_b32 s{sK2}, {16384 + 2*21845 + (CAP << 16)}")
    for base in (sWR, sWS_):
        for p in range(4):
            b = base + 4*p
            k(f"""s_pack_ll_b32_b16 s{sT0}, s{b}, s{b+2}
            s_pack_hh_b32_b16 s{sT1}, s{b}, s{b+2}
            s_pack_ll_b32_b16 s{b+2}, s{b+1}, s{b+3}
            s_pack_hh_b32_b16 s{b+3}, s{b+1}, s{b+3}
            s_mov_b32 s{b}, s{sT0}
            s_mov_b32 s{b+1}, s{sT1}""")
    vm.wait("tab0")

    def setup(half):
        a, b, c, d = TM[0:4]
        k(f"""v_mad_u32_u16 v{a}, v{OS}, v{vK3}, s{sK1} op_sel:[{half},0,0,0]
        v_mad_u32_u16 v{b}, v{OE}, v{vK3}, s{sK2} op_sel:[{half},0,0,0]
        v_sub_u32_sdwa v{c}, v{b}, v{a} dst_sel:DWORD dst_unused:UNUSED_PAD src0_sel:WORD_1 src1_sel:WORD_1
        s_nop 1
        v_add_u32_dpp v{c}, v{c}, v{c} row_shr:1 row_mask:0xf bank_mask:0xf bound_ctrl:0
        s_nop 1
        v_add_u32_dpp v{c}, v{c}, v{c} row_shr:2 row_mask:0xf bank_mask:0xf bound_ctrl:0
        s_nop 1
        v_add_u32_dpp v{c}, v{c}, v{c} row_shr:4 row_mask:0xf bank_mask:0xf bound_ctrl:0
        s_nop 1
        v_add_u32_dpp v{c}, v{c}, v{c} row_shr:8 row_mask:0xf bank_mask:0xf bound_ctrl:0
        s_nop 1
        v_add_u32_dpp v{c}, v{c}, v{c} row_bcast:15 row_mask:0xa bank_mask:0xf
        s_nop 1
        v_add_u32_dpp v{c}, v{c}, v{c} row_bcast:31 row_mask:0xc bank_mask:0xf
        v_sub_u32_sdwa v{b}, v{b}, v{c} dst_sel:DWORD dst_unused:UNUSED_PAD src0_sel:WORD_1 src1_sel:DWORD
        v_readlane_b32 s{sTOTN}, v{c}, 63
        v_add_u32 v{c}, -1, v{c}
        ds_write_b16 v{vS2}, v{b}
        v_lshlrev_b32_e64 v{d}, v{c}, 1
        v_lshrrev_b32 v{c}, 5, v{c}
        v_lshl_add_u32 v{c}, v{c}, 2, s{sSCR}
        s_cmp_gt_u32 s{sTOTN}, {CAP}
        s_cselect_b32 s{sFAIL}, 1, s{sFAIL}
        s_cselect_b64 exec, 0, -1
        ds_or_b32 v{c}, v{d} offset:{MOFF}
        s_mov_b64 exec, -1
        ds_wrxchg_rtn_b32 v{vMK}, v{vSC}, v{vZ} offset:{MOFF}""")
        for t in ("x", "x", "mk"): lg.issue(t)
    def setup2():
        lg.wait("mk")
        for j in range(NW):
            k(f"v_readlane_b32 s{sMM+2*j}, v{vMK}, {2*j}\nv_readlane_b32 s{sMM+2*j+1}, v{vMK}, {2*j+1}")
        k(f"s_mov_b32 s{sTB}, s{sSCR}\ns_mov_b32 s{sSO}, s{sWOFF}\ns_mov_b32 s{sTOTC}, s{sTOT}\ns_mov_b32 s{sTOT}, s{sTOTN}")
    def agen1(j, ta, tb):
        k(f"""v_mbcnt_lo_u32_b32 v{ta}, s{sMM+2*j}, 0
        v_mbcnt_hi_u32_b32 v{ta}, s{sMM+2*j+1}, v{ta}
        s_bcnt1_i32_b64 s{sT0}, s[{sMM+2*j}:{sMM+2*j+1}]
        v_lshl_add_u32 v{tb}, v{ta}, 1, s{sTB}
        ds_read_u16 v{tb}, v{tb}
        v_mad_u32_u24 v{ta}, v{ta}, s{sSTR}, v{vL16}
        s_mov_b32 s{sMM+2*j}, s{sSO}
        s_lshl1_add_u32 s{sTB}, s{sT0}, s{sTB}
        s_mul_i32 s{sT0}, s{sT0}, s{sSTR}
        s_add_u32 s{sSO}, s{sSO}, s{sT0}""")
        lg.issue(f"d{j}")
    def agen2(j, st, ta, tb, track=True):
        r = RAW[j]
        lg.wait(f"d{j}")
        off = 1024*j
        if off > 4095:
            k(f"s_add_u32 s{sMM+2*j}, s{sMM+2*j}, {off}"); off = 0
        k(f"""v_lshl_add_u32 v{ta}, v{tb}, 4, v{ta}
        buffer_load_dwordx4 v[{r}:{r+3}], v{ta}, s[{sRW}:{sRW+3}], s{sMM+2*j} offen offset:{off}""")
        if track: vm.issue(f"r{st}_{j}")
    TA, TB_ = TM[10], TM[11]
    def agen_opt(st):
        assert vm.q[-1] == f"r{st}_{NW-1}"
        lab = k.lab("noopt")
        k(f"s_cmp_le_u32 s{sTOT}, {64*NW}\ns_cbranch_scc1 {lab}")
        j = NW
        k(f"v_readlane_b32 s{sMM+2*j}, v{vMK}, {2*j}\nv_readlane_b32 s{sMM+2*j+1}, v{vMK}, {2*j+1}\ns_nop 1")
        save = list(lg.q)
        agen1(j, TA, TB_); agen2(j, st, TA, TB_, track=False)
        lg.q = save
        k(f"{lab}:")
    def gather(j, g):
        r = RAW[j]
        for x in range(3): k(f"v_mad_u32_u16 v{g+2*x}, v{r+x}, 8, s{sTILE}")
        for x in range(3): k(f"ds_read_b64 v[{g+2*x}:{g+2*x+1}], v{g+2*x}"); lg.issue(f"g{j}")
    def check():
        lg.wait("rt")
        for x in range(3): k(f"v_or3_b32 v{vCHK}, v{RT+2*x}, v{RT+2*x+1}, v{vCHK}")
    def accum(j, g):
        r = RAW[j]
        t = TM
        k(f"""v_bfe_i32 v{t[0]}, v{r+3}, 2, 10
        v_bfe_i32 v{t[1]}, v{r+3}, 12, 10
        v_ashrrev_i32 v{t[2]}, 22, v{r+3}""")
        for x in range(3): k(f"v_cvt_f32_i32 v{t[x]}, v{t[x]}")
        for x in range(3): k(f"v_mad_u32_u16 v{r+x}, v{r+x}, 8, s{sACC} op_sel:[1,0,0,0]")
        lg.wait(f"g{j}")
        for x in range(3):
            a, u = g + 2*x, t[4 + 2*x]
            if o.get("abl") == "valu6":
                k(f"v_mov_b32 v{u}, v{a}\nv_mov_b32 v{u+1}, v{a+1}"); continue
            k(f"""v_lshlrev_b32 v{u}, 16, v{a}
            v_and_b32 v{u+1}, 0xffff0000, v{a}
            v_lshlrev_b32 v{a}, 16, v{a+1}
            v_and_b32 v{a+1}, 0xffff0000, v{a+1}""")
        for x in range(3):
            c = t[x & ~1]; h = x & 1
            for a in (t[4 + 2*x], g + 2*x):
                k(f"v_pk_fma_f32 v[{a}:{a+1}], v[{a}:{a+1}], v[{c}:{c+1}], s[{sMAG}:{sMAG+1}] op_sel:[0,{h},0] op_sel_hi:[1,{h},0]")
        for x in range(3):
            a, u = g + 2*x, t[4 + 2*x]
            k(f"v_perm_b32 v{a+1}, v{a+1}, v{a}, s{sPERM}\nv_perm_b32 v{a}, v{u+1}, v{u}, s{sPERM}")
        for x in range(3): k(f"v_lshl_add_u64 v[{g+2*x}:{g+2*x+1}], v[{g+2*x}:{g+2*x+1}], 0, s[{sNB}:{sNB+1}]")
        check()
        for x in range(3): k(f"ds_add_rtn_u64 v[{RT+2*x}:{RT+2*x+1}], v{r+x}, v[{g+2*x}:{g+2*x+1}]"); lg.issue("rt")
    def optional(st):
        assert lg.q[-1] == "rt" and f"r{st}_{NW-1}" not in vm.q
        lab = k.lab("noopt2")
        k(f"s_cmp_le_u32 s{sTOTC}, {64*NW}\ns_cbranch_scc1 {lab}")
        save = list(lg.q)
        gather(NW, GD); accum(NW, GD)
        lg.q = save
        k(f"{lab}:")

    def rotate():
        for b in (OS, OE):
            for i in range(0, 6, 2): k(f"v_pk_mov_b32 v[{b+i}:{b+i+1}], v[{b+i}:{b+i+1}], v[{b+i+2}:{b+i+3}] op_sel:[1,0]")
            k(f"v_pk_mov_b32 v[{b+6}:{b+7}], v[{b+6}:{b+7}], v[{vCHK}:{vZ}] op_sel:[1,1]")
    setup(0); setup2()
    for j in range(NW): agen1(j, RAW[j], RAW[j]+1)
    for j in range(NW): agen2(j, 0, RAW[j], RAW[j]+1)
    agen_opt(0)
    vm.wait("m")
    mwrite()
    vm.wait("tab1")
    I = GD + 16
    k(f"""v_max3_u32 v64, v{I}, v{I+2}, v{I+4}
    v_add_f32 v65, v{I+1}, v{I+3}
    v_add_f32 v66, v{I+5}, v{I+7}
    v_max_u32 v64, v64, v{I+6}
    v_add_f32 v65, v65, v66
    v_cmp_lt_u32 vcc, 0xffff, v64""")
    scan64(k, 64, "v_max_u32"); scan64(k, 65, "v_add_f32")
    k(f"""s_cmp_lg_u64 vcc, 0
    s_cselect_b32 s{sFAIL}, 1, s{sFAIL}
    v_lshlrev_b32 v64, 16, v64
    v_mul_f32 v66, {f2u(64.0/(4*E))}, v65
    v_mul_f32 v65, {f2u(33.0/(4*E))}, v65
    v_cmp_nle_f32 vcc, v64, v66
    v_max_u32 v64, v64, v65
    s_nop 0
    v_readlane_b32 s{sT0}, v64, 63
    s_bitcmp1_b32 vcc_hi, 31
    s_cselect_b32 s{sFAIL}, 1, s{sFAIL}
    s_lshr_b32 s{sT0}, s{sT0}, 23
    s_add_u32 s{sT0}, s{sT0}, 1
    s_cmp_lt_u32 s{sT0}, 40
    s_cselect_b32 s{sFAIL}, 1, s{sFAIL}
    s_cmp_gt_u32 s{sT0}, 230
    s_cselect_b32 s{sFAIL}, 1, s{sFAIL}
    s_sub_u32 s{sUNIT}, s{sT0}, 14
    s_lshl_b32 s{sUNIT}, s{sUNIT}, 23
    s_add_u32 s{sMAG}, s{sUNIT}, {((23 + 9) << 23) + 0x400000 + BIAS}
    s_or_b32 s{sUNIT}, s{sUNIT}, {f2u(512.0/CQ) & 0x7fffff}
    s_sub_u32 s{sT0}, s{sT0}, 40
    s_cmp_gt_u32 s{sT0}, 190
    s_cselect_b32 s{sUNIT}, 0, s{sUNIT}""")
    lg.wait("w")
    k("s_barrier")
    mload([u for u in range(5) if mplan[u][0] == "a" and int(mplan[u][1]) >= o["na"]], ahead=True)
    setup(1)
    k(f"s_mov_b32 s{sIT}, 0")
    if o.get("prio"):
        for p in (1, 2, 3):
            lab = k.lab("pr")
            k(f"s_cmp_lt_u32 s{sWAVE}, {o['prio'][p-1]}\ns_cbranch_scc1 {lab}\ns_setprio {p}\n{lab}:")
    loop = "L_p2_loop"
    k(f"{loop}:")
    def body():
        for st in (0, 1):
            def st_(n):
                if o["stamp"] == 1 and n == 0:
                    k(f"s_lshl_b32 s{sT0}, s{sIT}, 1\ns_add_u32 s{sT0}, s{sT0}, {1+st}"); stamp(k, f"s{sT0}", 42)
            st_(0)
            k(f"s_add_u32 s{sMOFF}, s{sMOFF}, {R*8}")
            if st == 0:
                k(f"""s_lshl_b32 s{sT0}, s{sWAVE}, 4
                s_or_b32 s{sT0}, s{sT0}, s{sIT}
                s_cmp_lg_u32 s{sT0}, 5
                s_cbranch_scc1 L_p2_nost
                v_mov_b32 v{vST}, 0""")
                cnt_add(vST, True)
                k("L_p2_nost:")
            else:
                k(f"s_cmp_lg_u32 s{sIT}, 7\ns_cbranch_scc1 L_p2_nodist\ns_mov_b32 s{sRW+2}, 0")
                dist_loads(sQ)
                k("L_p2_nodist:")
            na = o["na"]
            gplan = o.get("gplan", [2, 2])
            gq = list(range(NW))
            def gathers(n):
                for _ in range(n):
                    j = gq.pop(0)
                    vm.wait(f"r{st}_{j}")
                    gather(j, GD + 6*j)
                    mload([u for u in range(5) if mplan[u] == f"g{j}"])
            gathers(gplan[0])
            setup2()
            for j in range(NW):
                if j == na:
                    assert not gq
                    optional(st)
                    lg.wait(f"g{NW-1}")
                    k("s_barrier")
                    vm.wait("m")
                if j >= na: mwrite([u for u in range(5) if o.get("wplan", [0]*5)[u] == j - na])
                if 0 < j < len(gplan): gathers(gplan[j])
                agen1(j, TA, TB_)
                accum(j, GD + 6*j)
                agen2(j, 1 - st, TA, TB_)
                if j == NW - 1: agen_opt(1 - st)
                mload([u for u in range(5) if mplan[u] == f"a{j}"], ahead=(j >= na))
            if st == 0: rotate()
            setup(st)
            mload([u for u in range(5) if mplan[u] == "a9"], ahead=True)
            lg.wait("w")
            if st == 1:
                k(f"s_add_u32 s{sIT}, s{sIT}, 1\ns_cmp_lt_u32 s{sIT}, 8")
            k("s_barrier")
    emit_loop(k, [vm, lg], body)
    k(f"s_cbranch_scc1 {loop}")
    if o["stamp"]: stamp(k, 40, 42)
    sOU, sU = 16, 44
    sSL, sTODO, sWORD, sDEL, sSC2 = 49, 51, 20, 21, 27
    vP = [vA16, 2]
    MM = [64, 68]
    PP = [8, 88]
    check()
    k(f"""s_mov_b32 s{sSC2}, s{sSCR}
    s_waitcnt vmcnt(0)
    v_mov_b32 v8, {SP + 232}
    s_cmp_lg_u32 s{sWAVE}, 0
    s_cselect_b64 exec, 0, 1
    ds_write_b32 v8, v{vST}
    s_mov_b64 exec, -1
    v_subrev_u32 v6, {TILE}, v{vWA2}
    s_mul_i32 s{sIT}, s{sQ}, 20000
    v_subrev_u32 v10, s{sIT}, v{vA16}
    v_mov_b32 v11, 0x7f000000
    s_waitcnt vmcnt(0) lgkmcnt(0)
    s_barrier""")
    if o["stamp"]: stamp(k, 41, 14)
    gw = o.get("gw", 4)
    k(f"s_cmp_lt_u32 s{sWAVE}, {gw}\ns_cbranch_scc1 L_p2_ga")
    gates(0)
    k("L_p2_ga:\nds_read_b32 v9, v8")
    for u in range(4): k(f"ds_read_b128 v[{MP+4*u}:{MP+4*u+3}], v{vA16} offset:{u*16384}")
    k(f"""ds_read_b128 v[{MP+16}:{MP+19}], v6
    s_mul_i32 s{sT0}, s{sQ}, {E*8}
    s_mul_i32 s{sT1}, s{sOB}, {R*8}
    s_add_u32 s{sTB}, s{sT0}, s{sT1}
    s_add_u32 s{sTB}, s{sTB}, {OFF_P16}
    s_waitcnt lgkmcnt(5)
    v_readfirstlane_b32 s{sDEL}, v9
    s_nop 0
    s_bfe_u32 s{sDEL}, s{sDEL}, {8 | (8 << 16)}
    s_cmp_lg_u32 s{sDEL}, {99 if o.get('deleg') else 4}
    s_cselect_b32 s{sDEL}, 1, 0
    s_cselect_b32 s{sIT}, 0, 20000""")
    for u in range(5):
        k(f"""v_cmp_le_u32 vcc, s{sIT}, v10
        v_add_u32 v10, 16384, v10
        s_add_u32 s{sT0}, s{sTB}, {u*16384 if u < 4 else 0}
        v_cndmask_b32 v12, v11, v{vA16 if u < 4 else 6}, vcc
        s_waitcnt lgkmcnt({4-u})
        buffer_store_dwordx4 v[{MP+4*u}:{MP+4*u+3}], v12, s[{sREC}:{sREC+3}], s{sT0} offen sc1
        v_or3_b32 v{vCHK}, v{MP+4*u}, v{MP+4*u+1}, v{vCHK}
        v_or3_b32 v{vCHK}, v{MP+4*u+2}, v{MP+4*u+3}, v{vCHK}""")
    if o["stamp"]: stamp(k, 42, 14)
    k(f"s_load_dwordx2 s[{sOU}:{sOU+1}], s[0:1], {KA['out']}\ns_cmp_ge_u32 s{sWAVE}, {gw}\ns_cbranch_scc1 L_p2_gb")
    gates2()
    k(f"""L_p2_gb:
    v_and_b32 v{vCHK}, 0x80008000, v{vCHK}
    v_cmp_ne_u32 vcc, 0, v{vCHK}
    v_mov_b32 v8, s{sSC2}
    v_and_b32 v10, 15, v0
    v_mul_u32_u24 v10, 240, v10
    v_add_u32 v10, {SP}, v10
    s_cmp_lg_u64 vcc, 0
    s_cselect_b32 s{sFAIL}, 1, s{sFAIL}
    v_mov_b32 v9, s{sFAIL}
    s_mov_b64 exec, 1
    ds_write_b32 v8, v9
    s_mov_b64 exec, -1
    v_add_u32 v{vP[1]}, 16384, v{vA16}
    v_mov_b32 v9, 0x3f000000
    v_cmp_gt_u32 vcc, 226, v0
    s_mov_b32 s{sSL}, s{sQ}
    s_mov_b32 s{sTODO}, 0
    v_cndmask_b32 v{vP[1]}, v9, v{vP[1]}, vcc
    s_waitcnt vmcnt(0) lgkmcnt(0)""")
    if o["stamp"]: stamp(k, 43, 14)
    k("s_barrier\nds_read_b32 v9, v10")
    k.srd_finish(sOU, E*8)
    def slice_loads():
        k(f"""s_lshl2_add_u32 s{sT0}, s{sOB}, s{sSL}
        s_mul_i32 s{sSO}, s{sT0}, 20000
        s_add_u32 s{sT1}, s{sSO}, {OFF_MC}""")
        for i in range(2): k(f"buffer_load_dwordx4 v[{MM[i]}:{MM[i]+3}], v{vP[i]}, s[{sREC}:{sREC+3}], s{sT1} offen")
    k(f"""s_waitcnt lgkmcnt(0)
    v_cmp_ne_u32 vcc, 0, v9
    s_nop 1
    s_cmp_lg_u64 vcc, 0
    s_cselect_b32 s{sFAIL}, 1, 0
    s_cbranch_scc1 L_p2_slow
    L_p2_signal:""")
    if o["stamp"]: stamp(k, 44, 14)
    k(f"""v_mov_b32 v8, {SP + 228}
    s_lshl_b32 s{sT1}, s{sFAIL}, 4
    s_or_b32 s{sT1}, s{sT1}, s{sDEL}
    s_add_u32 s{sT0}, s{sQ}, 16
    s_lshl_b32 s{sWORD}, s{sT1}, s{sT0}
    s_add_u32 s{sWORD}, s{sWORD}, 1
    v_mov_b32 v9, s{sWORD}
    s_cmp_lg_u32 s{sWAVE}, 15
    s_cbranch_scc1 L_p2_nosig0""")
    cnt_add(9, True)
    k("L_p2_nosig0:")
    slice_loads()
    for i in range(8): k(f"s_lshl_b32 s{sWU+2*i}, s{92+i}, 16\ns_and_b32 s{sWU+2*i+1}, s{92+i}, 0xffff0000")
    for i in range(7, -1, -1): k(f"s_and_b32 s{sWD+2*i+1}, s{sWD+i}, 0xffff0000\ns_lshl_b32 s{sWD+2*i}, s{sWD+i}, 16")
    k(f"""s_mov_b32 s{sU}, s{sUNIT}
    s_add_u32 s{sU+1}, s{sUNIT}, {0x80000000 + (16 << 23)}
    s_cmp_eq_u32 s{sUNIT}, 0
    s_cselect_b32 s{sU+1}, 0, s{sU+1}
    s_cmp_lg_u32 s{sWAVE}, 15
    s_cbranch_scc1 L_p2_nosig
    s_waitcnt vmcnt(2)
    v_readfirstlane_b32 s{sT1}, v9
    s_lshl_b32 s{sTODO}, 1, s{sQ}
    s_add_u32 s{sWORD}, s{sWORD}, s{sT1}
    s_and_b32 s{sT1}, s{sWORD}, 0xff
    s_cmp_eq_u32 s{sT1}, 4
    s_cbranch_scc0 L_p2_notlast
    s_bfe_u32 s{sT1}, s{sWORD}, {16 | (4 << 16)}
    s_or_b32 s{sTODO}, s{sTODO}, s{sT1}
    s_branch L_p2_pub
    L_p2_notlast:
    s_cmp_lg_u32 s{sDEL}, 0
    s_cselect_b32 s{sTODO}, 0, s{sTODO}
    s_cbranch_scc1 L_p2_pub
    L_p2_poll:
    v_mov_b32 v9, 0""")
    cnt_add(9, True)
    k(f"""s_waitcnt vmcnt(0)
    v_readfirstlane_b32 s{sWORD}, v9
    s_nop 0
    s_and_b32 s{sT1}, s{sWORD}, 0xff
    s_cmp_lt_u32 s{sT1}, 4
    s_cbranch_scc1 L_p2_poll
    L_p2_pub:
    s_lshl_b32 s{sT1}, s{sTODO}, 24
    s_or_b32 s{sT1}, s{sT1}, s{sWORD}
    v_mov_b32 v9, s{sT1}
    s_mov_b64 exec, 1
    ds_write_b32 v8, v9
    s_mov_b64 exec, -1
    s_waitcnt lgkmcnt(0)
    L_p2_nosig:
    s_barrier
    ds_read_b32 v9, v8
    s_waitcnt lgkmcnt(0)
    v_readfirstlane_b32 s{sWORD}, v9
    s_nop 0
    s_lshr_b32 s{sTODO}, s{sWORD}, 24
    s_cbranch_scc0 {end}
    L_p2_fin:""")
    if o["stamp"]: stamp(k, 45, 14)
    k(f"s_mul_i32 s{sIT}, s{sSL}, 20000")
    qoff = lambda i, sz, base: f"""s_add_u32 s{sT0}, s{sQ}, {i}
        s_and_b32 s{sT0}, s{sT0}, 3
        s_mul_i32 s{sT1}, s{sT0}, {E*sz}
        s_add_u32 s{sT1}, s{sT1}, {base}"""
    for i in range(1, 4):
        k(qoff(i, 8, OFF_P16) + f"\ns_add_u32 s{sT1}, s{sT1}, s{sSO}")
        for h in range(2): k(f"buffer_load_dwordx4 v[{PP[h]+4*i}:{PP[h]+4*i+3}], v{vP[h]}, s[{sREC}:{sREC+3}], s{sT1} offen sc1")
    for h in range(2):
        k(f"v_add_u32 v{24+h}, s{sIT}, v{vP[h]}\nds_read_b128 v[{PP[h]}:{PP[h]+3}], v{24+h}")
    assert 4*BIAS == 1 << 16
    if o["stamp"]: stamp(k, 46, 14)
    def finish(h):
        P, S, D = PP[h], 24, PP[h]
        if h == 0:
            k("s_waitcnt vmcnt(0) lgkmcnt(0)")
            if o["stamp"]: stamp(k, 48, 14)
        lab = k.lab("nof32a")
        k(f"s_bfe_u32 s{sT0}, s{sWORD}, {20 | (4 << 16)}\ns_cbranch_scc0 {lab}")
        for i in range(4):
            l2 = k.lab("q")
            k(f"s_add_u32 s{sT0}, s{sQ}, {i}\ns_and_b32 s{sT0}, s{sT0}, 3\ns_add_u32 s{sT0}, s{sT0}, 20\ns_bitcmp1_b32 s{sWORD}, s{sT0}\ns_cbranch_scc0 {l2}")
            for x in range(4): k(f"v_mov_b32 v{P+4*i+x}, {BIAS*0x10001}")
            k(f"{l2}:")
        k(f"{lab}:")
        for x in range(4): k(f"v_pk_add_u16 v{P+x}, v{P+x}, v{P+4+x}\nv_pk_add_u16 v{P+8+x}, v{P+8+x}, v{P+12+x}")
        for j in range(4):
            for e in range(2):
                x = 2*e + j//2
                k(f"v_add_u32_sdwa v{S+2*j+e}, v{P+x}, v{P+8+x} dst_sel:DWORD dst_unused:UNUSED_PAD src0_sel:WORD_{j & 1} src1_sel:WORD_{j & 1}")
        for x in range(8): k(f"v_cvt_f32_u32 v{S+x}, v{S+x}")
        for j in range(4): k(f"v_pk_fma_f32 v[{S+2*j}:{S+2*j+1}], v[{S+2*j}:{S+2*j+1}], s[{sU}:{sU+1}], s[{sU}:{sU+1}] op_sel:[0,0,1] op_sel_hi:[1,0,1]")
        lab = k.lab("nof32b")
        k(f"s_bfe_u32 s{sT0}, s{sWORD}, {20 | (4 << 16)}\ns_cbranch_scc0 {lab}\nv_lshlrev_b32 v32, 1, v{vP[h]}")
        for q in range(4):
            l2 = k.lab("q")
            k(f"""s_bitcmp1_b32 s{sWORD}, {20+q}
            s_cbranch_scc0 {l2}
            s_lshl_b32 s{sT1}, s{sSO}, 1
            s_add_u32 s{sT1}, s{sT1}, {OFF_P32 + q*E*16}
            buffer_load_dwordx4 v[{P}:{P+3}], v32, s[{sREC}:{sREC+3}], s{sT1} offen sc1
            buffer_load_dwordx4 v[{P+4}:{P+7}], v32, s[{sREC}:{sREC+3}], s{sT1} offen offset:16 sc1
            s_waitcnt vmcnt(0)""")
            for j in range(4):
                for e in range(2): k(f"v_add_f32 v{S+2*j+e}, v{S+2*j+e}, v{P+4*e+j}")
            k(f"{l2}:")
        k(f"{lab}:")
        def matvec(dst, src, w):
            for j in range(4):
                for c in range(4):
                    b = w + 4*j + (c & ~1); x = c & 1
                    if j == 0: k(f"v_pk_mul_f32 v[{dst+2*c}:{dst+2*c+1}], v[{src}:{src+1}], s[{b}:{b+1}] op_sel:[0,{x}] op_sel_hi:[1,{x}]")
                    else: k(f"v_pk_fma_f32 v[{dst+2*c}:{dst+2*c+1}], v[{src+2*j}:{src+2*j+1}], s[{b}:{b+1}], v[{dst+2*c}:{dst+2*c+1}] op_sel:[0,{x},0] op_sel_hi:[1,{x},1]")
        matvec(D, S, sWD)
        for c in range(4): k(f"v_pk_mul_f32 v[{D+2*c}:{D+2*c+1}], v[{D+2*c}:{D+2*c+1}], v[{GH[h]+2*c}:{GH[h]+2*c+1}]")
        matvec(S, D, sWU)
        for e in range(2):
            for x in range(2):
                k(f"v_lshlrev_b32 v{D+4*x+e}, 16, v{MM[h]+2*e+x}\nv_and_b32 v{D+4*x+2+e}, 0xffff0000, v{MM[h]+2*e+x}")
        for c in range(4): k(f"v_pk_fma_f32 v[{D+2*c}:{D+2*c+1}], v[{S+2*c}:{S+2*c+1}], v[{GH[h]+8+2*c}:{GH[h]+9+2*c}], v[{D+2*c}:{D+2*c+1}]")
        for e in range(2):
            for x in range(2): k(f"v_cvt_pk_bf16_f32 v{D+8+2*e+x}, v{D+4*x+e}, v{D+4*x+2+e}")
        k(f"buffer_store_dwordx4 v[{D+8}:{D+11}], v{vP[h]}, s[{sOU}:{sOU+3}], s{sSO} offen {o.get('oflag', '')}")
    finish(0)
    k(f"s_cmp_ge_u32 s{sWAVE}, 4\ns_cbranch_scc1 L_p2_f1")
    finish(1)
    k(f"""L_p2_f1:
    s_bitset0_b32 s{sTODO}, s{sSL}
    s_cmp_eq_u32 s{sTODO}, 0
    s_cbranch_scc1 L_p2_done
    s_ff1_i32_b32 s{sSL}, s{sTODO}""")
    dist_loads(sSL)
    k("s_waitcnt vmcnt(0)")
    gates2()
    slice_loads()
    k("s_branch L_p2_fin\nL_p2_done:")
    if o["stamp"]:
        stamp(k, 49, 42); k("s_waitcnt vmcnt(0)"); stamp(k, 58, 42); stamp(k, 61, 42, real=True)
        stamp_dump(k, f"s_lshl_b32 s{sT0}, s{sOB}, 8\ns_lshl_b32 s{sT1}, s{sQ}, 4\ns_or_b32 s{sT0}, s{sT0}, s{sT1}\ns_or_b32 s{sT0}, s{sT0}, s{sWAVE}\ns_cmp_eq_u32 s{sT0}, {(o.get('dob', 5) << 8) | (o.get('dq', 1) << 4) | o.get('dw', 5)}", 52)
    k(f"s_branch {end}\nL_p2_slow:")
    k(f"""s_barrier
    v_mov_b32 v8, 0
    v_mov_b32 v9, 0
    v_mov_b32 v10, 0
    v_mov_b32 v11, 0
    v_mov_b32 v12, v{vA16}""")
    for u in range(10):
        k("ds_write_b128 v12, v[8:11]\nv_add_u32 v12, 16384, v12")
    k(f"""v_lshlrev_b32 v13, 4, v0
    v_mov_b32 v29, 0x7fc00000
    v_add_u32 v28, {TAB_PITCH}, v13
    v_mul_lo_u32 v14, v0, s{sSTR}
    v_add_u32 v14, {OFF_REC}, v14
    s_mul_i32 s{sTB}, s{sQ}, 65
    s_add_u32 s{sTB}, s{sTB}, s{sOB}
    s_mul_i32 s{sTB}, s{sTB}, {TAB_PITCH}
    s_add_u32 s{sTB}, s{sTB}, {OFF_TAB}
    s_lshl_b32 s{sACC}, s{sACC}, 1
    s_mul_i32 s{sMOFF}, s{sQ}, {16*R*8}
    s_mov_b32 s{sIT}, 0
    s_waitcnt lgkmcnt(0)
    s_barrier
    L_p2_sstep:
    buffer_load_ushort v15, v13, s[{sREC}:{sREC+3}], s{sTB} offen
    buffer_load_ushort v16, v28, s[{sREC}:{sREC+3}], s{sTB} offen
    s_waitcnt vmcnt(0)
    L_p2_srec:
    v_cmp_lt_u32 vcc, v15, v16
    s_nop 1
    s_and_b64 exec, exec, vcc
    s_cbranch_execz L_p2_sdone
    v_mul_u32_u24 v17, 43691, v15
    v_lshrrev_b32 v17, 17, v17
    v_mad_i32_i24 v18, v17, -3, v15
    v_lshl_add_u32 v17, v17, 4, v14
    v_lshl_add_u32 v19, v18, 2, v17
    buffer_load_dword v20, v19, s[{sREC}:{sREC+3}], 0 offen
    buffer_load_dword v21, v17, s[{sREC}:{sREC+3}], 0 offen offset:12
    v_add_u32 v15, 1, v15
    v_mad_u32_u24 v18, v18, 10, 2
    s_waitcnt vmcnt(0)
    v_lshlrev_b32_sdwa v19, 3, v20 {SD} src1_sel:WORD_0
    buffer_load_dwordx2 v[22:23], v19, s[{sM}:{sM+3}], s{sMOFF} offen
    v_mad_u32_u16 v20, v20, 16, s{sACC} op_sel:[1,0,0,0]
    v_bfe_i32 v21, v21, v18, 10
    v_cmp_eq_i32 vcc, -512, v21
    v_cvt_f32_i32 v21, v21
    v_mul_f32 v21, {f2u(1.0/CQ)}, v21
    v_cndmask_b32 v21, v21, v29, vcc
    s_waitcnt vmcnt(0)
    v_lshlrev_b32 v24, 16, v22
    v_and_b32 v25, 0xffff0000, v22
    v_lshlrev_b32 v26, 16, v23
    v_and_b32 v27, 0xffff0000, v23
    v_mul_f32 v24, v21, v24
    v_mul_f32 v25, v21, v25
    v_mul_f32 v26, v21, v26
    v_mul_f32 v27, v21, v27
    ds_add_f32 v20, v24
    ds_add_f32 v20, v25 offset:4
    ds_add_f32 v20, v26 offset:8
    ds_add_f32 v20, v27 offset:12
    s_branch L_p2_srec
    L_p2_sdone:
    s_mov_b64 exec, -1
    s_cmp_eq_u32 s{sIT}, 7
    s_cselect_b32 s{sT0}, {16384 - 14}, 2
    s_add_u32 s{sTB}, s{sTB}, s{sT0}
    s_add_u32 s{sMOFF}, s{sMOFF}, {R*8}
    s_add_u32 s{sIT}, s{sIT}, 1
    s_cmp_lt_u32 s{sIT}, 16
    s_cbranch_scc1 L_p2_sstep
    s_waitcnt lgkmcnt(0)
    s_barrier
    s_mul_i32 s{sT0}, s{sQ}, {E*16}
    s_mul_i32 s{sT1}, s{sOB}, {R*16}
    s_add_u32 s{sSO}, s{sT0}, s{sT1}
    s_add_u32 s{sSO}, s{sSO}, {OFF_P32}
    v_mov_b32 v12, v{vA16}
    s_mov_b32 s{sIT}, 0
    L_p2_sout:
    v_cmp_gt_u32 vcc, {R*16}, v12
    ds_read_b128 v[8:11], v12
    s_nop 0
    s_and_b64 exec, exec, vcc
    s_cbranch_execz L_p2_sfin
    s_waitcnt lgkmcnt(0)
    buffer_store_dwordx4 v[8:11], v12, s[{sREC}:{sREC+3}], s{sSO} offen sc1
    s_waitcnt vmcnt(0)
    v_add_u32 v12, 16384, v12
    s_branch L_p2_sout
    L_p2_sfin:
    s_mov_b64 exec, -1
    s_waitcnt vmcnt(0) lgkmcnt(0)
    s_barrier
    s_branch L_p2_signal
    {end}:
    s_endpgm""")
    return k


def rnd2(k, a, b, t):
    k(f"""v_cvt_pk_bf16_f32 v{t}, v{a}, v{b}
    v_lshlrev_b32 v{a}, 16, v{t}
    v_and_b32 v{b}, 0xffff0000, v{t}""")


if __name__ == "__main__":
    if sys.argv[1] == "p2var":
        import json
        for n, oo in json.loads(sys.argv[2]).items():
            o1 = oo.pop("p1", {})
            only1 = oo.pop("only1", 0); tl = oo.pop("tl", 0); o3 = oo.pop("p3", {})
            ks = [pass1(**o1)] if only1 else [pass1(**o1), pass2(opts=oo)]
            if tl: ks = [timeline(x, i) for i, x in enumerate(ks)]
            open(f"p2_{n}.s", "w").write(assemble_file(ks))
    else:
        ks = [pass1(), pass2(force_slow=(len(sys.argv) > 2 and sys.argv[2] == "slow"))]
        open(sys.argv[1], "w").write(assemble_file(ks))
```

```python
import sys
from asmlib import *

C = 40000
NCH = 1024
R = 10000
CMAX = 40064
CQ = 511
NBLK = ((CMAX + 2) // 3 + 63) // 64
TAB_ROW = 4 * 65 * 32
TAB_BYTES = NCH * TAB_ROW
OFF_TAB = 0
OFF_INFO1 = OFF_TAB + TAB_BYTES
OFF_CNT = OFF_INFO1 + 4096
OFF_MC = OFF_CNT + 64 * 256
OFF_REC = 9 << 20
assert OFF_MC <= OFF_REC
OFF_P16 = OFF_REC + (NBLK << 20)
OFF_P32 = OFF_P16 + 4 * E * 8
assert OFF_P32 + 4 * E * 16 <= WS_BYTES
MAGIC_DIV = (2**32 + R - 1) // R
LDS_ALL = 163840
SD = "dst_sel:DWORD dst_unused:UNUSED_PAD src0_sel:DWORD"


import struct
f2u = lambda x: struct.unpack("<I", struct.pack("<f", x))[0]


class Cnt:
    def __init__(self, k, name, mx):
        self.k, self.name, self.mx, self.q = k, name, mx, []
        self.rec, self.forced = [], None
    def issue(self, tag=None):
        self.q.append(tag)
    def wait(self, tag):
        idx = [i for i, t in enumerate(self.q) if t == tag]
        n = min(len(self.q) - 1 - idx[-1], self.mx) if idx else None
        if self.forced is not None:
            f = self.forced[len(self.rec)]
            assert n is None or (f is not None and f <= n)
            n = f
        self.rec.append(n)
        if n is None:
            return
        self.k(f"s_waitcnt {self.name}({n})")
        if len(self.q) > n:
            self.q = self.q[len(self.q) - n:] if n else []


def emit_loop(k, cnts, body):
    n0, lab0 = len(k.L), k.nlab
    entry = [list(c.q) for c in cnts]
    recs = []
    for trial in range(3):
        for c in cnts: c.rec, c.forced = [], None
        k.first = trial == 0
        body()
        recs.append([list(c.rec) for c in cnts])
        del k.L[n0:]; k.nlab = lab0
    last = [list(c.q) for c in cnts]
    for i, c in enumerate(cnts):
        merged = []
        for col in zip(*[r[i] for r in recs]):
            v = [x for x in col if x is not None]
            merged.append(min(v) if v else None)
        c.q, c.rec, c.forced = entry[i], [], merged
    k.first = True
    body()
    for i, c in enumerate(cnts):
        c.forced, c.rec, c.q = None, [], last[i]


def stamp(k, i, sa, v=127, real=False):
    k(f"""s_waitcnt lgkmcnt(0)
    {'s_memrealtime' if real else 's_memtime'} s[{sa}:{sa+1}]
    s_waitcnt lgkmcnt(0)""")
    if isinstance(i, str):
        k(f"s_mov_b32 m0, {i}\nv_writelane_b32 v{v}, s{sa}, m0")
    else:
        k(f"v_writelane_b32 v{v}, s{sa}, {i}")


def stamp_dump(k, cond, sa, v=127, vt=126):
    lab = k.lab("nodump")
    k(cond)
    k(f"""s_cbranch_scc0 {lab}
    s_load_dwordx2 s[{sa}:{sa+1}], s[0:1], 96
    s_waitcnt lgkmcnt(0)
    s_mov_b32 s{sa+2}, 256
    s_mov_b32 s{sa+3}, 0x00020000
    v_and_b32 v{vt}, 63, v0
    v_lshlrev_b32 v{vt}, 2, v{vt}
    buffer_store_dword v{v}, v{vt}, s[{sa}:{sa+3}], 0 offen
    {lab}:""")


def timeline(k, idx):
    first = [i for i, l in enumerate(k.L) if "s_cbranch_scc1" in l][0]
    k.L[first+1:first+1] = ["    s_memrealtime s[98:99]", "    s_lshl_b32 s97, s2, 24", "    s_waitcnt lgkmcnt(0)", "    s_and_b32 s98, s98, 0xffffff", "    s_or_b32 m0, s97, s98"]
    k.L[first] = f"    s_cbranch_scc1 L_tl_{idx}"
    last = len(k.L) - 1
    assert "s_endpgm" in k.L[last]
    nw = k.block // 64
    k.L[last:last] = ["    " + l.strip() for l in f"""s_waitcnt vmcnt(0) lgkmcnt(0)
    s_load_dwordx2 s[4:5], s[0:1], 104
    s_memrealtime s[98:99]
    s_waitcnt lgkmcnt(0)
    s_mov_b32 s6, {WS_BYTES}
    s_mov_b32 s7, 0x00020000
    s_and_b32 s96, m0, 0xffffff
    s_lshr_b32 s97, m0, 24
    s_and_b32 s98, s98, 0xffffff
    s_mov_b64 exec, 1
    v_mov_b32 v2, s96
    v_mov_b32 v3, s98
    v_mov_b32 v4, 0
    s_lshl_b32 s97, s97, 3
    s_add_u32 s97, s97, {610000000 + idx*65536}
    buffer_store_dwordx2 v[2:3], v4, s[4:7], s97 offen""".split("\n")] + [f"L_tl_{idx}:"]
    k.sgpr = 102
    return k


def selftime(k1, k):
    first = [i for i, l in enumerate(k1.L) if "s_cbranch_scc1" in l][0]
    k1.L[first+1:first+1] = ["    " + l.strip() for l in f"""s_cmp_lg_u32 s2, 0
    s_cbranch_scc1 L_st1
    s_memrealtime s[8:9]
    s_load_dwordx2 s[4:5], s[0:1], 104
    s_waitcnt lgkmcnt(0)
    s_mov_b32 s6, {WS_BYTES}
    s_mov_b32 s7, 0x00020000
    s_mov_b32 s10, 620000000
    v_mov_b32 v2, s8
    buffer_store_dword v2, off, s[4:7], s10
    s_waitcnt vmcnt(0)""".split("\n")] + ["L_st1:"]
    first = [i for i, l in enumerate(k.L) if "s_cbranch_scc1" in l][0]
    k.L[first+1:first+1] = ["    s_memrealtime s[98:99]", "    s_memtime s[96:97]", "    s_waitcnt lgkmcnt(0)", "    v_mov_b32 v51, s98", "    v_mov_b32 v55, s96"]
    k.L[first] = "    s_cbranch_scc1 L_st"
    last = len(k.L) - 1
    k.L[last:last] = ["    " + l.strip() for l in """s_waitcnt vmcnt(0) lgkmcnt(0)
    s_mov_b64 exec, 1
    s_mov_b32 s10, 620000000
    buffer_load_dword v5, off, s[4:7], s10
    s_load_dwordx2 s[4:5], s[0:1], 96
    s_memrealtime s[98:99]
    s_memtime s[96:97]
    s_waitcnt lgkmcnt(0) vmcnt(0)
    s_mov_b32 s6, 256
    s_mov_b32 s7, 0x00020000
    v_sub_u32 v2, s98, v5
    v_sub_u32 v3, v51, v5
    v_sub_u32 v4, s96, v55
    s_cmp_lg_u32 s13, 0
    s_cbranch_scc1 L_st
    buffer_atomic_umax v2, off, s[4:7], 0
    buffer_atomic_umax v3, off, s[4:7], 0 offset:4
    buffer_atomic_umax v4, off, s[4:7], 0 offset:8""".split("\n")] + ["L_st:"]


def code_prefetch(k, sp, va, vd, label_from, nbytes):
    lab = k.lab("pc")
    k(f"""s_getpc_b64 s[{sp}:{sp+1}]
    {lab}:
    s_add_u32 s{sp}, s{sp}, {label_from}-{lab}
    s_addc_u32 s{sp+1}, s{sp+1}, 0
    v_lshlrev_b32 v{va}, 7, v0
    v_min_u32 v{va}, {nbytes}, v{va}
    global_load_dword v{vd}, v{va}, s[{sp}:{sp+1}]""")


def scan64(k, v, op="v_add_u32"):
    for sh in (1, 2, 4, 8):
        k(f"s_nop 1\n{op}_dpp v{v}, v{v}, v{v} row_shr:{sh} row_mask:0xf bank_mask:0xf bound_ctrl:0")
    k(f"s_nop 1\n{op}_dpp v{v}, v{v}, v{v} row_bcast:15 row_mask:0xa bank_mask:0xf")
    k(f"s_nop 1\n{op}_dpp v{v}, v{v}, v{v} row_bcast:31 row_mask:0xc bank_mask:0xf")


def scan16(k, v, op="v_add_u32"):
    for sh in (1, 2, 4, 8):
        k(f"s_nop 1\n{op}_dpp v{v}, v{v}, v{v} row_shr:{sh} row_mask:0xf bank_mask:0xf bound_ctrl:0")


def pass1(stflag="sc1", plan=None, diag=None, tabflag="sc1", cplan=None, nearly=0, rb=10, rsw=0, grp=2, contig=0, ibar="", cpf=2, flip=0, pre=5, mpos=0, mcopy=0, ltabat="pe", thr=2, thrf=None, thrs=0, thro=None, thre=None):
    k = K("p1_kernel", 256, 1024, LDS_ALL, 128)
    def st_(n):
        if diag is not None:
            k(f"s_mul_i32 s82, s40, 12\ns_add_u32 s82, s82, {1+n}"); stamp(k, "s82", 80, v=5)
    vm = Cnt(k, "vmcnt", 63)
    sWS, sIN, sOUT, sANG, sREC, sTAB, sM = 4, 8, 12, 16, 20, 24, 28
    sCI, sOI, sOA, sT0, sT1, sNEG, sKC, sWAVE, sIT, sKF, sTO, sPERM = 32, 33, 34, 35, 36, 37, 38, 39, 40, 41, 42, 43
    sM9 = 44
    sNUL, sTOTAL, sBAD = 46, 54, 55
    sF4, sF2, sD3 = 48, 49, 50
    sE0, sE1 = 56, 64
    vA16, vA8, vTR, vONE, vNAN = 1, 2, 3, 4, 5
    TMP = list(range(6, 16))
    NPF = 4
    SLOT = [16 + 8*i for i in range(NPF)]
    RB = 48
    H, H2, CA, SP = 0, 16384, 16384, CMAX*4
    Q = [RB + 4*q for q in range(13)]
    B = [RB + 52 + 4*b for b in range(7)]
    XQ = 12
    wslots = [Q[q] + x for q in range(6) for x in range(3)] + [B[6] + 3] + [Q[q] + x for q in range(6, 13) for x in range(3)]
    pslots = [Q[q] + 3 for q in range(6)] + [B[5] + x for x in range(4)] + [B[6] + x for x in range(3)] + [Q[q] + 3 for q in range(6, 13)]
    Wr = lambda j: wslots[j]
    Pr = lambda j: pslots[j // 2]
    Cr = lambda j: B[0] + j // 2
    LAND = {g: (SLOT[g], SLOT[g] + 4) for g in range(NPF)}
    LAND.update({4: (Q[6], Q[7]), 5: (Q[8], B[0]), 6: (Q[9], B[1]), 7: (Q[10], B[2]), 8: (Q[11], B[3]), 9: (Q[12], B[4])})
    for g in range(10):
        busy = {r + x for h in range(g + 1, 10) for r in LAND[h] for x in range(4)}
        outs = [Wr(4*g + x) for x in range(4)] + [Pr(4*g), Pr(4*g + 2)]
        assert not busy & set(outs) and not {LAND[g][1] + x for x in range(4)} & set(outs[4:])
    M9 = f"s_mov_b64 exec, s[{sM9}:{sM9+1}]"
    end = "L_p1_end"
    k(f"s_cmp_ge_u32 s2, 256\ns_cbranch_scc1 {end}")
    if flip: k(f"s_xor_b32 s2, s2, {flip}")
    k.ldptr(sWS, "ws"); k.ldptr(sIN, "idx_in"); k.ldptr(sOUT, "idx_out"); k.ldptr(sANG, "angle"); k.ldptr(sM, "m")
    k.ldptr(6, "ang_freq")
    if cpf:
        k("v_cmp_gt_u32 vcc, 256, v0\ns_nop 1\ns_cbranch_vccz L_p1_nopf")
        code_prefetch(k, 72, 14, 15, "L_p1_nopf", "L_p2_end-L_p1_nopf" if cpf == 2 else "L_p1_end-L_p1_nopf")
        k("L_p1_nopf:")
    k(f"""v_lshlrev_b32 v{vA16}, 4, v0
    v_lshlrev_b32 v{vA8}, 3, v0
    v_lshrrev_b32 v6, 6, v0
    v_mul_u32_u24 v{vTR}, {13*65536-64}, v6
    v_add_lshl_u32 v{vTR}, v{vTR}, v0, 4
    v_mov_b32 v{vONE}, 1
    v_mov_b32 v{vNAN}, 0
    v_readfirstlane_b32 s{sWAVE}, v6
    v_cmp_gt_u32 vcc, 784, v0
    """)
    def regroup(d, n):
        k(f"""s_and_b32 s{d}, s2, 7
        s_lshl_b32 s{d}, s{d}, {n}
        s_bfe_u32 s{sT0}, s2, {3 | (n << 16)}
        s_add_u32 s{d}, s{d}, s{sT0}
        s_and_b32 s{sT0}, s2, {255 & ~((8 << n) - 1)}
        s_add_u32 s{d}, s{d}, s{sT0}""")
    regroup(51, rsw); regroup(sCI, grp)
    nfull = 784 >> rb; part = 784 - (nfull << rb)
    k(f"""s_lshr_b32 s{sT0}, s{sWAVE}, {rb-6}
    s_mul_i32 s{sT1}, s{sT0}, {255*(16 << rb)}
    s_lshl_b32 s{sOI}, s51, {4+rb}
    s_add_u32 s{sOI}, s{sOI}, s{sT1}
    s_lshr_b32 s{sOA}, s{sOI}, 1
    s_mul_i32 s{sF4}, s51, {((1 << rb) - part)*16}
    s_cmp_ge_u32 s{sT0}, {nfull}
    s_cselect_b32 s{sF4}, s{sF4}, 0
    s_lshr_b32 s{sF2}, s{sF4}, 1
    """)
    if contig:
        k(f"""s_mul_i32 s{sOI}, s51, {C*4*(4 if contig == 2 else 1)}
        s_lshr_b32 s{sOA}, s{sOI}, 1
        s_mov_b32 s{sF4}, 0
        s_mov_b32 s{sF2}, 0""")
    GS = 1 if contig else 256
    RS = 1 if contig == 2 else 256
    k(f"""
    s_mov_b64 s[{sM9}:{sM9+1}], vcc
    s_waitcnt lgkmcnt(0)
    s_load_dword s3, s[6:7], 0""")
    k.srd_finish(sIN, T*4); k.srd_finish(sOUT, T*4); k.srd_finish(sANG, T*2)
    if contig == 2: k(f"s_add_u32 s{sIN+2}, s{sOI}, {C*16}\ns_mov_b32 s{sOUT+2}, s{sIN+2}")
    if diag is not None:
        stamp(k, 0, 80, v=5); stamp(k, 60, 80, v=5, real=True)

    def load_idx(g, which, nxt=False):
        srd = (sIN, sOUT)[which]; d = LAND[g][which]
        k(f"s_add_u32 s{sT0}, s{sOI}, {g*16384*GS + (RS*C*4 if nxt else 0)}")
        a = vA16
        if g == 9:
            a = d
            k(f"s_sub_u32 s{sT0}, s{sT0}, s{sF4}\nv_cndmask_b32 v{a}, 2.0, v{vA16}, s[{sM9}:{sM9+1}]")
        k(f"buffer_load_dwordx4 v[{d}:{d+3}], v{a}, s[{srd}:{srd+3}], s{sT0} offen nt"); vm.issue(f"g{g}")
    def load_ang(g):
        d = Cr(4*g)
        k(f"s_add_u32 s{sT0}, s{sOA}, {g*8192*GS}")
        a = vA8
        if g == 9:
            a = d
            k(f"s_sub_u32 s{sT0}, s{sT0}, s{sF2}\nv_cndmask_b32 v{a}, 2.0, v{vA8}, s[{sM9}:{sM9+1}]")
        k(f"buffer_load_dwordx2 v[{d}:{d+1}], v{a}, s[{sANG}:{sANG+3}], s{sT0} offen nt"); vm.issue(f"a{g}")

    for g in range(pre + 1):
        if g == mpos:
            k(f"""s_mul_i32 s{sT1}, s2, 20000
            s_add_u32 s{sM+2}, s{sT1}, 20000
            s_mov_b32 s{sM+3}, 0x00020000
            s_add_u32 s{sT0}, s{sT1}, 16384
            buffer_load_dwordx4 v[{RB}:{RB+3}], v{vA16}, s[{sM}:{sM+3}], s{sT1} offen {"nt" if mcopy else ""}
            buffer_load_dwordx4 v[{RB+4}:{RB+7}], v{vA16}, s[{sM}:{sM+3}], s{sT0} offen {"nt" if mcopy else ""}""")
            vm.issue("m"); vm.issue("m")
        if g < pre: load_idx(g, 0); load_idx(g, 1)
    k(f"""s_mov_b32 s{sREC}, s{sWS}
    s_mov_b32 s{sREC+1}, s{sWS+1}
    s_mov_b32 s{sREC+2}, 0
    s_mov_b32 s{sREC+3}, 0x00020000
    s_add_u32 s{sTAB}, s{sWS}, {OFF_TAB}
    s_addc_u32 s{sTAB+1}, s{sWS+1}, 0
    s_mov_b32 s{sTAB+2}, {OFF_MC - OFF_TAB}
    s_mov_b32 s{sTAB+3}, 0x00020000
    s_mov_b32 s{sNEG}, {((-R) & 0xffff) | ((0x8000 - R) << 16)}
    s_mov_b32 s{sBAD}, 0
    s_mov_b32 s{sD3}, 21845
    s_mov_b32 s{sKC}, {256 | (4 << 16)}
    s_mov_b32 s{sPERM}, 0x05040100
    s_mov_b32 s{sIT}, 0
    v_mov_b32 v8, 0
    v_mov_b32 v9, 0
    v_mov_b32 v10, 0
    v_mov_b32 v11, 0
    ds_write_b128 v{vA16}, v[8:11] offset:{H}
    s_waitcnt lgkmcnt(0)
    s_lshl_b32 s3, s3, 16
    v_mov_b32 v12, s3
    v_mul_f32 v12, 0.15915494, v12
    s_nop 0
    v_readfirstlane_b32 s{sKF}, v12""")
    vm.wait("m")
    if mcopy:
        k(f"""s_add_u32 s{sM}, s{sWS}, {OFF_MC}
        s_addc_u32 s{sM+1}, s{sWS+1}, 0
        s_mul_i32 s{sT1}, s2, 20000
        s_add_u32 s{sT0}, s{sT1}, 16384
        buffer_store_dwordx4 v[{RB}:{RB+3}], v{vA16}, s[{sM}:{sM+3}], s{sT1} offen
        buffer_store_dwordx4 v[{RB+4}:{RB+7}], v{vA16}, s[{sM}:{sM+3}], s{sT0} offen
        s_nop 0""")
        vm.issue("mc"); vm.issue("mc")
    k("v_mov_b32 v12, 0x3f803f80")
    for i in range(8):
        k(f"v_and_b32 v{RB+i}, 0x7fff7fff, v{RB+i}")
    for i in range(8):
        k(f"v_pk_max_u16 v8, v8, v{RB+i}\nv_dot2c_f32_bf16 v9, v{RB+i}, v12")
    k(f"v_lshrrev_b32 v10, 16, v8\nv_and_b32 v8, 0xffff, v8\nv_max_u32 v8, v8, v10\ns_nop 0")
    scan64(k, 8, "v_max_u32"); scan64(k, 9, "v_add_f32")
    k(f"""s_lshl_b32 s{sT0}, s{sWAVE}, 4
    s_add_u32 s{sT0}, s{sT0}, {SP+64}
    v_mov_b32 v10, s{sT0}
    s_mov_b32 exec_lo, 0
    s_brev_b32 exec_hi, 1
    ds_write_b64 v10, v[8:9]
    s_mov_b64 exec, -1""")
    k("""s_waitcnt lgkmcnt(0)
    s_barrier
    s_branch L_p1_first""")

    QORD = [13, 6, 7, 0, 8, 1, 9, 2, 10, 3, 11, 4, 12, 5]
    STG = [B[nearly] + 2*n for n in range(14 - 2*nearly)] + [8, 10]
    NST = min(14, len(STG))
    STG = STG[:NST] + STG[NST-4:NST][:14-NST] if NST < 14 else STG[:14]
    PN = lambda q: (QORD.index(q) - 1) % 14
    def cread(n):
        pn = PN(QORD[n])
        k(f"ds_read_b64 v[{STG[n]}:{STG[n]+1}], v6 offset:{CA + pn*512}")
    def store_quad(q):
        r = Q[q] if q < 13 else XQ
        n = QORD.index(q); d = STG[n]; x = r + 3
        issued = NST + len([m for m in range(NST, 14) if STG.index(STG[m]) < n])
        k(f"""s_waitcnt lgkmcnt({issued-1-n})
        v_lshlrev_b32 v{x}, 22, v{d}
        v_lshrrev_b32 v{d}, 16, v{d}
        v_alignbit_b32 v{x}, v{d}, v{x}, 10
        v_alignbit_b32 v{x}, v{d+1}, v{x}, 10
        v_xor_b32 v{x}, 0x80200800, v{x}""")
        for m in range(NST, 14):
            if STG.index(STG[m]) == n: cread(m)
        if q == 13:
            lab = k.lab("nox"); k(f"s_cmp_lg_u32 s{sWAVE}, 15\ns_cbranch_scc1 {lab}")
        k(f"s_mov_b32 s{sT1}, {PN(q) << 20}\nbuffer_store_dwordx4 v[{r}:{r+3}], v{vTR}, s[{sREC}:{sREC+3}], s{sT1} offen {stflag}")
        if q == 13: k(f"{lab}:")

    def transform(g):
        I, O = LAND[g]
        t = TMP[0:4]
        for j in range(4): k(f"v_perm_b32 v{t[j]}, v{O+j}, v{I+j}, s{sPERM}")
        for j in range(4): k(f"v_mul_hi_u32_u24 v{I+j}, {MAGIC_DIV}, v{I+j}\nv_mul_hi_u32_u24 v{O+j}, {MAGIC_DIV}, v{O+j}")
        for j in range(4): k(f"v_lshl_or_b32 v{I+j}, v{O+j}, 16, v{I+j}")
        for j in range(4): k(f"v_dot2_u32_u16 v{O+j}, v{I+j}, s{sKC}, 0")
        for j in range(4): k(f"v_pk_mad_u16 v{t[j]}, v{I+j}, s{sNEG}, v{t[j]}")
        for j in range(4): k(f"ds_add_u32 v{O+j}, v{vONE} offset:{H}")
        k(f"v_perm_b32 v{Pr(4*g+2)}, v{O+3}, v{O+2}, s{sPERM}\nv_perm_b32 v{Pr(4*g)}, v{O+1}, v{O}, s{sPERM}")
        for j in range(4): k(f"v_or_b32 v{Wr(4*g+j)}, 0x40000000, v{t[j]}")

    def cosines(g, t, vq):
        vm.wait(f"a{g}")
        A = Cr(4*g)
        k(f"""v_lshlrev_b32 v{t[0]}, 16, v{A}
        v_lshlrev_b32 v{t[1]}, 16, v{A+1}
        v_and_b32 v{A}, 0xffff0000, v{A}
        v_and_b32 v{A+1}, 0xffff0000, v{A+1}""")
        r = [t[0], A, t[1], A+1]
        for x in r: k(f"v_mul_f32 v{x}, s{sKF}, v{x}")
        for x in r: k(f"v_fract_f32 v{x}, v{x}")
        for x in r: k(f"v_cos_f32 v{x}, v{x}")
        for x in r: k(f"v_fmaak_f32 v{x}, v{vq}, v{x}, {0x4b400000 + 512}")
        if diag is None: k(f"v_or3_b32 v{vNAN}, v{r[0]}, v{r[1]}, v{vNAN}\nv_or3_b32 v{vNAN}, v{r[2]}, v{r[3]}, v{vNAN}")
        k(f"v_perm_b32 v{A}, v{A}, v{t[0]}, s{sPERM}\nv_perm_b32 v{A+1}, v{A+1}, v{t[1]}, s{sPERM}")

    cplan = (cplan or "r10 r11 r13 r14 r16 r17 r19 r21 r24 r27").split()
    def cos_at(site, t, vq, masked=False):
        for g in range(10):
            if cplan[g] == site:
                if g == 9 and not masked: k(M9)
                if g != 9 and masked: k("s_mov_b64 exec, -1")
                cosines(g, t, vq)
                if g == 9 and not masked: k("s_mov_b64 exec, -1")
                if g != 9 and masked: k(M9)

    loop = "L_p1_loop"
    k(f"{loop}:")
    plan0 = plan
    def body():
        save = list(vm.q)
        late = list(range(NST, 14))
        def throttle(n):
            if n is None: return
            lab = k.lab("thr")
            k(f"s_cbranch_vccz {lab}\ns_waitcnt vmcnt({n})\n{lab}:")
            if thro is not None: k(f"s_waitcnt vmcnt({thro})")
        def sq(q):
            store_quad(q)
            if q != 13: vm.issue("st")
            if thrs: throttle(thr)
        if thr is not None: k("s_getreg_b32 s51, hwreg(HW_REG_XCC_ID, 0, 1)\ns_cmp_eq_u32 s51, 0\ns_cselect_b64 vcc, -1, 0")
        sq(13); sq(6)
        for g in range(NPF, 10):
            sq(g + 3); sq(g - NPF)
            load_idx(g, 0)
            if thrs: throttle(thr)
            if g - 5 not in range(nearly): load_idx(g, 1)
            throttle(thr)
            if str(g) in ibar: k("s_barrier")
        if k.first: vm.q = save
        else: save = list(vm.q)
        k("s_branch L_p1_join\nL_p1_first:")
        if thrf is not None: k("s_getreg_b32 s51, hwreg(HW_REG_XCC_ID, 0, 1)\ns_cmp_eq_u32 s51, 0\ns_cselect_b64 vcc, -1, 0")
        for g in range(pre, 10):
            load_idx(g, 0); throttle(thrf); load_idx(g, 1); throttle(thrf)
            if str(g) in ibar: k("s_barrier")
        if not k.first: vm.q = save
        k("L_p1_join:")
        st_(0)
        plan = list(plan0.split() if plan0 else "pre b1 b2 po1 po2 po3 po5 po6 po7 po8 r10 r13 r16 r19 rb1 r22 r25 r28".split())
        pend = [("a", g) for g in range(10)] + [(g, w) for g in range(NPF) for w in range(2)] + [(5 + x, 1) for x in range(nearly)]
        def pf(site):
            while plan and plan[0] == site:
                plan.pop(0)
                a, b = pend.pop(0)
                if a == "a": load_ang(b)
                else:
                    assert a < NPF or site == "rb2" or (site[:2] == "r2" and int(site[2]) >= 2*(a - 5) + 1), site
                    load_idx(a, b, nxt=True)
        for g in range(10):
            vm.wait(f"g{g}")
            if g == 9: k(M9)
            transform(g)
            if g == 9: k("s_mov_b64 exec, -1")
            pf(f"in{g}")
        pf("pre")
        st_(1)
        k(f"""s_lshl_b32 s{sT0}, s{sCI}, 10
        s_add_u32 s{sT0}, s{sT0}, {OFF_REC}
        s_add_u32 s{sREC}, s{sWS}, s{sT0}
        s_addc_u32 s{sREC+1}, s{sWS+1}, 0""")
        k("s_waitcnt lgkmcnt(0)\ns_barrier")
        st_(2)
        k(f"ds_read_b128 v[8:11], v{vA16} offset:{H}")
        pf("b1")
        k(f"""s_lshl_b32 s{sT0}, s{sWAVE}, 2
        s_add_u32 s{sT0}, s{sT0}, {SP}
        v_mov_b32 v7, s{sT0}
        v_and_b32 v14, 15, v0
        v_lshlrev_b32 v14, 2, v14
        v_add_u32 v14, {SP}, v14
        s_waitcnt lgkmcnt(0)""")
        for i in range(4):
            k(f"""v_cmp_eq_u32 s[{sE0+2*i}:{sE0+2*i+1}], 0, v{8+i}
            v_cmp_ge_u32 s[{sE1+2*i}:{sE1+2*i+1}], 1, v{8+i}
            v_max_u32 v12, 2, v{8+i}
            v_lshl_or_b32 v{8+i}, v{8+i}, 16, v12""")
        k(f"""v_add_u32 v9, v8, v9
        v_add_u32 v10, v9, v10
        v_add_u32 v11, v10, v11
        v_mov_b32 v6, v11""")
        scan64(k, 6)
        k(f"""s_mov_b32 exec_lo, 0
        s_brev_b32 exec_hi, 1
        ds_write_b32 v7, v6
        s_mov_b64 exec, -1
        v_sub_u32 v6, v6, v11
        s_or_b64 s[{sNUL}:{sNUL+1}], s[{sE1}:{sE1+1}], s[{sE1+2}:{sE1+3}]
        s_or_b64 vcc, s[{sE1+4}:{sE1+5}], s[{sE1+6}:{sE1+7}]
        s_or_b64 s[{sNUL}:{sNUL+1}], s[{sNUL}:{sNUL+1}], vcc
        s_waitcnt lgkmcnt(0)
        s_barrier
        ds_read_b32 v7, v14""")
        pf("b2")
        k("s_waitcnt lgkmcnt(0)\nv_mov_b32 v15, v7")
        scan16(k, 7)
        k(f"""s_nop 0
        v_readlane_b32 s{sTOTAL}, v7, 15
        v_sub_u32 v7, v7, v15
        s_nop 0
        v_readlane_b32 s{sT0}, v7, s{sWAVE}
        s_and_b32 s{sTOTAL}, s{sTOTAL}, 0xffff
        s_cmp_ge_u32 s{sTOTAL}, {CMAX-1}
        s_cselect_b32 s{sT1}, 16, 0
        s_cselect_b32 s{sTOTAL}, {C}, s{sTOTAL}
        s_cselect_b32 s{sBAD}, 1, s{sBAD}
        s_cselect_b64 s[{sNUL}:{sNUL+1}], 0, s[{sNUL}:{sNUL+1}]
        v_add_u32 v12, s{sT0}, v6
        v_add_u32 v13, v12, v8
        v_add_u32 v14, v12, v9
        v_add_u32 v15, v12, v10
        v_bfe_u32 v12, v12, s{sT1}, 16
        v_bfe_u32 v13, v13, s{sT1}, 16
        v_bfe_u32 v14, v14, s{sT1}, 16
        v_bfe_u32 v15, v15, s{sT1}, 16
        ds_write_b128 v{vA16}, v[12:15] offset:{H}
        ds_write_b128 v{vA16}, v[12:15] offset:{H2}
        v_mov_b32 v6, {H2 + 16384}
        v_mov_b32 v7, s{sTOTAL}
        s_mov_b64 exec, 1
        ds_write_b32 v6, v7
        s_mov_b64 exec, -1
        s_add_u32 s{sT0}, s{sTOTAL}, 2
        s_mul_hi_u32 s{sT0}, s{sT0}, {(2**32 + 2)//3}
        s_lshl_b32 s{sT0}, s{sT0}, 4
        s_add_u32 s{sT0}, s{sT0}, {(13 << 24) - 13*16384}
        s_min_u32 s{sREC+2}, s{sT0}, {(13 << 24) + 1024}
        v_perm_b32 v15, v15, v14, s{sPERM}
        v_perm_b32 v14, v13, v12, s{sPERM}
        s_waitcnt lgkmcnt(0)
        s_barrier""")
        st_(3)
        pf("b3")
        def lin_table():
            lab = k.lab("notab")
            k(f"""s_cmp_gt_u32 s{sWAVE}, 8
            s_cbranch_scc1 {lab}
            v_lshrrev_b32 v6, 1, v0
            v_mul_u32_u24 v7, 1009, v6
            v_lshrrev_b32 v7, 16, v7
            v_mul_u32_u24 v7, {1024 - 65}, v7
            v_and_b32 v8, 1, v0
            v_lshl_add_u32 v7, v8, 9, v7
            v_add_lshl_u32 v13, v7, v6, 2""")
            for x in range(4): k(f"ds_read2st64_b32 v[{6+2*x}:{7+2*x}], v13 offset0:{H2//256 + 2*x} offset1:{H2//256 + 2*x + 1}")
            k(f"s_mul_i32 s{sT0}, s{sCI}, {TAB_ROW}\ns_add_u32 s{sTAB+2}, s{sT0}, {TAB_ROW}")
            for x in range(4): k(f"s_waitcnt lgkmcnt({3-x})\nv_perm_b32 v{6+x}, v{7+2*x}, v{6+2*x}, s{sPERM}")
            k(f"buffer_store_dwordx4 v[6:9], v{vA16}, s[{sTAB}:{sTAB+3}], s{sT0} offen {tabflag}\ns_nop 1\n{lab}:")
        if ltabat == "b3": lin_table()
        def pos_issue(g):
            t = TMP[(g % 2)*4:]
            if g == 9: k(M9)
            for i in range(2): k(f"v_and_b32 v{t[2*i]}, 0xffff, v{Pr(4*g+2*i)}\nv_lshrrev_b32 v{t[2*i+1]}, 16, v{Pr(4*g+2*i)}")
            for i in range(4): k(f"ds_add_rtn_u32 v{t[i]}, v{t[i]}, v{vONE} offset:{H}")
            if g == 9: k("s_mov_b64 exec, -1")
        k("s_nop 0")
        pos_issue(0)
        for g in range(10):
            if g < 9:
                pos_issue(g+1)
                k("s_waitcnt lgkmcnt(4)")
            else:
                k("s_waitcnt lgkmcnt(0)")
            t = TMP[(g % 2)*4:]
            for i in range(2): k(f"v_perm_b32 v{Pr(4*g+2*i)}, v{t[2*i+1]}, v{t[2*i]}, s{sPERM}")
            if f"po{g}" in cplan:
                k(f"v_mov_b32 v{t[2]}, {f2u(float(CQ))}"); cos_at(f"po{g}", t[0:2], t[2])
            pf(f"po{g}")
        if ltabat == "pe": lin_table()
        st_(4)
        k("s_barrier")
        st_(5)
        lab = k.lab("nonull")
        k(f"""s_lshl_b32 s{sT0}, s{sTOTAL}, 2
        v_mov_b32 v6, s{sT0}
        v_mov_b32 v7, 0
        v_mov_b32 v12, {f2u(float(CQ))}
        s_mov_b64 exec, 1
        ds_write2_b32 v6, v7, v7 offset0:0 offset1:1
        s_cmp_eq_u64 s[{sNUL}:{sNUL+1}], 0
        s_cbranch_scc1 {lab}""")
        for i in range(4):
            k(f"""s_mov_b64 exec, s[{sE1+2*i}:{sE1+2*i+1}]
            v_lshlrev_b32_sdwa v6, 2, v{14+i//2} {SD} src1_sel:WORD_{i & 1}
            ds_write_b32 v6, v7 offset:4
            s_mov_b64 exec, s[{sE0+2*i}:{sE0+2*i+1}]
            ds_write_b32 v6, v7""")
        k(f"{lab}:\ns_mov_b64 exec, -1")
        for g in range(10):
            if g == 9: k(M9)
            for i in range(4): k(f"v_lshlrev_b32_sdwa v{6+i}, 2, v{Pr(4*g+i)} {SD} src1_sel:WORD_{i & 1}")
            for i in range(4): k(f"ds_write_b32 v{6+i}, v{Wr(4*g+i)}")
            cos_at(f"r1{g}", (10, 11), 12, g == 9)
            if g == 9: k("s_mov_b64 exec, -1")
            pf(f"r1{g}")
        k(f"""s_mul_i32 s{sT0}, s{sWAVE}, {(832-64)*12}
        v_mad_u32_u24 v6, v0, 12, s{sT0}
        s_waitcnt lgkmcnt(0)
        s_barrier""")
        st_(6)
        lab = k.lab("nox")
        k(f"s_cmp_lg_u32 s{sWAVE}, 15\ns_cbranch_scc1 {lab}")
        for x in range(3): k(f"ds_read_b32 v{XQ+x}, v6 offset:{13*768 + 4*x}")
        k(f"{lab}:")
        for q in range(13):
            for x in range(3): k(f"ds_read_b32 v{Q[q]+x}, v6 offset:{PN(q)*768 + 4*x}")
        pf("rb1")
        k(f"""v_mov_b32 v8, 0
        v_mov_b32 v9, 0
        v_mov_b32 v10, 0
        v_mov_b32 v11, 0
        v_mov_b32 v15, 16384
        s_waitcnt lgkmcnt(0)
        s_barrier
        ds_write_b128 v{vA16}, v[8:11] offset:{H}
        s_nop 1""")
        st_(7)
        for g in range(10):
            if f"r2{g}" in cplan:
                k(f"v_mov_b32 v6, {f2u(float(CQ))}"); cos_at(f"r2{g}", (10, 11), 6)
            if g == 9: k(M9)
            for i in range(4): k(f"v_mad_u32_u16 v{6+i}, v{Pr(4*g+i)}, s{sD3}, v15 op_sel:[{i & 1},0,0,0]")
            for i in range(4): k(f"v_add_u32_sdwa v{6+i}, v{6+i}, v{Pr(4*g+i)} dst_sel:DWORD dst_unused:UNUSED_PAD src0_sel:WORD_1 src1_sel:WORD_{i & 1}")
            for i in range(4): k(f"v_add_u32 v{6+i}, v{6+i}, v{6+i}")
            for i in range(4): k(f"ds_write_b16{'_d16_hi' if i & 1 else ''} v{6+i}, v{Cr(4*g+i)} offset:{CA}")
            if g == 9: k("s_mov_b64 exec, -1")
            pf(f"r2{g}")
        k(f"""s_mul_i32 s{sT0}, s{sWAVE}, {(832-64)*8}
        v_add_u32 v6, s{sT0}, v{vA8}
        s_waitcnt lgkmcnt(0)
        s_barrier""")
        st_(8)
        for n in range(NST): cread(n)
        pf("rb2")
        assert not plan and not pend, (plan, pend)
    emit_loop(k, [vm], body)
    k(f"""s_add_u32 s{sCI}, s{sCI}, 256
    s_add_u32 s{sOI}, s{sOI}, {RS*C*4}
    s_add_u32 s{sOA}, s{sOA}, {RS*C*2}
    s_add_u32 s{sIT}, s{sIT}, 1
    s_cmp_lt_u32 s{sIT}, 4
    s_cbranch_scc1 {loop}""")
    if diag is not None: stamp(k, 56, 80, v=5)
    for q in QORD:
        store_quad(q)
        if thre is not None: k(f"s_waitcnt vmcnt({thre})")
    if diag is not None:
        stamp(k, 57, 80, v=5); k("s_waitcnt vmcnt(0)"); stamp(k, 58, 80, v=5); stamp(k, 61, 80, v=5, real=True)
        stamp_dump(k, f"s_lshl_b32 s82, s2, 4\ns_or_b32 s82, s82, s{sWAVE}\ns_cmp_eq_u32 s82, {diag}", 84, v=5, vt=6)
        k("v_mov_b32 v5, 0")
    k(f"""v_and_b32 v6, 0x34800000, v{vNAN}
    v_cmp_ne_u32 vcc, 0, v6
    s_lshl_b32 s{sT0}, s{sWAVE}, 4
    s_add_u32 s{sT0}, s{sT0}, {SP+64+8}
    v_mov_b32 v10, s{sT0}
    s_cmp_lg_u64 vcc, 0
    s_cselect_b32 s{sT1}, 1, s{sBAD}
    v_mov_b32 v11, s{sT1}
    ds_write_b32 v10, v11
    s_waitcnt lgkmcnt(0)
    s_barrier
    s_cmp_lg_u32 s{sWAVE}, 0
    s_cbranch_scc1 {end}
    v_and_b32 v6, 15, v0
    v_lshlrev_b32 v6, 4, v6
    v_add_u32 v6, {SP+64}, v6
    ds_read_b128 v[8:11], v6
    s_waitcnt lgkmcnt(0)""")
    scan16(k, 8, "v_max_u32"); scan16(k, 9, "v_add_f32"); scan16(k, 10, "v_or_b32")
    k(f"""s_lshl_b32 s{sT0}, s2, 3
    s_mov_b32 s{sTAB+2}, {OFF_MC - OFF_TAB}
    s_add_u32 s{sT0}, s{sT0}, {TAB_BYTES}
    v_mov_b32 v6, 0
    v_lshl_or_b32 v8, v10, 16, v8
    s_mov_b64 exec, 0x8000
    buffer_store_dwordx2 v[8:9], v6, s[{sTAB}:{sTAB+3}], s{sT0} offen
    s_lshl_b32 s{sT0}, s2, 8
    s_add_u32 s{sT0}, s{sT0}, {OFF_CNT - OFF_TAB}
    buffer_store_dword v6, v6, s[{sTAB}:{sTAB+3}], s{sT0} offen
    {end}:
    s_endpgm""")
    return k


BIAS = 0x4000
NW = 4
CAP = 64 * (NW + 1)


def pass2(force_slow=False, opts=None):
    o = dict(na=2, stamp=0)
    o.update(opts or {})
    k = K("p2_kernel", 256, 1024, LDS_ALL, 128, sgpr=102)
    vm = Cnt(k, "vmcnt", 63); lg = Cnt(k, "lgkmcnt", 15)
    sREC, sM = 4, 8
    sOB, sQ, sWAVE, sT0, sT1, sMAG, sPERM, sTILE, sSCR, sFAIL = 3, 12, 13, 14, 15, 16, 17, 18, 19, 2
    sMG2 = 20
    MF = o.get("mf", 1); vID = 58
    sMOFF, sK10, sIT, sTB, sSO, sWOFF = 22, 23, 24, 25, 26, 27
    sTOT, sTOTC = 28, 51
    sMM = 30
    sK1, sK2 = 40, 41
    sRW = 44
    sUNIT, sJ, sACC, sTOTN = 48, 49, 50, 29
    sWR, sWS_, sWD, sWU = 52, 68, 84, 28
    GH = [72, 112]
    CEN = [53, 54, 56, 57]
    DD = [60, 61]
    vST = 52
    sDI = 100
    SQ = 3.798282560733770
    TILE, SP = 80000, 160000
    MOFF = 160
    RAW = [8 + 4*j for j in range(NW + 1)]
    OS, OE = 28, 36
    RT = 44
    vK3 = 50
    GD = 64
    MP = 88
    TM = list(range(108, 122))
    vA16, vL16, vWA, vCHK, vZ, vSC, vMK = 1, 2, 3, 4, 5, 6, 7
    vWA2, vS2 = 124, 126
    end = "L_p2_end"
    k(f"s_cmp_ge_u32 s2, 256\ns_cbranch_scc1 {end}")
    if o["stamp"]:
        k("v_mov_b32 v127, 0"); stamp(k, 0, 42); stamp(k, 60, 42, real=True)
    k.ldptr(sREC, "ws")
    k.ldptr(sDI, "dist")
    mcopy = o.get("mcopy", 0)
    if not mcopy: k.ldptr(sM, "m")
    if o.get("cpf"):
        k("v_cmp_gt_u32 vcc, 128, v0\ns_nop 1\ns_cbranch_vccz L_p2_nopf")
        code_prefetch(k, 52, 122, 123, "L_p2_nopf", "L_p2_slow-L_p2_nopf")
        k("L_p2_nopf:")
    k("""s_load_dwordx2 s[30:31], s[0:1], 40
    s_load_dwordx4 s[32:35], s[0:1], 56
    s_load_dwordx4 s[36:39], s[0:1], 72""")
    k(f"""s_and_b32 s{sT0}, s2, 7
    s_lshr_b32 s{sJ}, s2, 3
    s_and_b32 s{sOB}, s{sT0}, 1
    s_lshl_b32 s{sOB}, s{sOB}, 5
    s_add_u32 s{sOB}, s{sOB}, s{sJ}
    s_lshr_b32 s{sQ}, s{sT0}, 1
    v_lshrrev_b32 v{TM[0]}, 6, v0
    v_lshlrev_b32 v{vA16}, 4, v0
    v_and_b32 v{TM[1]}, 63, v0
    v_readfirstlane_b32 s{sWAVE}, v{TM[0]}
    v_lshlrev_b32 v{TM[3]}, 4, v{TM[1]}
    v_lshrrev_b32 v{TM[2]}, 2, v{TM[1]}
    v_mul_u32_u24 v{TM[2]}, {TAB_ROW - 64}, v{TM[2]}
    v_add_u32 v{TM[2]}, v{TM[2]}, v{TM[3]}
    s_mul_i32 s{sT0}, s{sQ}, 65
    s_add_u32 s{sT0}, s{sT0}, s{sOB}
    s_lshl_b32 s{sT0}, s{sT0}, 5
    s_mul_i32 s{sT1}, s{sWAVE}, {64*TAB_ROW}
    s_add_u32 s{sT0}, s{sT0}, s{sT1}
    s_add_u32 s{sTB}, s{sT0}, {OFF_TAB}
    s_mul_i32 s{sMOFF}, s{sQ}, {16*R*8}
    s_mov_b32 s{sFAIL}, {1 if force_slow else 0}
    s_waitcnt lgkmcnt(0)""")
    k.srd_finish(sREC, WS_BYTES)
    if mcopy: k(f"s_add_u32 s{sM}, s{sREC}, {OFF_MC}\ns_addc_u32 s{sM+1}, s{sREC+1}, 0")
    k(f"s_add_u32 s{sM+2}, s{sMOFF}, {16*R*8}\ns_mov_b32 s{sM+3}, 0x00020000")
    for i in range(4):
        k(f"s_add_u32 s{sT1}, s{sTB}, {16*i*TAB_ROW}\nbuffer_load_dwordx4 v[{OS+4*i}:{OS+4*i+3}], v{TM[2]}, s[{sREC}:{sREC+3}], s{sT1} offen"); vm.issue(f"tab{i}")
    k(f"""s_load_dwordx4 s[40:43], s[30:31], 0
    s_load_dwordx16 s[{sWR}:{sWR+15}], s[32:33], 0
    s_load_dwordx16 s[{sWS_}:{sWS_+15}], s[34:35], 0
    s_load_dwordx8 s[{sWD}:{sWD+7}], s[36:37], 0
    s_load_dwordx8 s[92:99], s[38:39], 0""")
    def cnt_add(v, rtn):
        k(f"""s_lshl_b32 s{sT0}, s{sOB}, 8
        s_add_u32 s{sT0}, s{sT0}, {OFF_CNT}
        s_mov_b64 exec, 1
        buffer_atomic_add v{v}, off, s[{sREC}:{sREC+3}], s{sT0} {'sc0' if rtn else ''}
        s_mov_b64 exec, -1""")
    k(f"""v_mov_b32 v{vST}, 0x100
    s_cmp_lg_u32 s{sWAVE}, 0
    s_cbranch_scc1 L_p2_noann""")
    cnt_add(vST, False)
    k("L_p2_noann:")

    mplan = o.get("mplan", ["a9", "a9", "g0", "g1", "a0"])
    def mload(only=None, ahead=False):
        for u in range(5):
            if only is not None and u not in only: continue
            k(f"s_add_u32 s{sT0}, s{sMOFF}, {u*16384 + (R*8 if ahead else 0)}\nbuffer_load_dwordx4 v[{MP+4*u}:{MP+4*u+3}], v{vA16}, s[{sM}:{sM+3}], s{sT0} offen"); vm.issue("m")
    def mwrite(us=range(5)):
        for u in us:
            k(f"ds_write_b128 v{vWA if u < 4 else vWA2}, v[{MP+4*u}:{MP+4*u+3}] offset:{(u & 3)*16384}"); lg.issue("w")
    def dist_loads(sl):
        k(f"""s_lshl2_add_u32 s{sT0}, s{sOB}, s{sl}
        s_mul_i32 s{sT0}, s{sT0}, 5000
        s_add_u32 s{sT1}, s{sT0}, 4096
        v_min_u32 v{DD[1]}, 225, v0
        v_lshl_add_u32 v{DD[0]}, v0, 2, s{sT0}
        v_lshl_add_u32 v{DD[1]}, v{DD[1]}, 2, s{sT1}
        global_load_dword v{DD[0]}, v{DD[0]}, s[{sDI}:{sDI+1}] {o.get("dflag", "nt")}
        global_load_dword v{DD[1]}, v{DD[1]}, s[{sDI}:{sDI+1}] {o.get("dflag", "nt")}""")
    def gates(i):
        T = [14 + 2*r for r in range(8)]
        CA_, Gf, dd, tmp = 36, GH[i], 30, 32
        rnd = o.get("rnd", 1)
        k(f"v_lshlrev_b32 v{dd}, 16, v{DD[i]}\nv_and_b32 v{dd+1}, 0xffff0000, v{DD[i]}")
        if i == 0:
            for x in range(4): k(f"v_lshlrev_b32 v{CA_+2*x}, 16, v{CEN[x]}\nv_and_b32 v{CA_+2*x+1}, 0xffff0000, v{CEN[x]}")
        def rounds():
            if rnd:
                for r in range(8): rnd2(k, T[r], T[r]+1, tmp)
        for r in range(8):
            c0 = CA_ + (r & ~1)
            k(f"v_pk_add_f32 v[{T[r]}:{T[r]+1}], v[{dd}:{dd+1}], v[{c0}:{c0+1}] op_sel:[0,{r & 1}] op_sel_hi:[1,{r & 1}] neg_lo:[0,1] neg_hi:[0,1]")
        rounds()
        for r in range(8): k(f"v_pk_mul_f32 v[{T[r]}:{T[r]+1}], v[{T[r]}:{T[r]+1}], v[{T[r]}:{T[r]+1}]")
        rounds()
        k(f"v_mov_b32 v{dd}, {f2u(10.0 if rnd else SQ*SQ)}\nv_mov_b32 v{dd+1}, 0x3fb8aa3b")
        for r in range(8): k(f"v_pk_mul_f32 v[{T[r]}:{T[r]+1}], v[{T[r]}:{T[r]+1}], v[{dd}:{dd+1}] op_sel:[0,0] op_sel_hi:[1,0]")
        if rnd:
            rounds()
            for r in range(8): k(f"v_pk_mul_f32 v[{T[r]}:{T[r]+1}], v[{T[r]}:{T[r]+1}], v[{dd}:{dd+1}] op_sel:[0,1] op_sel_hi:[1,1]")
        for r in range(8): k(f"v_exp_f32 v{T[r]}, -v{T[r]}\nv_exp_f32 v{T[r]+1}, -v{T[r]+1}")
        for p in range(4):
            for e in range(2): k(f"v_cvt_pk_bf16_f32 v{T[2*p]+e}, v{T[2*p]+e}, v{T[2*p+1]+e}")
        for p in range(4):
            for dst, base in ((Gf, sWS_), (Gf + 8, sWR)):
                for c in range(4):
                    for e in range(2):
                        k(f"v_dot2_f32_bf16 v{dst+2*c+e}, v{T[2*p]+e}, s{base+4*p+c}, {'0' if p == 0 else 'v%d' % (dst+2*c+e)}")
    def gates2():
        lab = k.lab("g1")
        gates(0)
        k(f"s_cmp_ge_u32 s{sWAVE}, 4\ns_cbranch_scc1 {lab}")
        gates(1)
        k(f"{lab}:")
    mload()
    k(f"s_mov_b32 s{sT1}, {OFF_INFO1}")
    for i in range(2):
        k(f"buffer_load_dwordx4 v[{GD+16+4*i}:{GD+19+4*i}], v{TM[3]}, s[{sREC}:{sREC+3}], s{sT1} offen offset:{1024*i}"); vm.issue("info")
    assert CAP % 64 == 0
    k(f"""v_lshlrev_b32 v{vL16}, 10, v{TM[1]}
    v_mov_b32 v{vK3}, 21845
    v_add_u32 v{vWA}, {TILE}, v{vA16}
    v_add_u32 v{vWA2}, {TILE + 65536}, v{vA16}
    v_add_u32 v{TM[5]}, 65536, v{vA16}
    v_mov_b32 v{TM[4]}, 0x7f000000
    v_cmp_gt_u32 vcc, 904, v0
    s_mul_i32 s{sSCR}, s{sWAVE}, 240
    s_add_u32 s{sSCR}, s{sSCR}, {SP}
    v_cndmask_b32 v{vWA2}, v{TM[4]}, v{vWA2}, vcc
    v_cndmask_b32 v{TM[5]}, v{TM[4]}, v{TM[5]}, vcc
    v_lshl_add_u32 v{vSC}, v{TM[1]}, 2, s{sSCR}
    v_lshl_add_u32 v{vS2}, v{TM[1]}, 1, s{sSCR}
    v_cmp_gt_u32 vcc, {2*NW + 2}, v{TM[1]}
    s_lshl_b32 s{sWOFF}, s{sWAVE}, 16
    s_mov_b32 s{sK10}, 1024
    v_cndmask_b32 v{vSC}, v{TM[4]}, v{vSC}, vcc
    s_add_u32 s{sRW}, s{sREC}, {OFF_REC - (CAP << 14)}
    s_addc_u32 s{sRW+1}, s{sREC+1}, {16 << 16}
    s_mov_b32 s{sRW+2}, {(NBLK + CAP//64) << 16}
    s_mov_b32 s{sRW+3}, 0x00020000
    s_mov_b32 s{sTILE}, {TILE}
    s_and_b32 s{sACC}, s{sOB}, 1
    s_lshl_b32 s{sACC}, s{sACC}, 18
    s_sub_u32 s{sACC}, {(-0x4000*8) & 0xffffffff}, s{sACC}
    v_lshlrev_b32 v{TM[8]}, 3, v0
    v_and_b32 v{TM[8]}, 16, v{TM[8]}
    v_and_b32 v{TM[9]}, 1, v0
    v_lshl_or_b32 v{TM[8]}, v{TM[9]}, 5, v{TM[8]}
    v_mov_b32 v{vID}, 0x3f80
    v_mov_b32 v{vID+1}, 0
    v_lshlrev_b64 v[{vID}:{vID+1}], v{TM[8]}, v[{vID}:{vID+1}]
    v_mov_b32 v{vCHK}, 0
    v_mov_b32 v{vZ}, 0
    v_mov_b32 v{TM[6]}, 0xff00
    ds_write_b32 v{vSC}, v{vZ} offset:{MOFF}
    ds_write_b16 v{vS2}, v{TM[6]} offset:2""")
    for i in range(6): k(f"v_mov_b32 v{RT+i}, {BIAS*0x10001}")
    if o.get("rt2"):
        for i in (58, 59, 62, 63, 122, 123): k(f"v_mov_b32 v{i}, 0")
    k(f"""ds_write_b128 v{TM[5]}, v[{RT}:{RT+3}]
    v_lshrrev_b32 v{TM[7]}, 4, v{TM[1]}
    v_mul_u32_u24 v{TM[7]}, {16384 - 1024}, v{TM[7]}
    v_lshl_add_u32 v{TM[7]}, v{TM[1]}, 6, v{TM[7]}
    v_lshl_add_u32 v{TM[7]}, v{TM[0]}, 10, v{TM[7]}""")
    k("s_waitcnt lgkmcnt(0)")
    for i in range(4): k(f"v_mov_b32 v{CEN[i]}, s{40+i}")
    k(f"s_mov_b32 s{sK1}, {16384 + (CAP << 16)}\ns_mov_b32 s{sK2}, {16384 + 2*21845 + (CAP << 16)}")
    for base in (sWR, sWS_):
        for p in range(4):
            b = base + 4*p
            k(f"""s_pack_ll_b32_b16 s{sT0}, s{b}, s{b+2}
            s_pack_hh_b32_b16 s{sT1}, s{b}, s{b+2}
            s_pack_ll_b32_b16 s{b+2}, s{b+1}, s{b+3}
            s_pack_hh_b32_b16 s{b+3}, s{b+1}, s{b+3}
            s_mov_b32 s{b}, s{sT0}
            s_mov_b32 s{b+1}, s{sT1}""")
    for i in range(4):
        vm.wait(f"tab{i}")
        k(f"ds_write_b128 v{vA16}, v[{OS+4*i}:{OS+4*i+3}] offset:{i*16384}")
    for x in (0, 2, 1, 3): k(f"ds_read_b128 v[{OS+4*x}:{OS+4*x+3}], v{TM[7]} offset:{16*x}"); lg.issue(f"t{x}")
    for u in range(4): k(f"ds_write_b128 v{vA16}, v[{RT}:{RT+3}] offset:{u*16384}"); lg.issue("x")
    lg.wait("t2")

    def setup(half):
        a, b, c, d = TM[0:4]
        k(f"""v_mad_u32_u16 v{a}, v{OS}, v{vK3}, s{sK1} op_sel:[{half},0,0,0]
        v_mad_u32_u16 v{b}, v{OE}, v{vK3}, s{sK2} op_sel:[{half},0,0,0]
        v_sub_u32_sdwa v{c}, v{b}, v{a} dst_sel:DWORD dst_unused:UNUSED_PAD src0_sel:WORD_1 src1_sel:WORD_1
        s_nop 1
        v_add_u32_dpp v{c}, v{c}, v{c} row_shr:1 row_mask:0xf bank_mask:0xf bound_ctrl:0
        s_nop 1
        v_add_u32_dpp v{c}, v{c}, v{c} row_shr:2 row_mask:0xf bank_mask:0xf bound_ctrl:0
        s_nop 1
        v_add_u32_dpp v{c}, v{c}, v{c} row_shr:4 row_mask:0xf bank_mask:0xf bound_ctrl:0
        s_nop 1
        v_add_u32_dpp v{c}, v{c}, v{c} row_shr:8 row_mask:0xf bank_mask:0xf bound_ctrl:0
        s_nop 1
        v_add_u32_dpp v{c}, v{c}, v{c} row_bcast:15 row_mask:0xa bank_mask:0xf
        s_nop 1
        v_add_u32_dpp v{c}, v{c}, v{c} row_bcast:31 row_mask:0xc bank_mask:0xf
        v_sub_u32_sdwa v{b}, v{b}, v{c} dst_sel:DWORD dst_unused:UNUSED_PAD src0_sel:WORD_1 src1_sel:DWORD
        v_readlane_b32 s{sTOTN}, v{c}, 63
        v_add_u32 v{c}, -1, v{c}
        ds_write_b16 v{vS2}, v{b}
        v_lshlrev_b32_e64 v{d}, v{c}, 1
        v_lshrrev_b32 v{c}, 5, v{c}
        v_lshl_add_u32 v{c}, v{c}, 2, s{sSCR}
        s_cmp_gt_u32 s{sTOTN}, {CAP}
        s_cselect_b32 s{sFAIL}, 1, s{sFAIL}
        s_cselect_b64 exec, 0, -1
        ds_or_b32 v{c}, v{d} offset:{MOFF}
        s_mov_b64 exec, -1
        ds_wrxchg_rtn_b32 v{vMK}, v{vSC}, v{vZ} offset:{MOFF}""")
        for t in ("x", "x", "mk"): lg.issue(t)
    def setup2():
        lg.wait("mk")
        for j in range(NW):
            k(f"v_readlane_b32 s{sMM+2*j}, v{vMK}, {2*j}\nv_readlane_b32 s{sMM+2*j+1}, v{vMK}, {2*j+1}")
        k(f"s_mov_b32 s{sTB}, s{sSCR}\ns_mov_b32 s{sSO}, s{sWOFF}\ns_mov_b32 s{sTOTC}, s{sTOT}\ns_mov_b32 s{sTOT}, s{sTOTN}")
    def agen1(j, ta, tb):
        k(f"""v_mbcnt_lo_u32_b32 v{ta}, s{sMM+2*j}, 0
        v_mbcnt_hi_u32_b32 v{ta}, s{sMM+2*j+1}, v{ta}
        s_bcnt1_i32_b64 s{sT0}, s[{sMM+2*j}:{sMM+2*j+1}]
        v_lshl_add_u32 v{tb}, v{ta}, 1, s{sTB}
        ds_read_u16 v{tb}, v{tb}
        s_add_u32 s{sMM+2*j}, s{sSO}, {j << 20}
        s_lshl1_add_u32 s{sTB}, s{sT0}, s{sTB}
        s_lshl_b32 s{sT0}, s{sT0}, 10
        s_add_u32 s{sSO}, s{sSO}, s{sT0}""")
        lg.issue(f"d{j}")
    def agen2(j, st, ta, tb, track=True):
        r = RAW[j]
        lg.wait(f"d{j}")
        k(f"""v_mad_u32_u16 v{tb}, v{tb}, s{sK10}, v{vL16}
        v_pk_lshrrev_b16 v{tb}, 10, v{tb} op_sel_hi:[1,1]
        v_lshl_add_u32 v{ta}, v{ta}, 6, v{tb}
        buffer_load_dwordx4 v[{r}:{r+3}], v{ta}, s[{sRW}:{sRW+3}], s{sMM+2*j} idxen""")
        if track: vm.issue(f"r{st}_{j}")
    TA, TB_ = 51, 55
    def agen_opt(st, TA=62, TB_=63):
        assert vm.q[-1] == f"r{st}_{NW-1}" or f"r{st}_{NW-1}" not in vm.q
        lab = k.lab("noopt")
        k(f"s_cmp_le_u32 s{sTOT}, {64*NW}\ns_cbranch_scc1 {lab}")
        j = NW
        k(f"v_readlane_b32 s{sMM+2*j}, v{vMK}, {2*j}\nv_readlane_b32 s{sMM+2*j+1}, v{vMK}, {2*j+1}\ns_nop 1")
        save = list(lg.q)
        agen1(j, TA, TB_); agen2(j, st, TA, TB_, track=False)
        lg.q = save
        k(f"{lab}:")
    def gather(j, g):
        r = RAW[j]
        for x in range(3): k(f"v_mad_u32_u16 v{g+2*x}, v{r+x}, 8, s{sTILE}")
        for x in range(3): k(f"ds_read_b64 v[{g+2*x}:{g+2*x+1}], v{g+2*x}"); lg.issue(f"g{j}")
    RTS = [[RT, RT+2, RT+4], None] if o.get("rt2") else [[RT, RT+2, RT+4]]*2
    def check(p=None):
        for p in ((0, 1) if p is None and o.get("rt2") else (p or 0,)):
            lg.wait(f"rt{p}" if o.get("rt2") else "rt0")
            for x in RTS[p]: k(f"v_or3_b32 v{vCHK}, v{x}, v{x+1}, v{vCHK}")
    def accum(j, g, p=None):
        r = RAW[j]
        p = ((j & 1) if p is None else p) if o.get("rt2") else 0
        t = TM
        def cdec():
            if o.get("abl") == "noc": return
            k(f"""v_bfe_i32 v{t[0]}, v{r+3}, 2, 10
            v_bfe_i32 v{t[1]}, v{r+3}, 12, 10
            v_ashrrev_i32 v{t[2]}, 22, v{r+3}""")
            for x in range(3): k(f"v_cvt_f32_i32 v{t[x]}, v{t[x]}")
        def oaddr():
            for x in range(3): k(f"v_mad_u32_u16 v{r+x}, v{r+x}, 8, s{sACC} op_sel:[1,0,0,0]")
        if MF:
            cdec()
            lg.wait(f"g{j}")
            D = [t[4] + 4*x for x in range(3)]
            for x in range(3): k(f"v_mfma_f32_4x4x4_16b_bf16 v[{D[x]}:{D[x]+3}], v[{vID}:{vID+1}], v[{g+2*x}:{g+2*x+1}], 0")
            oaddr()
            A = [D[x] for x in range(3)]; B = [D[x] + 2 for x in range(3)]
        else:
            cdec(); oaddr()
            lg.wait(f"g{j}")
            A = [t[4 + 2*x] for x in range(3)]; B = [g + 2*x for x in range(3)]
            for x in range(3):
                for y in range(2): k(f"v_lshlrev_b32 v{A[x]+y}, 16, v{B[x]+y}\nv_and_b32 v{B[x]+y}, 0xffff0000, v{B[x]+y}")
        for x in range(3):
            c = t[x & ~1]; h = x & 1
            for a, mg in ((B[x], sMG2), (A[x], sMAG)):
                k(f"v_pk_fma_f32 v[{a}:{a+1}], v[{a}:{a+1}], v[{c}:{c+1}], s[{mg}:{mg+1}] op_sel:[0,{h},0] op_sel_hi:[1,{h},1]")
        for x in range(3): k(f"v_lshlrev_b64 v[{B[x]}:{B[x]+1}], 16, v[{B[x]}:{B[x]+1}]")
        for x in range(3): k(f"v_lshl_add_u64 v[{g+2*x}:{g+2*x+1}], v[{A[x]}:{A[x]+1}], 0, v[{B[x]}:{B[x]+1}]")
        check(p)
        for x in range(3): k(f"ds_add_rtn_u64 v[{RTS[p][x]}:{RTS[p][x]+1}], v{r+x}, v[{g+2*x}:{g+2*x+1}]"); lg.issue(f"rt{p}")
    def optional(st):
        assert lg.q[-1][:2] == "rt" and f"r{st}_{NW-1}" not in vm.q
        p = int(lg.q[-1][2])
        lab = k.lab("noopt2")
        k(f"s_cmp_le_u32 s{sTOTC}, {64*NW}\ns_cbranch_scc1 {lab}")
        save = list(lg.q)
        gather(NW, GD); accum(NW, GD, p)
        lg.q = save
        k(f"{lab}:")

    def rotate():
        for b in (OS, OE):
            for i in range(0, 6, 2): k(f"v_pk_mov_b32 v[{b+i}:{b+i+1}], v[{b+i}:{b+i+1}], v[{b+i+2}:{b+i+3}] op_sel:[1,0]")
            k(f"v_pk_mov_b32 v[{b+6}:{b+7}], v[{b+6}:{b+7}], v[{vCHK}:{vZ}] op_sel:[1,1]")
    early = o.get("early", 0)
    def first_loads():
        for j in range(NW): agen2(j, 0, RAW[j], RAW[j]+1)
        agen_opt(0)
    setup(0); setup2()
    for j in range(NW): agen1(j, RAW[j], RAW[j]+1)
    if not early: first_loads()
    vm.wait("m")
    mwrite()
    if early == 1:
        lg.wait("w"); k("s_barrier"); first_loads()
    vm.wait("info")
    I = GD + 16
    k(f"""v_max3_u32 v64, v{I}, v{I+2}, v{I+4}
    v_add_f32 v65, v{I+1}, v{I+3}
    v_add_f32 v66, v{I+5}, v{I+7}
    v_max_u32 v64, v64, v{I+6}
    v_add_f32 v65, v65, v66
    v_cmp_lt_u32 vcc, 0xffff, v64""")
    scan64(k, 64, "v_max_u32"); scan64(k, 65, "v_add_f32")
    k(f"""s_cmp_lg_u64 vcc, 0
    s_cselect_b32 s{sFAIL}, 1, s{sFAIL}
    v_lshlrev_b32 v64, 16, v64
    v_mul_f32 v66, {f2u(64.0/(4*E))}, v65
    v_mul_f32 v65, {f2u(33.0/(4*E))}, v65
    v_cmp_nle_f32 vcc, v64, v66
    v_max_u32 v64, v64, v65
    s_nop 0
    v_readlane_b32 s{sT0}, v64, 63
    s_bitcmp1_b32 vcc_hi, 31
    s_cselect_b32 s{sFAIL}, 1, s{sFAIL}
    s_lshr_b32 s{sT0}, s{sT0}, 23
    s_add_u32 s{sT0}, s{sT0}, 1
    s_cmp_lt_u32 s{sT0}, 40
    s_cselect_b32 s{sFAIL}, 1, s{sFAIL}
    s_cmp_gt_u32 s{sT0}, 230
    s_cselect_b32 s{sFAIL}, 1, s{sFAIL}
    s_sub_u32 s{sUNIT}, s{sT0}, 14
    s_lshl_b32 s{sUNIT}, s{sUNIT}, 23
    s_add_u32 s{sMAG}, s{sUNIT}, {((23 + 9) << 23) + 0x400000}
    s_lshr_b32 s{sT1}, s{sMAG}, 16
    s_sub_u32 s{sT1}, 0x10000, s{sT1}
    s_add_u32 s{sMG2}, s{sMAG}, s{sT1}
    s_sub_u32 s{sMAG+1}, s{sMG2}, 1
    s_mov_b32 s{sMG2+1}, s{sMAG+1}
    s_or_b32 s{sUNIT}, s{sUNIT}, {f2u(512.0/CQ) & 0x7fffff}
    s_sub_u32 s{sT0}, s{sT0}, 40
    s_cmp_gt_u32 s{sT0}, 190
    s_cselect_b32 s{sUNIT}, 0, s{sUNIT}""")
    if early != 1:
        lg.wait("w"); k("s_barrier")
    if early == 2: first_loads()
    mload([u for u in range(5) if mplan[u][0] == "a" and int(mplan[u][1]) >= o["na"]], ahead=True)
    setup(1)
    k(f"s_mov_b32 s{sIT}, 0")
    if o.get("prio"):
        for p in (1, 2, 3):
            lab = k.lab("pr")
            k(f"s_cmp_lt_u32 s{sWAVE}, {o['prio'][p-1]}\ns_cbranch_scc1 {lab}\ns_setprio {p}\n{lab}:")
    loop = "L_p2_loop"
    k(f"{loop}:")
    def body():
        for st in (0, 1):
            def st_(n):
                if o["stamp"] == 1 and n == 0:
                    k(f"s_lshl_b32 s{sT0}, s{sIT}, 1\ns_add_u32 s{sT0}, s{sT0}, {1+st}"); stamp(k, f"s{sT0}", 42)
            st_(0)
            k(f"s_add_u32 s{sMOFF}, s{sMOFF}, {R*8}")
            if st == 0:
                k(f"""s_lshl_b32 s{sT0}, s{sWAVE}, 4
                s_or_b32 s{sT0}, s{sT0}, s{sIT}
                s_cmp_lg_u32 s{sT0}, 5
                s_cbranch_scc1 L_p2_nost
                v_mov_b32 v{vST}, 0""")
                cnt_add(vST, True)
                k("L_p2_nost:")
            else:
                k(f"s_cmp_lg_u32 s{sIT}, 7\ns_cbranch_scc1 L_p2_nodist\ns_mov_b32 s{sRW+2}, 0")
                dist_loads(sQ)
                k("L_p2_nodist:")
            na = o["na"]
            gplan = o.get("gplan", [2, 2])
            gq = list(range(NW))
            def gathers(n):
                for _ in range(n):
                    j = gq.pop(0)
                    vm.wait(f"r{st}_{j}")
                    gather(j, GD + 6*j)
                    mload([u for u in range(5) if mplan[u] == f"g{j}"])
            gathers(gplan[0])
            setup2()
            for j in range(NW):
                if j == na:
                    assert not gq
                    optional(st)
                    lg.wait(f"g{NW-1}")
                    k("s_barrier")
                    vm.wait("m")
                if j >= na: mwrite([u for u in range(5) if o.get("wplan", [0]*5)[u] == j - na])
                if 0 < j < len(gplan): gathers(gplan[j])
                su = o.get("su", 0)
                if su == 2 and j == NW - 1: pass
                else: agen1(j, TA, TB_)
                if su == 2 and j == NW - 2: agen1(j + 1, 51, 55)
                if (su == 1 and j == NW - 1) or (su == 2 and j == NW - 2):
                    agen_opt(1 - st)
                    if st == 0: rotate()
                    setup(st)
                accum(j, GD + 6*j)
                if su == 2 and j == NW - 1: agen2(j, 1 - st, 51, 55)
                else: agen2(j, 1 - st, TA, TB_)
                if j == NW - 1 and not su: agen_opt(1 - st)
                mload([u for u in range(5) if mplan[u] == f"a{j}"], ahead=(j >= na))
            if not su:
                if st == 0: rotate()
                setup(st)
            mload([u for u in range(5) if mplan[u] == "a9"], ahead=True)
            lg.wait("w")
            if st == 1:
                k(f"s_add_u32 s{sIT}, s{sIT}, 1\ns_cmp_lt_u32 s{sIT}, 8")
            k("s_barrier")
    emit_loop(k, [vm, lg], body)
    k(f"s_cbranch_scc1 {loop}")
    if o["stamp"]: stamp(k, 40, 42)
    sOU, sU = 16, 44
    sSL, sTODO, sWORD, sDEL, sSC2 = 49, 51, 20, 21, 27
    vP = [vA16, 2]
    MM = [64, 68]
    PP = [8, 88]
    check()
    k(f"""s_mov_b32 s{sSC2}, s{sSCR}
    s_waitcnt vmcnt(0)
    v_mov_b32 v8, {SP + 232}
    s_cmp_lg_u32 s{sWAVE}, 0
    s_cselect_b64 exec, 0, 1
    ds_write_b32 v8, v{vST}
    s_mov_b64 exec, -1
    v_subrev_u32 v6, {TILE}, v{vWA2}
    s_mul_i32 s{sIT}, s{sQ}, 20000
    v_subrev_u32 v10, s{sIT}, v{vA16}
    v_mov_b32 v11, 0x7f000000
    s_waitcnt vmcnt(0) lgkmcnt(0)
    s_barrier""")
    if o["stamp"]: stamp(k, 41, 14)
    gw = o.get("gw", 4)
    k(f"s_cmp_lt_u32 s{sWAVE}, {gw}\ns_cbranch_scc1 L_p2_ga")
    gates(0)
    k("L_p2_ga:\nds_read_b32 v9, v8")
    for u in range(4): k(f"ds_read_b128 v[{MP+4*u}:{MP+4*u+3}], v{vA16} offset:{u*16384}")
    k(f"""ds_read_b128 v[{MP+16}:{MP+19}], v6
    s_mul_i32 s{sT0}, s{sQ}, {E*8}
    s_mul_i32 s{sT1}, s{sOB}, {R*8}
    s_add_u32 s{sTB}, s{sT0}, s{sT1}
    s_add_u32 s{sTB}, s{sTB}, {OFF_P16}
    s_waitcnt lgkmcnt(5)
    v_readfirstlane_b32 s{sDEL}, v9
    s_nop 0
    s_bfe_u32 s{sDEL}, s{sDEL}, {8 | (8 << 16)}
    s_cmp_lg_u32 s{sDEL}, {99 if o.get('deleg') else 4}
    s_cselect_b32 s{sDEL}, 1, 0
    s_cselect_b32 s{sIT}, 0, 20000""")
    for u in range(5):
        k(f"""v_cmp_le_u32 vcc, s{sIT}, v10
        v_add_u32 v10, 16384, v10
        s_add_u32 s{sT0}, s{sTB}, {u*16384 if u < 4 else 0}
        v_cndmask_b32 v12, v11, v{vA16 if u < 4 else 6}, vcc
        s_waitcnt lgkmcnt({4-u})
        buffer_store_dwordx4 v[{MP+4*u}:{MP+4*u+3}], v12, s[{sREC}:{sREC+3}], s{sT0} offen sc1
        v_or3_b32 v{vCHK}, v{MP+4*u}, v{MP+4*u+1}, v{vCHK}
        v_or3_b32 v{vCHK}, v{MP+4*u+2}, v{MP+4*u+3}, v{vCHK}""")
    if o["stamp"]: stamp(k, 42, 14)
    k(f"s_load_dwordx2 s[{sOU}:{sOU+1}], s[0:1], {KA['out']}\ns_cmp_ge_u32 s{sWAVE}, {gw}\ns_cbranch_scc1 L_p2_gb")
    gates2()
    k(f"""L_p2_gb:
    v_and_b32 v{vCHK}, 0x80008000, v{vCHK}
    v_cmp_ne_u32 vcc, 0, v{vCHK}
    v_mov_b32 v8, s{sSC2}
    v_and_b32 v10, 15, v0
    v_mul_u32_u24 v10, 240, v10
    v_add_u32 v10, {SP}, v10
    s_cmp_lg_u64 vcc, 0
    s_cselect_b32 s{sFAIL}, 1, s{sFAIL}
    v_mov_b32 v9, s{sFAIL}
    s_mov_b64 exec, 1
    ds_write_b32 v8, v9
    s_mov_b64 exec, -1
    v_add_u32 v{vP[1]}, 16384, v{vA16}
    v_mov_b32 v9, 0x3f000000
    v_cmp_gt_u32 vcc, 226, v0
    s_mov_b32 s{sSL}, s{sQ}
    s_mov_b32 s{sTODO}, 0
    v_cndmask_b32 v{vP[1]}, v9, v{vP[1]}, vcc
    s_waitcnt vmcnt(0) lgkmcnt(0)""")
    if o["stamp"]: stamp(k, 43, 14)
    k("s_barrier\nds_read_b32 v9, v10")
    k.srd_finish(sOU, E*8)
    def slice_loads():
        k(f"""s_lshl2_add_u32 s{sT0}, s{sOB}, s{sSL}
        s_mul_i32 s{sSO}, s{sT0}, 20000
        s_mov_b32 s{sM+2}, {E*8}""")
        for i in range(2): k(f"buffer_load_dwordx4 v[{MM[i]}:{MM[i]+3}], v{vP[i]}, s[{sM}:{sM+3}], s{sSO} offen")
    k(f"""s_waitcnt lgkmcnt(0)
    v_cmp_ne_u32 vcc, 0, v9
    s_nop 1
    s_cmp_lg_u64 vcc, 0
    s_cselect_b32 s{sFAIL}, 1, 0
    s_cbranch_scc1 L_p2_slow
    L_p2_signal:""")
    if o["stamp"]: stamp(k, 44, 14)
    k(f"""v_mov_b32 v8, {SP + 228}
    s_lshl_b32 s{sT1}, s{sFAIL}, 4
    s_or_b32 s{sT1}, s{sT1}, s{sDEL}
    s_add_u32 s{sT0}, s{sQ}, 16
    s_lshl_b32 s{sWORD}, s{sT1}, s{sT0}
    s_add_u32 s{sWORD}, s{sWORD}, 1
    v_mov_b32 v9, s{sWORD}
    s_cmp_lg_u32 s{sWAVE}, 15
    s_cbranch_scc1 L_p2_nosig0""")
    cnt_add(9, True)
    k("L_p2_nosig0:")
    slice_loads()
    for i in range(8): k(f"s_lshl_b32 s{sWU+2*i}, s{92+i}, 16\ns_and_b32 s{sWU+2*i+1}, s{92+i}, 0xffff0000")
    for i in range(7, -1, -1): k(f"s_and_b32 s{sWD+2*i+1}, s{sWD+i}, 0xffff0000\ns_lshl_b32 s{sWD+2*i}, s{sWD+i}, 16")
    k(f"""s_mov_b32 s{sU}, s{sUNIT}
    s_add_u32 s{sU+1}, s{sUNIT}, {0x80000000 + (16 << 23)}
    s_cmp_eq_u32 s{sUNIT}, 0
    s_cselect_b32 s{sU+1}, 0, s{sU+1}
    s_cmp_lg_u32 s{sWAVE}, 15
    s_cbranch_scc1 L_p2_nosig
    s_waitcnt vmcnt(2)
    v_readfirstlane_b32 s{sT1}, v9
    s_lshl_b32 s{sTODO}, 1, s{sQ}
    s_add_u32 s{sWORD}, s{sWORD}, s{sT1}
    s_and_b32 s{sT1}, s{sWORD}, 0xff
    s_cmp_eq_u32 s{sT1}, 4
    s_cbranch_scc0 L_p2_notlast
    s_bfe_u32 s{sT1}, s{sWORD}, {16 | (4 << 16)}
    s_or_b32 s{sTODO}, s{sTODO}, s{sT1}
    s_branch L_p2_pub
    L_p2_notlast:
    s_cmp_lg_u32 s{sDEL}, 0
    s_cselect_b32 s{sTODO}, 0, s{sTODO}
    s_cbranch_scc1 L_p2_pub
    L_p2_poll:
    v_mov_b32 v9, 0""")
    cnt_add(9, True)
    k(f"""s_waitcnt vmcnt(0)
    v_readfirstlane_b32 s{sWORD}, v9
    s_nop 0
    s_and_b32 s{sT1}, s{sWORD}, 0xff
    s_cmp_lt_u32 s{sT1}, 4
    s_cbranch_scc1 L_p2_poll
    L_p2_pub:
    s_lshl_b32 s{sT1}, s{sTODO}, 24
    s_or_b32 s{sT1}, s{sT1}, s{sWORD}
    v_mov_b32 v9, s{sT1}
    s_mov_b64 exec, 1
    ds_write_b32 v8, v9
    s_mov_b64 exec, -1
    s_waitcnt lgkmcnt(0)
    L_p2_nosig:
    s_barrier
    ds_read_b32 v9, v8
    s_waitcnt lgkmcnt(0)
    v_readfirstlane_b32 s{sWORD}, v9
    s_nop 0
    s_lshr_b32 s{sTODO}, s{sWORD}, 24
    s_cbranch_scc0 {end}
    L_p2_fin:""")
    if o["stamp"]: stamp(k, 45, 14)
    k(f"s_mul_i32 s{sIT}, s{sSL}, 20000")
    qoff = lambda i, sz, base: f"""s_add_u32 s{sT0}, s{sQ}, {i}
        s_and_b32 s{sT0}, s{sT0}, 3
        s_mul_i32 s{sT1}, s{sT0}, {E*sz}
        s_add_u32 s{sT1}, s{sT1}, {base}"""
    for i in range(1, 4):
        k(qoff(i, 8, OFF_P16) + f"\ns_add_u32 s{sT1}, s{sT1}, s{sSO}")
        for h in range(2): k(f"buffer_load_dwordx4 v[{PP[h]+4*i}:{PP[h]+4*i+3}], v{vP[h]}, s[{sREC}:{sREC+3}], s{sT1} offen sc1")
    for h in range(2):
        k(f"v_add_u32 v{24+h}, s{sIT}, v{vP[h]}\nds_read_b128 v[{PP[h]}:{PP[h]+3}], v{24+h}")
    assert 4*BIAS == 1 << 16
    if o["stamp"]: stamp(k, 46, 14)
    def finish(h):
        P, S, D = PP[h], 24, PP[h]
        if h == 0:
            k("s_waitcnt vmcnt(0) lgkmcnt(0)")
            if o["stamp"]: stamp(k, 48, 14)
        lab = k.lab("nof32a")
        k(f"s_bfe_u32 s{sT0}, s{sWORD}, {20 | (4 << 16)}\ns_cbranch_scc0 {lab}")
        for i in range(4):
            l2 = k.lab("q")
            k(f"s_add_u32 s{sT0}, s{sQ}, {i}\ns_and_b32 s{sT0}, s{sT0}, 3\ns_add_u32 s{sT0}, s{sT0}, 20\ns_bitcmp1_b32 s{sWORD}, s{sT0}\ns_cbranch_scc0 {l2}")
            for x in range(4): k(f"v_mov_b32 v{P+4*i+x}, {BIAS*0x10001}")
            k(f"{l2}:")
        k(f"{lab}:")
        for x in range(4): k(f"v_pk_add_u16 v{P+x}, v{P+x}, v{P+4+x}\nv_pk_add_u16 v{P+8+x}, v{P+8+x}, v{P+12+x}")
        for j in range(4):
            for e in range(2):
                x = 2*e + j//2
                k(f"v_add_u32_sdwa v{S+2*j+e}, v{P+x}, v{P+8+x} dst_sel:DWORD dst_unused:UNUSED_PAD src0_sel:WORD_{j & 1} src1_sel:WORD_{j & 1}")
        for x in range(8): k(f"v_cvt_f32_u32 v{S+x}, v{S+x}")
        for j in range(4): k(f"v_pk_fma_f32 v[{S+2*j}:{S+2*j+1}], v[{S+2*j}:{S+2*j+1}], s[{sU}:{sU+1}], s[{sU}:{sU+1}] op_sel:[0,0,1] op_sel_hi:[1,0,1]")
        lab = k.lab("nof32b")
        k(f"s_bfe_u32 s{sT0}, s{sWORD}, {20 | (4 << 16)}\ns_cbranch_scc0 {lab}\nv_lshlrev_b32 v32, 1, v{vP[h]}")
        for q in range(4):
            l2 = k.lab("q")
            k(f"""s_bitcmp1_b32 s{sWORD}, {20+q}
            s_cbranch_scc0 {l2}
            s_lshl_b32 s{sT1}, s{sSO}, 1
            s_add_u32 s{sT1}, s{sT1}, {OFF_P32 + q*E*16}
            buffer_load_dwordx4 v[{P}:{P+3}], v32, s[{sREC}:{sREC+3}], s{sT1} offen sc1
            buffer_load_dwordx4 v[{P+4}:{P+7}], v32, s[{sREC}:{sREC+3}], s{sT1} offen offset:16 sc1
            s_waitcnt vmcnt(0)""")
            for j in range(4):
                for e in range(2): k(f"v_add_f32 v{S+2*j+e}, v{S+2*j+e}, v{P+4*e+j}")
            k(f"{l2}:")
        k(f"{lab}:")
        def matvec(dst, src, w):
            for j in range(4):
                for c in range(4):
                    b = w + 4*j + (c & ~1); x = c & 1
                    if j == 0: k(f"v_pk_mul_f32 v[{dst+2*c}:{dst+2*c+1}], v[{src}:{src+1}], s[{b}:{b+1}] op_sel:[0,{x}] op_sel_hi:[1,{x}]")
                    else: k(f"v_pk_fma_f32 v[{dst+2*c}:{dst+2*c+1}], v[{src+2*j}:{src+2*j+1}], s[{b}:{b+1}], v[{dst+2*c}:{dst+2*c+1}] op_sel:[0,{x},0] op_sel_hi:[1,{x},1]")
        matvec(D, S, sWD)
        for c in range(4): k(f"v_pk_mul_f32 v[{D+2*c}:{D+2*c+1}], v[{D+2*c}:{D+2*c+1}], v[{GH[h]+2*c}:{GH[h]+2*c+1}]")
        matvec(S, D, sWU)
        for e in range(2):
            for x in range(2):
                k(f"v_lshlrev_b32 v{D+4*x+e}, 16, v{MM[h]+2*e+x}\nv_and_b32 v{D+4*x+2+e}, 0xffff0000, v{MM[h]+2*e+x}")
        for c in range(4): k(f"v_pk_fma_f32 v[{D+2*c}:{D+2*c+1}], v[{S+2*c}:{S+2*c+1}], v[{GH[h]+8+2*c}:{GH[h]+9+2*c}], v[{D+2*c}:{D+2*c+1}]")
        for e in range(2):
            for x in range(2): k(f"v_cvt_pk_bf16_f32 v{D+8+2*e+x}, v{D+4*x+e}, v{D+4*x+2+e}")
        k(f"buffer_store_dwordx4 v[{D+8}:{D+11}], v{vP[h]}, s[{sOU}:{sOU+3}], s{sSO} offen {o.get('oflag', '')}")
    finish(0)
    k(f"s_cmp_ge_u32 s{sWAVE}, 4\ns_cbranch_scc1 L_p2_f1")
    finish(1)
    k(f"""L_p2_f1:
    s_bitset0_b32 s{sTODO}, s{sSL}
    s_cmp_eq_u32 s{sTODO}, 0
    s_cbranch_scc1 L_p2_done
    s_ff1_i32_b32 s{sSL}, s{sTODO}""")
    dist_loads(sSL)
    k("s_waitcnt vmcnt(0)")
    gates2()
    slice_loads()
    k("s_branch L_p2_fin\nL_p2_done:")
    if o["stamp"]:
        stamp(k, 49, 42); k("s_waitcnt vmcnt(0)"); stamp(k, 58, 42); stamp(k, 61, 42, real=True)
        stamp_dump(k, f"s_lshl_b32 s{sT0}, s{sOB}, 8\ns_lshl_b32 s{sT1}, s{sQ}, 4\ns_or_b32 s{sT0}, s{sT0}, s{sT1}\ns_or_b32 s{sT0}, s{sT0}, s{sWAVE}\ns_cmp_eq_u32 s{sT0}, {(o.get('dob', 5) << 8) | (o.get('dq', 1) << 4) | o.get('dw', 5)}", 52)
    k(f"s_branch {end}\nL_p2_slow:")
    k(f"""s_barrier
    v_mov_b32 v8, 0
    v_mov_b32 v9, 0
    v_mov_b32 v10, 0
    v_mov_b32 v11, 0
    v_mov_b32 v12, v{vA16}""")
    for u in range(10):
        k("ds_write_b128 v12, v[8:11]\nv_add_u32 v12, 16384, v12")
    k(f"""v_mul_u32_u24 v13, {TAB_ROW}, v0
    v_mov_b32 v29, 0x7fc00000
    v_add_u32 v28, 32, v13
    v_lshlrev_b32 v14, 10, v0
    v_add_u32 v14, {OFF_REC}, v14
    s_mul_i32 s{sTB}, s{sQ}, 65
    s_add_u32 s{sTB}, s{sTB}, s{sOB}
    s_lshl_b32 s{sTB}, s{sTB}, 5
    s_add_u32 s{sTB}, s{sTB}, {OFF_TAB}
    s_lshl_b32 s{sACC}, s{sACC}, 1
    s_mul_i32 s{sMOFF}, s{sQ}, {16*R*8}
    s_mov_b32 s{sIT}, 0
    s_waitcnt lgkmcnt(0)
    s_barrier
    L_p2_sstep:
    buffer_load_ushort v15, v13, s[{sREC}:{sREC+3}], s{sTB} offen
    buffer_load_ushort v16, v28, s[{sREC}:{sREC+3}], s{sTB} offen
    s_waitcnt vmcnt(0)
    L_p2_srec:
    v_cmp_lt_u32 vcc, v15, v16
    s_nop 1
    s_and_b64 exec, exec, vcc
    s_cbranch_execz L_p2_sdone
    v_mul_u32_u24 v17, 43691, v15
    v_lshrrev_b32 v17, 17, v17
    v_mad_i32_i24 v18, v17, -3, v15
    v_lshrrev_b32 v19, 6, v17
    v_lshl_add_u32 v19, v19, 20, v14
    v_and_b32 v17, 63, v17
    v_lshl_add_u32 v17, v17, 4, v19
    v_lshl_add_u32 v19, v18, 2, v17
    buffer_load_dword v20, v19, s[{sREC}:{sREC+3}], 0 offen
    buffer_load_dword v21, v17, s[{sREC}:{sREC+3}], 0 offen offset:12
    v_add_u32 v15, 1, v15
    v_mad_u32_u24 v18, v18, 10, 2
    s_waitcnt vmcnt(0)
    v_lshlrev_b32_sdwa v19, 3, v20 {SD} src1_sel:WORD_0
    buffer_load_dwordx2 v[22:23], v19, s[{sM}:{sM+3}], s{sMOFF} offen
    v_mad_u32_u16 v20, v20, 16, s{sACC} op_sel:[1,0,0,0]
    v_bfe_i32 v21, v21, v18, 10
    v_cmp_eq_i32 vcc, -512, v21
    v_cvt_f32_i32 v21, v21
    v_mul_f32 v21, {f2u(1.0/CQ)}, v21
    v_cndmask_b32 v21, v21, v29, vcc
    s_waitcnt vmcnt(0)
    v_lshlrev_b32 v24, 16, v22
    v_and_b32 v25, 0xffff0000, v22
    v_lshlrev_b32 v26, 16, v23
    v_and_b32 v27, 0xffff0000, v23
    v_mul_f32 v24, v21, v24
    v_mul_f32 v25, v21, v25
    v_mul_f32 v26, v21, v26
    v_mul_f32 v27, v21, v27
    ds_add_f32 v20, v24
    ds_add_f32 v20, v25 offset:4
    ds_add_f32 v20, v26 offset:8
    ds_add_f32 v20, v27 offset:12
    s_branch L_p2_srec
    L_p2_sdone:
    s_mov_b64 exec, -1
    s_add_u32 s{sTB}, s{sTB}, 2
    s_add_u32 s{sMOFF}, s{sMOFF}, {R*8}
    s_add_u32 s{sIT}, s{sIT}, 1
    s_cmp_lt_u32 s{sIT}, 16
    s_cbranch_scc1 L_p2_sstep
    s_waitcnt lgkmcnt(0)
    s_barrier
    s_mul_i32 s{sT0}, s{sQ}, {E*16}
    s_mul_i32 s{sT1}, s{sOB}, {R*16}
    s_add_u32 s{sSO}, s{sT0}, s{sT1}
    s_add_u32 s{sSO}, s{sSO}, {OFF_P32}
    v_mov_b32 v12, v{vA16}
    s_mov_b32 s{sIT}, 0
    L_p2_sout:
    v_cmp_gt_u32 vcc, {R*16}, v12
    ds_read_b128 v[8:11], v12
    s_nop 0
    s_and_b64 exec, exec, vcc
    s_cbranch_execz L_p2_sfin
    s_waitcnt lgkmcnt(0)
    buffer_store_dwordx4 v[8:11], v12, s[{sREC}:{sREC+3}], s{sSO} offen sc1
    s_waitcnt vmcnt(0)
    v_add_u32 v12, 16384, v12
    s_branch L_p2_sout
    L_p2_sfin:
    s_mov_b64 exec, -1
    s_waitcnt vmcnt(0) lgkmcnt(0)
    s_barrier
    s_branch L_p2_signal
    {end}:
    s_endpgm""")
    return k


def rnd2(k, a, b, t):
    k(f"""v_cvt_pk_bf16_f32 v{t}, v{a}, v{b}
    v_lshlrev_b32 v{a}, 16, v{t}
    v_and_b32 v{b}, 0xffff0000, v{t}""")


if __name__ == "__main__":
    if sys.argv[1] == "p2var":
        import json
        for n, oo in json.loads(sys.argv[2]).items():
            o1 = oo.pop("p1", {})
            only1 = oo.pop("only1", 0); tl = oo.pop("tl", 0); nempty = oo.pop("nempty", 0); stt = oo.pop("selftime", 0)
            if only1: o1.setdefault("cpf", 1)
            ks = [pass1(**o1)] if only1 else [pass1(**o1), pass2(opts=oo)]
            if tl: ks = [timeline(x, i) for i, x in enumerate(ks)]
            if stt: selftime(ks[0], ks[1])
            ls = list(ks)
            if nempty:
                e = K("e_kernel", 256, 64, 0, 8); e("s_endpgm"); ks.append(e)
                ls = ls[:1] + [e]*nempty + ls[1:]
            open(f"p2_{n}.s", "w").write(assemble_file(ks, ls))
    else:
        ks = [pass1(), pass2(force_slow=(len(sys.argv) > 2 and sys.argv[2] == "slow"))]
        open(sys.argv[1], "w").write(assemble_file(ks))
```

```python
import sys
from asmlib import *

C = 40000
NCH = 1024
R = 10000
CMAX = 40064
import os
INTAG = int(os.environ.get("INTAG", 1))
CQ = 511
NBLK = ((CMAX + 2) // 3 + 63) // 64
TAB_ROW = 4 * 65 * 32
TAB_BYTES = NCH * TAB_ROW
OFF_TAB = 0
OFF_INFO1 = OFF_TAB + TAB_BYTES
OFF_CNT = OFF_INFO1 + 4096
OFF_MC = OFF_CNT + 64 * 256
OFF_REC = 9 << 20
assert OFF_MC <= OFF_REC
OFF_P16 = OFF_REC + (NBLK << 20)
OFF_P32 = OFF_P16 + 4 * E * 8
assert OFF_P32 + 4 * E * 16 <= WS_BYTES
MAGIC_DIV = (2**32 + R - 1) // R
LDS_ALL = 163840
SD = "dst_sel:DWORD dst_unused:UNUSED_PAD src0_sel:DWORD"


import struct
f2u = lambda x: struct.unpack("<I", struct.pack("<f", x))[0]


class Cnt:
    def __init__(self, k, name, mx):
        self.k, self.name, self.mx, self.q = k, name, mx, []
        self.rec, self.forced = [], None
    def issue(self, tag=None):
        self.q.append(tag)
    def wait(self, tag):
        idx = [i for i, t in enumerate(self.q) if t == tag]
        n = min(len(self.q) - 1 - idx[-1], self.mx) if idx else None
        if self.forced is not None:
            f = self.forced[len(self.rec)]
            assert n is None or (f is not None and f <= n)
            n = f
        self.rec.append(n)
        if n is None:
            return
        self.k(f"s_waitcnt {self.name}({n})")
        if len(self.q) > n:
            self.q = self.q[len(self.q) - n:] if n else []


def emit_loop(k, cnts, body):
    n0, lab0 = len(k.L), k.nlab
    entry = [list(c.q) for c in cnts]
    recs = []
    for trial in range(3):
        for c in cnts: c.rec, c.forced = [], None
        k.first = trial == 0
        body()
        recs.append([list(c.rec) for c in cnts])
        del k.L[n0:]; k.nlab = lab0
    last = [list(c.q) for c in cnts]
    for i, c in enumerate(cnts):
        merged = []
        for col in zip(*[r[i] for r in recs]):
            v = [x for x in col if x is not None]
            merged.append(min(v) if v else None)
        c.q, c.rec, c.forced = entry[i], [], merged
    k.first = True
    body()
    for i, c in enumerate(cnts):
        c.forced, c.rec, c.q = None, [], last[i]


def stamp(k, i, sa, v=125, real=False):
    k(f"""s_waitcnt lgkmcnt(0)
    {'s_memrealtime' if real else 's_memtime'} s[{sa}:{sa+1}]
    s_waitcnt lgkmcnt(0)""")
    if isinstance(i, str):
        k(f"s_mov_b32 m0, {i}\nv_writelane_b32 v{v}, s{sa}, m0")
    else:
        k(f"v_writelane_b32 v{v}, s{sa}, {i}")


def stamp_dump(k, cond, sa, v=125, vt=126):
    lab = k.lab("nodump")
    k(cond)
    k(f"""s_cbranch_scc0 {lab}
    s_load_dwordx2 s[{sa}:{sa+1}], s[0:1], 96
    s_waitcnt lgkmcnt(0)
    s_mov_b32 s{sa+2}, 256
    s_mov_b32 s{sa+3}, 0x00020000
    v_and_b32 v{vt}, 63, v0
    v_lshlrev_b32 v{vt}, 2, v{vt}
    buffer_store_dword v{v}, v{vt}, s[{sa}:{sa+3}], 0 offen
    {lab}:""")


def timeline(k, idx):
    first = [i for i, l in enumerate(k.L) if "s_cbranch_scc1" in l][0]
    k.L[first+1:first+1] = ["    s_memrealtime s[98:99]", "    s_lshl_b32 s97, s2, 24", "    s_waitcnt lgkmcnt(0)", "    s_and_b32 s98, s98, 0xffffff", "    s_or_b32 m0, s97, s98"]
    k.L[first] = f"    s_cbranch_scc1 L_tl_{idx}"
    last = len(k.L) - 1
    assert "s_endpgm" in k.L[last]
    nw = k.block // 64
    k.L[last:last] = ["    " + l.strip() for l in f"""s_waitcnt vmcnt(0) lgkmcnt(0)
    s_load_dwordx2 s[4:5], s[0:1], 104
    s_memrealtime s[98:99]
    s_waitcnt lgkmcnt(0)
    s_mov_b32 s6, {WS_BYTES}
    s_mov_b32 s7, 0x00020000
    s_and_b32 s96, m0, 0xffffff
    s_lshr_b32 s97, m0, 24
    s_and_b32 s98, s98, 0xffffff
    s_mov_b64 exec, 1
    v_mov_b32 v2, s96
    v_mov_b32 v3, s98
    v_mov_b32 v4, 0
    s_lshl_b32 s97, s97, 3
    s_add_u32 s97, s97, {610000000 + idx*65536}
    buffer_store_dwordx2 v[2:3], v4, s[4:7], s97 offen""".split("\n")] + [f"L_tl_{idx}:"]
    k.sgpr = 102
    return k


def selftime(k1, k):
    first = [i for i, l in enumerate(k1.L) if "s_cbranch_scc1" in l][0]
    k1.L[first+1:first+1] = ["    " + l.strip() for l in f"""s_cmp_lg_u32 s2, 0
    s_cbranch_scc1 L_st1
    s_memrealtime s[8:9]
    s_load_dwordx2 s[4:5], s[0:1], 104
    s_waitcnt lgkmcnt(0)
    s_mov_b32 s6, {WS_BYTES}
    s_mov_b32 s7, 0x00020000
    s_mov_b32 s10, 620000000
    v_mov_b32 v2, s8
    buffer_store_dword v2, off, s[4:7], s10
    s_waitcnt vmcnt(0)""".split("\n")] + ["L_st1:"]
    first = [i for i, l in enumerate(k.L) if "s_cbranch_scc1" in l][0]
    k.L[first+1:first+1] = ["    s_memrealtime s[98:99]", "    s_memtime s[96:97]", "    s_waitcnt lgkmcnt(0)", "    v_mov_b32 v51, s98", "    v_mov_b32 v55, s96"]
    k.L[first] = "    s_cbranch_scc1 L_st"
    last = len(k.L) - 1
    k.L[last:last] = ["    " + l.strip() for l in """s_waitcnt vmcnt(0) lgkmcnt(0)
    s_mov_b64 exec, 1
    s_mov_b32 s10, 620000000
    buffer_load_dword v5, off, s[4:7], s10
    s_load_dwordx2 s[4:5], s[0:1], 96
    s_memrealtime s[98:99]
    s_memtime s[96:97]
    s_waitcnt lgkmcnt(0) vmcnt(0)
    s_mov_b32 s6, 256
    s_mov_b32 s7, 0x00020000
    v_sub_u32 v2, s98, v5
    v_sub_u32 v3, v51, v5
    v_sub_u32 v4, s96, v55
    s_cmp_lg_u32 s13, 0
    s_cbranch_scc1 L_st
    buffer_atomic_umax v2, off, s[4:7], 0
    buffer_atomic_umax v3, off, s[4:7], 0 offset:4
    buffer_atomic_umax v4, off, s[4:7], 0 offset:8""".split("\n")] + ["L_st:"]


def code_prefetch(k, sp, va, vd, label_from, nbytes):
    lab = k.lab("pc")
    k(f"""s_getpc_b64 s[{sp}:{sp+1}]
    {lab}:
    s_add_u32 s{sp}, s{sp}, {label_from}-{lab}
    s_addc_u32 s{sp+1}, s{sp+1}, 0
    v_lshlrev_b32 v{va}, 7, v0
    v_min_u32 v{va}, {nbytes}, v{va}
    global_load_dword v{vd}, v{va}, s[{sp}:{sp+1}]""")


def scan64(k, v, op="v_add_u32"):
    for sh in (1, 2, 4, 8):
        k(f"s_nop 1\n{op}_dpp v{v}, v{v}, v{v} row_shr:{sh} row_mask:0xf bank_mask:0xf bound_ctrl:0")
    k(f"s_nop 1\n{op}_dpp v{v}, v{v}, v{v} row_bcast:15 row_mask:0xa bank_mask:0xf")
    k(f"s_nop 1\n{op}_dpp v{v}, v{v}, v{v} row_bcast:31 row_mask:0xc bank_mask:0xf")


def scan16(k, v, op="v_add_u32"):
    for sh in (1, 2, 4, 8):
        k(f"s_nop 1\n{op}_dpp v{v}, v{v}, v{v} row_shr:{sh} row_mask:0xf bank_mask:0xf bound_ctrl:0")


def pass1(stflag="sc1", plan=None, diag=None, tabflag="sc1", cplan=None, nearly=0, rb=10, rsw=0, grp=2, contig=0, ibar="", cpf=2, flip=0, pre=5, mpos=0, mcopy=0, ltabat="pe", thr=2, thrf=None, thrs=0, thro=None, thre=None, abl="", late=1, tsch="|||||"):
    k = K("p1_kernel", 256, 1024, LDS_ALL, 128)
    def st_(n):
        if diag is not None:
            k(f"s_mul_i32 s82, s40, 12\ns_add_u32 s82, s82, {1+n}"); stamp(k, "s82", 80, v=5)
    vm = Cnt(k, "vmcnt", 63)
    sWS, sIN, sOUT, sANG, sREC, sTAB, sM = 4, 8, 12, 16, 20, 24, 28
    sCI, sOI, sOA, sT0, sT1, sNEG, sKC, sWAVE, sIT, sKF, sTO, sPERM = 32, 33, 34, 35, 36, 37, 38, 39, 40, 41, 42, 43
    sM9 = 44
    sNUL, sTOTAL, sBAD = 46, 54, 55
    sF4, sF2, sD3 = 48, 49, 50
    sE0, sE1 = 56, 64
    vA16, vA8, vTR, vONE, vNAN = 1, 2, 3, 4, 5
    TMP = list(range(6, 16))
    NPF = 4
    SLOT = [16 + 8*i for i in range(NPF)]
    RB = 48
    H, H2, CA, SP = 0, 16384, 16384, CMAX*4
    PRE = SP + 512
    sPAD = 53
    Q = [RB + 4*q for q in range(13)]
    B = [RB + 52 + 4*b for b in range(7)]
    XQ = 12
    Cr = lambda j: B[0] + j // 2
    LAND = {g: (SLOT[g], SLOT[g] + 4) for g in range(NPF)}
    LAND.update({4: (Q[6], Q[7]), 5: (Q[8], B[0]), 6: (Q[9], B[1]), 7: (Q[10], B[2]), 8: (Q[11], B[3]), 9: (Q[12], B[4])})
    tsch = [[int(c) for c in part] for part in tsch.split("|")]
    trest = [g for g in range(10) if not any(g in p for p in tsch)]
    wfree, pfree, WS_, PS_ = [B[6] + 3], [B[5] + x for x in range(4)] + [B[6] + x for x in range(3)], {}, {}
    def free_quad(r): wfree.extend([r, r + 1, r + 2]); pfree.append(r + 3)
    def place(g):
        I, O = LAND[g]
        if I in Q: free_quad(I)
        PS_[g] = [pfree.pop(0) for _ in range(2)]
        if O in Q: free_quad(O)
        WS_[g] = [wfree.pop(0) for _ in range(4)]
    for it in range(6):
        free_quad(Q[it])
        for g in tsch[it]:
            assert g < NPF + it
            place(g)
    for g in trest: place(g)
    assert not wfree and not pfree
    Wr = lambda j: WS_[j // 4][j & 3]
    Pr = lambda j: PS_[j // 4][(j >> 1) & 1]
    M9 = f"s_mov_b64 exec, s[{sM9}:{sM9+1}]"
    end = "L_p1_end"
    k(f"s_cmp_ge_u32 s2, 256\ns_cbranch_scc1 {end}")
    if flip: k(f"s_xor_b32 s2, s2, {flip}")
    k.ldptr(sWS, "ws"); k.ldptr(sIN, "idx_in"); k.ldptr(sOUT, "idx_out"); k.ldptr(sANG, "angle"); k.ldptr(sM, "m")
    k.ldptr(6, "ang_freq")
    if cpf:
        k("v_cmp_gt_u32 vcc, 256, v0\ns_nop 1\ns_cbranch_vccz L_p1_nopf")
        code_prefetch(k, 72, 14, 15, "L_p1_nopf", "L_p2_end-L_p1_nopf" if cpf == 2 else "L_p1_end-L_p1_nopf")
        k("L_p1_nopf:")
    k(f"""v_lshlrev_b32 v{vA16}, 4, v0
    v_lshlrev_b32 v{vA8}, 3, v0
    v_lshrrev_b32 v6, 6, v0
    v_mul_u32_u24 v{vTR}, {13*65536-64}, v6
    v_add_lshl_u32 v{vTR}, v{vTR}, v0, 4
    v_mov_b32 v{vONE}, 1
    v_mov_b32 v{vNAN}, 0
    v_readfirstlane_b32 s{sWAVE}, v6
    v_cmp_gt_u32 vcc, 784, v0
    """)
    def regroup(d, n):
        k(f"""s_and_b32 s{d}, s2, 7
        s_lshl_b32 s{d}, s{d}, {n}
        s_bfe_u32 s{sT0}, s2, {3 | (n << 16)}
        s_add_u32 s{d}, s{d}, s{sT0}
        s_and_b32 s{sT0}, s2, {255 & ~((8 << n) - 1)}
        s_add_u32 s{d}, s{d}, s{sT0}""")
    regroup(51, rsw); regroup(sCI, grp)
    nfull = 784 >> rb; part = 784 - (nfull << rb)
    k(f"""s_lshr_b32 s{sT0}, s{sWAVE}, {rb-6}
    s_mul_i32 s{sT1}, s{sT0}, {255*(16 << rb)}
    s_lshl_b32 s{sOI}, s51, {4+rb}
    s_add_u32 s{sOI}, s{sOI}, s{sT1}
    s_lshr_b32 s{sOA}, s{sOI}, 1
    s_mul_i32 s{sF4}, s51, {((1 << rb) - part)*16}
    s_cmp_ge_u32 s{sT0}, {nfull}
    s_cselect_b32 s{sF4}, s{sF4}, 0
    s_lshr_b32 s{sF2}, s{sF4}, 1
    """)
    if contig:
        k(f"""s_mul_i32 s{sOI}, s51, {C*4*(4 if contig == 2 else 1)}
        s_lshr_b32 s{sOA}, s{sOI}, 1
        s_mov_b32 s{sF4}, 0
        s_mov_b32 s{sF2}, 0""")
    GS = 1 if contig else 256
    RS = 1 if contig == 2 else 256
    k(f"""
    s_mov_b64 s[{sM9}:{sM9+1}], vcc
    s_waitcnt lgkmcnt(0)
    s_load_dword s3, s[6:7], 0""")
    k.srd_finish(sIN, T*4); k.srd_finish(sOUT, T*4); k.srd_finish(sANG, T*2)
    if contig == 2: k(f"s_add_u32 s{sIN+2}, s{sOI}, {C*16}\ns_mov_b32 s{sOUT+2}, s{sIN+2}")
    if diag is not None:
        stamp(k, 0, 80, v=5); stamp(k, 60, 80, v=5, real=True)

    def load_idx(g, which, nxt=False):
        srd = (sIN, sOUT)[which]; d = LAND[g][which]
        k(f"s_add_u32 s{sT0}, s{sOI}, {g*16384*GS + (RS*C*4 if nxt else 0)}")
        a = vA16
        if g == 9:
            a = d
            k(f"s_sub_u32 s{sT0}, s{sT0}, s{sF4}\nv_cndmask_b32 v{a}, 2.0, v{vA16}, s[{sM9}:{sM9+1}]")
        k(f"buffer_load_dwordx4 v[{d}:{d+3}], v{a}, s[{srd}:{srd+3}], s{sT0} offen nt"); vm.issue(f"g{g}")
    def load_ang(g):
        d = Cr(4*g)
        k(f"s_add_u32 s{sT0}, s{sOA}, {g*8192*GS}")
        a = vA8
        if g == 9:
            a = d
            k(f"s_sub_u32 s{sT0}, s{sT0}, s{sF2}\nv_cndmask_b32 v{a}, 2.0, v{vA8}, s[{sM9}:{sM9+1}]")
        k(f"buffer_load_dwordx2 v[{d}:{d+1}], v{a}, s[{sANG}:{sANG+3}], s{sT0} offen nt"); vm.issue(f"a{g}")

    for g in range(pre + 1):
        if g == mpos:
            k(f"""s_mul_i32 s{sT1}, s2, 20000
            s_add_u32 s{sM+2}, s{sT1}, 20000
            s_mov_b32 s{sM+3}, 0x00020000
            s_add_u32 s{sT0}, s{sT1}, 16384
            buffer_load_dwordx4 v[{RB}:{RB+3}], v{vA16}, s[{sM}:{sM+3}], s{sT1} offen {"nt" if mcopy else ""}
            buffer_load_dwordx4 v[{RB+4}:{RB+7}], v{vA16}, s[{sM}:{sM+3}], s{sT0} offen {"nt" if mcopy else ""}""")
            vm.issue("m"); vm.issue("m")
        if g < pre: load_idx(g, 0); load_idx(g, 1)
    k(f"""s_mov_b32 s{sREC}, s{sWS}
    s_mov_b32 s{sREC+1}, s{sWS+1}
    s_mov_b32 s{sREC+2}, 0
    s_mov_b32 s{sREC+3}, 0x00020000
    s_add_u32 s{sTAB}, s{sWS}, {OFF_TAB}
    s_addc_u32 s{sTAB+1}, s{sWS+1}, 0
    s_mov_b32 s{sTAB+2}, {OFF_MC - OFF_TAB}
    s_mov_b32 s{sTAB+3}, 0x00020000
    s_mov_b32 s{sNEG}, {((-R) & 0xffff) | ((0x8000 - R) << 16)}
    s_mov_b32 s{sBAD}, 0
    s_mov_b32 s{sD3}, 21845
    s_mov_b32 s52, 0x8000
    s_mov_b32 s{sKC}, {256 | (4 << 16)}
    s_mov_b32 s{sPERM}, 0x05040100
    s_mov_b32 s{sIT}, 0
    v_mov_b32 v8, 0
    v_mov_b32 v9, 0
    v_mov_b32 v10, 0
    v_mov_b32 v11, 0
    ds_write_b128 v{vA16}, v[8:11] offset:{H}
    v_min_u32 v7, 16, v0
    v_lshlrev_b32 v7, 2, v7
    v_add_u32 v7, {PRE}, v7
    ds_write_b32 v7, v8
    s_waitcnt lgkmcnt(0)
    s_lshl_b32 s3, s3, 16
    v_mov_b32 v12, s3
    v_mul_f32 v12, 0.15915494, v12
    s_nop 0
    v_readfirstlane_b32 s{sKF}, v12""")
    vm.wait("m")
    if mcopy:
        k(f"""s_add_u32 s{sM}, s{sWS}, {OFF_MC}
        s_addc_u32 s{sM+1}, s{sWS+1}, 0
        s_mul_i32 s{sT1}, s2, 20000
        s_add_u32 s{sT0}, s{sT1}, 16384
        buffer_store_dwordx4 v[{RB}:{RB+3}], v{vA16}, s[{sM}:{sM+3}], s{sT1} offen
        buffer_store_dwordx4 v[{RB+4}:{RB+7}], v{vA16}, s[{sM}:{sM+3}], s{sT0} offen
        s_nop 0""")
        vm.issue("mc"); vm.issue("mc")
    k("v_mov_b32 v12, 0x3f803f80")
    for i in range(8):
        k(f"v_and_b32 v{RB+i}, 0x7fff7fff, v{RB+i}")
    for i in range(8):
        k(f"v_pk_max_u16 v8, v8, v{RB+i}\nv_dot2c_f32_bf16 v9, v{RB+i}, v12")
    k(f"v_lshrrev_b32 v10, 16, v8\nv_and_b32 v8, 0xffff, v8\nv_max_u32 v8, v8, v10\ns_nop 0")
    scan64(k, 8, "v_max_u32"); scan64(k, 9, "v_add_f32")
    k(f"""s_lshl_b32 s{sT0}, s{sWAVE}, 4
    s_add_u32 s{sT0}, s{sT0}, {SP+64}
    v_mov_b32 v10, s{sT0}
    s_mov_b32 exec_lo, 0
    s_brev_b32 exec_hi, 1
    ds_write_b64 v10, v[8:9]
    s_mov_b64 exec, -1""")
    k("""s_waitcnt lgkmcnt(0)
    s_barrier
    s_branch L_p1_first""")

    QORD = [13, 6, 7, 0, 8, 1, 9, 2, 10, 3, 11, 4, 12, 5]
    STG = [B[b] + 2*x for b in (5, 6, 0, 1, 2, 3, 4) for x in range(2)]
    NST = 14
    PN = lambda q: (QORD.index(q) - 1) % 14
    def cread(n):
        pn = PN(QORD[n])
        k(f"ds_read_b64 v[{STG[n]}:{STG[n]+1}], v6 offset:{CA + pn*512}")
    def store_quad(q):
        r = Q[q] if q < 13 else XQ
        n = QORD.index(q); d = STG[n]; x = r + 3
        if q == 13:
            lab = k.lab("nox"); k(f"s_cmp_lg_u32 s{sWAVE}, 15\ns_cbranch_scc1 {lab}")
        if n < 4: k(f"s_waitcnt lgkmcnt({13-n if n < 3 else 0})")
        if late:
            k(f"v_lshlrev_b32 v{x}, 16, v{d}\nv_and_b32 v{d}, 0xffff0000, v{d}\nv_lshlrev_b32 v{d+1}, 16, v{d+1}")
            for y in (x, d, d+1): k(f"v_mul_f32 v{y}, s{sKF}, v{y}")
            for y in (x, d, d+1): k(f"v_fract_f32 v{y}, v{y}")
            for y in (x, d, d+1): k(f"v_cos_f32 v{y}, v{y}")
            for y in (x, d, d+1): k(f"v_fmaak_f32 v{y}, v10, v{y}, {0x4b400000 + 512}")
            k(f"v_lshlrev_b32 v{x}, 22, v{x}")
        else: k(f"v_lshlrev_b32 v{x}, 22, v{d}\nv_lshrrev_b32 v{d}, 16, v{d}")
        k(f"""v_alignbit_b32 v{x}, v{d}, v{x}, 10
        v_alignbit_b32 v{x}, v{d+1}, v{x}, 10
        v_xor_b32 v{x}, 0x80200800, v{x}""")
        k(f"s_mov_b32 s{sT1}, {PN(q) << 20}\nbuffer_store_dwordx4 v[{r}:{r+3}], v{vTR}, s[{sREC}:{sREC+3}], s{sT1} offen {stflag}")
        if q == 13: k(f"{lab}:")

    def transform(g):
        I, O = LAND[g]
        t = TMP[0:4]
        for j in range(4): k(f"v_perm_b32 v{t[j]}, v{O+j}, v{I+j}, s{sPERM}")
        for j in range(4): k(f"v_mul_hi_u32_u24 v{I+j}, {MAGIC_DIV}, v{I+j}\nv_mul_hi_u32_u24 v{O+j}, {MAGIC_DIV}, v{O+j}")
        for j in range(4): k(f"v_lshl_or_b32 v{I+j}, v{O+j}, 16, v{I+j}")
        for j in range(4): k(f"v_dot2_u32_u16 v{O+j}, v{I+j}, s{sKC}, 0")
        for j in range(4): k(f"v_pk_mad_u16 v{t[j]}, v{I+j}, s{sNEG}, v{t[j]}")
        for j in range(4): k(f"ds_add_u32 v{O+j}, v{vONE} offset:{H}")
        if INTAG:
            for j in range(4): k(f"v_pk_mad_u16 v{t[j]}, v{I+j}, s52, v{t[j]} op_sel:[1,0,0] op_sel_hi:[1,1,1]")
        k(f"v_perm_b32 v{Pr(4*g+2)}, v{O+3}, v{O+2}, s{sPERM}\nv_perm_b32 v{Pr(4*g)}, v{O+1}, v{O}, s{sPERM}")
        for j in range(4): k(f"v_or_b32 v{Wr(4*g+j)}, 0x40000000, v{t[j]}")

    def cosines(g, t, vq):
        vm.wait(f"a{g}")
        A = Cr(4*g)
        if late:
            if diag is None: k(f"v_pk_maximum3_f16 v{vNAN}, v{A}, v{A+1}, v{vNAN}")
            return
        k(f"""v_lshlrev_b32 v{t[0]}, 16, v{A}
        v_lshlrev_b32 v{t[1]}, 16, v{A+1}
        v_and_b32 v{A}, 0xffff0000, v{A}
        v_and_b32 v{A+1}, 0xffff0000, v{A+1}""")
        r = [t[0], A, t[1], A+1]
        for x in r: k(f"v_mul_f32 v{x}, s{sKF}, v{x}")
        for x in r: k(f"v_fract_f32 v{x}, v{x}")
        for x in r: k(f"v_cos_f32 v{x}, v{x}")
        for x in r: k(f"v_fmaak_f32 v{x}, v{vq}, v{x}, {0x4b400000 + 512}")
        if diag is None: k(f"v_or3_b32 v{vNAN}, v{r[0]}, v{r[1]}, v{vNAN}\nv_or3_b32 v{vNAN}, v{r[2]}, v{r[3]}, v{vNAN}")
        k(f"v_perm_b32 v{A}, v{A}, v{t[0]}, s{sPERM}\nv_perm_b32 v{A+1}, v{A+1}, v{t[1]}, s{sPERM}")

    cplan = (cplan or "r10 r11 r13 r14 r16 r17 r19 r21 r24 r27").split()
    if late: cplan = [f"r2{g}" for g in range(10)]
    def cos_at(site, t, vq, masked=False):
        for g in range(10):
            if cplan[g] == site:
                if g == 9 and not masked: k(M9)
                if g != 9 and masked: k("s_mov_b64 exec, -1")
                cosines(g, t, vq)
                if g == 9 and not masked: k("s_mov_b64 exec, -1")
                if g != 9 and masked: k(M9)

    loop = "L_p1_loop"
    k(f"{loop}:")
    plan0 = plan
    def body():
        save = list(vm.q)
        late = list(range(NST, 14))
        def throttle(n):
            if n is None: return
            lab = k.lab("thr")
            k(f"s_cbranch_vccz {lab}\ns_waitcnt vmcnt({n})\n{lab}:")
            if thro is not None: k(f"s_waitcnt vmcnt({thro})")
        def sq(q):
            store_quad(q)
            if q != 13: vm.issue("st")
            if thrs: throttle(thr)
        if thr is not None: k("s_getreg_b32 s51, hwreg(HW_REG_XCC_ID, 0, 1)\ns_cmp_eq_u32 s51, 0\ns_cselect_b64 vcc, -1, 0")
        def ingest(g, live=True):
            if live: vm.wait(f"g{g}")
            else: vm.wait("none")
            if g == 9: k(M9)
            transform(g)
            if g == 9: k("s_mov_b64 exec, -1")
        sq(13); sq(6)
        for g in range(NPF, 10):
            sq(g + 3); sq(g - NPF)
            load_idx(g, 0)
            if thrs: throttle(thr)
            load_idx(g, 1)
            throttle(thr)
            for x in tsch[g - NPF]: ingest(x, not k.first)
        if k.first: vm.q = save
        else: save = list(vm.q)
        k("s_branch L_p1_join\nL_p1_first:")
        for g in range(pre, 10): load_idx(g, 0); load_idx(g, 1)
        for p in tsch:
            for x in p: ingest(x, k.first)
        if not k.first: vm.q = save
        k("L_p1_join:")
        st_(0)
        plan = list(plan0.split() if plan0 else "pre b1 b2 po1 po2 po3 po5 po6 po7 po8 r10 r13 r16 r19 rb1 r22 r25 r28".split())
        pend = [("a", g) for g in range(10)] + [(g, w) for g in range(NPF) for w in range(2)]
        def pf(site):
            while plan and plan[0] == site:
                plan.pop(0)
                a, b = pend.pop(0)
                if a == "a": load_ang(b)
                else:
                    assert a < NPF or site == "rb2" or (site[:2] == "r2" and int(site[2]) >= 2*(a - 5) + 1), site
                    load_idx(a, b, nxt=True)
        for g in trest:
            ingest(g)
            pf(f"in{g}")
        pf("pre")
        st_(1)
        k(f"""s_lshl_b32 s{sT0}, s{sCI}, 10
        s_add_u32 s{sT0}, s{sT0}, {OFF_REC}
        s_add_u32 s{sREC}, s{sWS}, s{sT0}
        s_addc_u32 s{sREC+1}, s{sWS+1}, 0""")
        k(f"""s_lshl2_add_u32 s{sT0}, s{sWAVE}, {PRE}
        v_mov_b32 v13, s{sT0}
        v_mov_b32 v7, 2.0
        v_and_b32 v6, 63, v0
        s_mov_b32 s{sT1}, {PRE}
        s_lshl_b32 s{sT0}, 0x1fffe, s{sWAVE}
        s_and_b32 s{sT0}, s{sT0}, 0x1ffff
        s_mov_b32 exec_hi, 0
        s_mov_b32 exec_lo, s{sT0}
        v_lshl_add_u32 v7, v6, 2, s{sT1}
        s_mov_b64 exec, -1
        v_mov_b32 v14, {PRE + 64}
        s_mov_b32 s{sPAD}, 2
        s_waitcnt lgkmcnt(0)
        s_barrier""")
        st_(2)
        k(f"ds_read_b128 v[8:11], v{vA16} offset:{H}")
        pf("b1")
        lab = k.lab("nomask")
        k(f"""L_p1_redo:
        s_waitcnt lgkmcnt(0)
        v_min3_u32 v12, v8, v9, v10
        v_min_u32 v12, v12, v11
        v_cmp_gt_u32 vcc, s{sPAD}, v12
        s_nop 0
        s_mov_b64 s[{sNUL}:{sNUL+1}], vcc
        s_cbranch_vccz {lab}""")
        for i in range(4):
            k(f"""v_cmp_eq_u32 s[{sE0+2*i}:{sE0+2*i+1}], 0, v{8+i}
            v_cmp_ge_u32 s[{sE1+2*i}:{sE1+2*i+1}], 1, v{8+i}
            v_max_u32 v{8+i}, 2, v{8+i}""")
        k(f"""{lab}:
        v_add_u32 v9, v8, v9
        v_add_u32 v10, v9, v10
        v_add_u32 v11, v10, v11
        s_nop 1
        v_add_u32_dpp v6, v11, v11 row_shr:1 row_mask:0xf bank_mask:0xf bound_ctrl:0""")
        for d in ("row_shr:2 row_mask:0xf bank_mask:0xf bound_ctrl:0", "row_shr:4 row_mask:0xf bank_mask:0xf bound_ctrl:0",
                  "row_shr:8 row_mask:0xf bank_mask:0xf bound_ctrl:0", "row_bcast:15 row_mask:0xa bank_mask:0xf", "row_bcast:31 row_mask:0xc bank_mask:0xf"):
            k(f"s_nop 1\nv_add_u32_dpp v6, v6, v6 {d}")
        k(f"""s_nop 0
        v_readlane_b32 s{sT0}, v6, 63
        v_sub_u32 v6, v6, v11
        v_add_u32 v8, v8, v6
        v_mov_b32 v12, s{sT0}
        ds_add_u32 v7, v12
        v_add_u32 v9, v9, v6
        v_add_u32 v10, v10, v6
        s_waitcnt lgkmcnt(0)
        s_barrier
        ds_read_b32 v12, v14
        ds_read_b32 v11, v13""")
        pf("b2")
        k(f"""s_waitcnt lgkmcnt(1)
        v_readfirstlane_b32 s{sTOTAL}, v12
        s_waitcnt lgkmcnt(0)
        s_cmp_ge_u32 s{sTOTAL}, {CMAX-1}
        s_cbranch_scc0 L_p1_fits
        s_barrier
        v_mov_b32 v12, 0
        ds_write_b32 v7, v12
        s_mov_b32 s{sPAD}, 0
        s_mov_b32 s{sBAD}, 1
        s_waitcnt lgkmcnt(0)
        s_barrier
        ds_read_b128 v[8:11], v{vA16} offset:{H}
        s_branch L_p1_redo
        L_p1_fits:
        s_mov_b64 exec, 1
        v_mov_b32 v7, {H2 + 8192}
        ds_write_b16 v7, v12
        s_mov_b64 exec, -1
        v_add_u32 v12, v11, v6
        v_add_u32 v13, v11, v8
        v_add_u32 v14, v11, v9
        v_add_u32 v15, v11, v10
        ds_write_b128 v{vA16}, v[12:15] offset:{H}
        s_add_u32 s{sT0}, s{sTOTAL}, 2
        s_mul_hi_u32 s{sT0}, s{sT0}, {(2**32 + 2)//3}
        v_perm_b32 v15, v15, v14, s{sPERM}
        v_perm_b32 v14, v13, v12, s{sPERM}
        ds_write_b64 v{vA8}, v[14:15] offset:{H2}
        s_lshl_b32 s{sT0}, s{sT0}, 4
        s_add_u32 s{sT0}, s{sT0}, {(13 << 24) - 13*16384}
        s_min_u32 s{sREC+2}, s{sT0}, {(13 << 24) + 1024}
        s_waitcnt lgkmcnt(0)
        s_barrier""")
        st_(3)
        pf("b3")
        def lin_table():
            lab = k.lab("notab")
            k(f"""s_cmp_gt_u32 s{sWAVE}, 8
            s_cbranch_scc1 {lab}
            v_lshrrev_b32 v6, 1, v0
            v_mul_u32_u24 v7, 1009, v6
            v_lshrrev_b32 v7, 16, v7
            v_mul_u32_u24 v7, {1024 - 65}, v7
            v_and_b32 v8, 1, v0
            v_lshl_add_u32 v7, v8, 9, v7
            v_add_lshl_u32 v13, v7, v6, 1""")
            for x in range(8): k(f"ds_read_u16 v{6+x}, v13 offset:{H2 + 128*x}")
            k(f"s_mul_i32 s{sT0}, s{sCI}, {TAB_ROW}\ns_add_u32 s{sTAB+2}, s{sT0}, {TAB_ROW}")
            for x in range(4): k(f"s_waitcnt lgkmcnt({6-2*x})\nv_perm_b32 v{6+x}, v{7+2*x}, v{6+2*x}, s{sPERM}")
            k(f"buffer_store_dwordx4 v[6:9], v{vA16}, s[{sTAB}:{sTAB+3}], s{sT0} offen {tabflag}\ns_nop 1\n{lab}:")
        if ltabat == "b3": lin_table()
        def pos_issue(g):
            t = TMP[(g % 2)*4:]
            if g == 9: k(M9)
            for i in range(2): k(f"v_and_b32 v{t[2*i]}, 0xffff, v{Pr(4*g+2*i)}\nv_lshrrev_b32 v{t[2*i+1]}, 16, v{Pr(4*g+2*i)}")
            for i in range(4): k(f"ds_add_rtn_u32 v{t[i]}, v{t[i]}, v{vONE} offset:{H}")
            if g == 9: k("s_mov_b64 exec, -1")
        k("s_nop 0")
        pos_issue(0)
        for g in range(10):
            if g < 9:
                pos_issue(g+1)
                k("s_waitcnt lgkmcnt(4)")
            else:
                k("s_waitcnt lgkmcnt(0)")
            t = TMP[(g % 2)*4:]
            for i in range(2): k(f"v_perm_b32 v{Pr(4*g+2*i)}, v{t[2*i+1]}, v{t[2*i]}, s{sPERM}")
            if f"po{g}" in cplan:
                k(f"v_mov_b32 v{t[2]}, {f2u(float(CQ))}"); cos_at(f"po{g}", t[0:2], t[2])
            pf(f"po{g}")
        if ltabat == "pe": lin_table()
        st_(4)
        k("s_barrier")
        st_(5)
        lab = k.lab("nonull")
        k(f"""s_lshl_b32 s{sT0}, s{sTOTAL}, 2
        v_mov_b32 v6, s{sT0}
        v_mov_b32 v7, 0
        v_mov_b32 v12, {f2u(float(CQ))}
        s_mov_b64 exec, 1
        ds_write2_b32 v6, v7, v7 offset0:0 offset1:1
        s_cmp_eq_u64 s[{sNUL}:{sNUL+1}], 0
        s_cbranch_scc1 {lab}""")
        for i in range(4):
            k(f"""s_mov_b64 exec, s[{sE1+2*i}:{sE1+2*i+1}]
            v_lshlrev_b32_sdwa v6, 2, v{14+i//2} {SD} src1_sel:WORD_{i & 1}
            ds_write_b32 v6, v7 offset:4
            s_mov_b64 exec, s[{sE0+2*i}:{sE0+2*i+1}]
            ds_write_b32 v6, v7""")
        k(f"{lab}:\ns_mov_b64 exec, -1")
        for g in range(10):
            if g == 9: k(M9)
            for i in range(4): k(f"v_lshlrev_b32_sdwa v{6+i}, 2, v{Pr(4*g+i)} {SD} src1_sel:WORD_{i & 1}")
            for i in range(4): k(f"ds_write_b32 v{6+i}, v{Wr(4*g+i)}")
            cos_at(f"r1{g}", (10, 11), 12, g == 9)
            if g == 9: k("s_mov_b64 exec, -1")
            pf(f"r1{g}")
        k(f"""s_mul_i32 s{sT0}, s{sWAVE}, {(832-64)*12}
        v_mad_u32_u24 v6, v0, 12, s{sT0}
        s_waitcnt lgkmcnt(0)
        s_barrier""")
        st_(6)
        lab = k.lab("nox")
        k(f"s_cmp_lg_u32 s{sWAVE}, 15\ns_cbranch_scc1 {lab}")
        for x in range(3): k(f"ds_read_b32 v{XQ+x}, v6 offset:{13*768 + 4*x}")
        k(f"{lab}:")
        for q in range(13):
            for x in range(3): k(f"ds_read_b32 v{Q[q]+x}, v6 offset:{PN(q)*768 + 4*x}")
        pf("rb1")
        k(f"""v_mov_b32 v8, 0
        v_mov_b32 v9, 0
        v_mov_b32 v10, 0
        v_mov_b32 v11, 0
        v_mov_b32 v15, 16384
        v_min_u32 v7, 16, v0
        v_lshlrev_b32 v7, 2, v7
        v_add_u32 v7, {PRE}, v7
        s_waitcnt lgkmcnt(0)
        s_barrier
        ds_write_b128 v{vA16}, v[8:11] offset:{H}
        ds_write_b32 v7, v8
        s_nop 1""")
        st_(7)
        for g in range(10):
            if f"r2{g}" in cplan:
                if not late: k(f"v_mov_b32 v6, {f2u(float(CQ))}")
                cos_at(f"r2{g}", (10, 11), 6)
            if g == 9: k(M9)
            for i in range(4): k(f"v_mad_u32_u16 v{6+i}, v{Pr(4*g+i)}, s{sD3}, v15 op_sel:[{i & 1},0,0,0]")
            for i in range(4): k(f"v_add_u32_sdwa v{6+i}, v{6+i}, v{Pr(4*g+i)} dst_sel:DWORD dst_unused:UNUSED_PAD src0_sel:WORD_1 src1_sel:WORD_{i & 1}")
            for i in range(4): k(f"v_add_u32 v{6+i}, v{6+i}, v{6+i}")
            for i in range(4): k(f"ds_write_b16{'_d16_hi' if i & 1 else ''} v{6+i}, v{Cr(4*g+i)} offset:{CA}")
            if g == 9: k("s_mov_b64 exec, -1")
            pf(f"r2{g}")
        k(f"""s_mul_i32 s{sT0}, s{sWAVE}, {(832-64)*8}
        v_add_u32 v6, s{sT0}, v{vA8}
        v_mov_b32 v10, {f2u(float(CQ))}
        s_waitcnt lgkmcnt(0)
        s_barrier""")
        st_(8)
        for n in range(NST): cread(n)
        pf("rb2")
        assert not plan and not pend, (plan, pend)
    i0 = len(k.L)
    emit_loop(k, [vm], body)
    if abl:
        L = k.L[i0:]
        if "r2h" in abl: L = [l for l in L if "ds_write_b16_d16_hi" not in l]
        if "rb1" in abl:
            n = [i for i, l in enumerate(L) if "ds_read_b32" in l and ", v6 offset" in l]
            L = [l for i, l in enumerate(L) if i not in n[1::2]]
        if "cos" in abl: L = [l for l in L if not any(x in l for x in ("v_fract", "v_cos", "v_mul_f32"))]
        if "fract" in abl: L = [l for l in L if "v_fract" not in l]
        k.L[i0:] = L
    k(f"""s_add_u32 s{sCI}, s{sCI}, 256
    s_add_u32 s{sOI}, s{sOI}, {RS*C*4}
    s_add_u32 s{sOA}, s{sOA}, {RS*C*2}
    s_add_u32 s{sIT}, s{sIT}, 1
    s_cmp_lt_u32 s{sIT}, 4
    s_cbranch_scc1 {loop}""")
    if diag is not None: stamp(k, 56, 80, v=5)
    for q in QORD:
        store_quad(q)
        if thre is not None: k(f"s_waitcnt vmcnt({thre})")
    if diag is not None:
        stamp(k, 57, 80, v=5); k("s_waitcnt vmcnt(0)"); stamp(k, 58, 80, v=5); stamp(k, 61, 80, v=5, real=True)
        stamp_dump(k, f"s_lshl_b32 s82, s2, 4\ns_or_b32 s82, s82, s{sWAVE}\ns_cmp_eq_u32 s82, {diag}", 84, v=5, vt=6)
        k("v_mov_b32 v5, 0")
    if late: k(f"v_and_b32 v6, 0x7c007c00, v{vNAN}\nv_add_u32 v6, 0x04000400, v6\nv_and_b32 v6, 0x80008000, v6")
    else: k(f"v_and_b32 v6, 0x34800000, v{vNAN}")
    k(f"""v_cmp_ne_u32 vcc, 0, v6
    s_lshl_b32 s{sT0}, s{sWAVE}, 4
    s_add_u32 s{sT0}, s{sT0}, {SP+64+8}
    v_mov_b32 v10, s{sT0}
    s_cmp_lg_u64 vcc, 0
    s_cselect_b32 s{sT1}, 1, s{sBAD}
    v_mov_b32 v11, s{sT1}
    ds_write_b32 v10, v11
    s_waitcnt lgkmcnt(0)
    s_barrier
    s_cmp_lg_u32 s{sWAVE}, 0
    s_cbranch_scc1 {end}
    v_and_b32 v6, 15, v0
    v_lshlrev_b32 v6, 4, v6
    v_add_u32 v6, {SP+64}, v6
    ds_read_b128 v[8:11], v6
    s_waitcnt lgkmcnt(0)""")
    scan16(k, 8, "v_max_u32"); scan16(k, 9, "v_add_f32"); scan16(k, 10, "v_or_b32")
    k(f"""s_lshl_b32 s{sT0}, s2, 3
    s_mov_b32 s{sTAB+2}, {OFF_MC - OFF_TAB}
    s_add_u32 s{sT0}, s{sT0}, {TAB_BYTES}
    v_mov_b32 v6, 0
    v_lshl_or_b32 v8, v10, 16, v8
    s_mov_b64 exec, 0x8000
    buffer_store_dwordx2 v[8:9], v6, s[{sTAB}:{sTAB+3}], s{sT0} offen
    s_lshl_b32 s{sT0}, s2, 8
    s_add_u32 s{sT0}, s{sT0}, {OFF_CNT - OFF_TAB}
    buffer_store_dword v6, v6, s[{sTAB}:{sTAB+3}], s{sT0} offen
    {end}:
    s_endpgm""")
    return k


BIAS = 0x4000
NW = 4
CAP = 64 * (NW + 1)


def pass2(force_slow=False, opts=None):
    o = dict(na=2, stamp=0)
    o.update(opts or {})
    k = K("p2_kernel", 256, 1024, LDS_ALL, 128, sgpr=102)
    vm = Cnt(k, "vmcnt", 63); lg = Cnt(k, "lgkmcnt", 15)
    sREC, sM = 4, 8
    sOB, sQ, sWAVE, sT0, sT1, sMAG, sPERM, sTILE, sSCR, sFAIL = 3, 12, 13, 14, 15, 16, 17, 18, 19, 2
    sMG2 = 20
    MF = o.get("mf", 1); vID = 58
    sMOFF, sK10, sIT, sTB, sSO, sWOFF = 22, 23, 24, 25, 26, 27
    sTOT, sTOTC = 28, 51
    sMM = 30
    sK1, sK2 = 40, 41
    sRW = 44
    sUNIT, sJ, sACC, sTOTN = 48, 49, 50, 29
    sWR, sWS_, sWD, sWU = 52, 68, 84, 28
    GH = [72, 112]
    CEN = [53, 54, 56, 57]
    DD = [60, 61]
    vST = 52
    sDI = 100
    SQ = 3.798282560733770
    TILE, SP = 80000, 160000
    MOFF = 136
    vBM = 127
    R2 = o.get("r2", 1)
    RAW = [8 + 4*j for j in range(NW + 1)]
    OS, OE = 28, 36
    RT = 44
    vK3 = 50
    GD = 64
    MP = 88
    TM = list(range(108, 122))
    vA16, vL16, vWA, vCHK, vZ, vSC, vMK = 1, 2, 3, 4, 5, 6, 7
    vWA2, vS2 = 124, 126
    end = "L_p2_end"
    k(f"s_cmp_ge_u32 s2, 256\ns_cbranch_scc1 {end}")
    if o["stamp"]:
        k("v_mov_b32 v125, 0"); stamp(k, 0, 42); stamp(k, 60, 42, real=True)
    k.ldptr(sREC, "ws")
    k.ldptr(sDI, "dist")
    mcopy = o.get("mcopy", 0)
    if not mcopy: k.ldptr(sM, "m")
    if o.get("cpf"):
        k("v_cmp_gt_u32 vcc, 128, v0\ns_nop 1\ns_cbranch_vccz L_p2_nopf")
        code_prefetch(k, 52, 122, 123, "L_p2_nopf", "L_p2_slow-L_p2_nopf")
        k("L_p2_nopf:")
    k("""s_load_dwordx2 s[30:31], s[0:1], 40
    s_load_dwordx4 s[32:35], s[0:1], 56
    s_load_dwordx4 s[36:39], s[0:1], 72""")
    k(f"""s_and_b32 s{sT0}, s2, 7
    s_lshr_b32 s{sJ}, s2, 3
    s_and_b32 s{sOB}, s{sT0}, 1
    s_lshl_b32 s{sOB}, s{sOB}, 5
    s_add_u32 s{sOB}, s{sOB}, s{sJ}
    s_lshr_b32 s{sQ}, s{sT0}, 1
    v_lshrrev_b32 v{TM[0]}, 6, v0
    v_lshlrev_b32 v{vA16}, 4, v0
    v_and_b32 v{TM[1]}, 63, v0
    v_readfirstlane_b32 s{sWAVE}, v{TM[0]}
    v_lshlrev_b32 v{TM[3]}, 4, v{TM[1]}
    v_lshrrev_b32 v{TM[2]}, 2, v{TM[1]}
    v_mul_u32_u24 v{TM[2]}, {TAB_ROW - 64}, v{TM[2]}
    v_add_u32 v{TM[2]}, v{TM[2]}, v{TM[3]}
    s_mul_i32 s{sT0}, s{sQ}, 65
    s_add_u32 s{sT0}, s{sT0}, s{sOB}
    s_lshl_b32 s{sT0}, s{sT0}, 5
    s_mul_i32 s{sT1}, s{sWAVE}, {64*TAB_ROW}
    s_add_u32 s{sT0}, s{sT0}, s{sT1}
    s_add_u32 s{sTB}, s{sT0}, {OFF_TAB}
    s_mul_i32 s{sMOFF}, s{sQ}, {16*R*8}
    s_mov_b32 s{sFAIL}, {1 if force_slow else 0}
    s_waitcnt lgkmcnt(0)""")
    k.srd_finish(sREC, WS_BYTES)
    if mcopy: k(f"s_add_u32 s{sM}, s{sREC}, {OFF_MC}\ns_addc_u32 s{sM+1}, s{sREC+1}, 0")
    k(f"s_add_u32 s{sM+2}, s{sMOFF}, {16*R*8}\ns_mov_b32 s{sM+3}, 0x00020000")
    for i in range(4):
        k(f"s_add_u32 s{sT1}, s{sTB}, {16*i*TAB_ROW}\nbuffer_load_dwordx4 v[{OS+4*i}:{OS+4*i+3}], v{TM[2]}, s[{sREC}:{sREC+3}], s{sT1} offen"); vm.issue(f"tab{i}")
    k(f"""s_load_dwordx4 s[40:43], s[30:31], 0
    s_load_dwordx16 s[{sWR}:{sWR+15}], s[32:33], 0
    s_load_dwordx16 s[{sWS_}:{sWS_+15}], s[34:35], 0
    s_load_dwordx8 s[{sWD}:{sWD+7}], s[36:37], 0
    s_load_dwordx8 s[92:99], s[38:39], 0""")
    def cnt_add(v, rtn):
        k(f"""s_lshl_b32 s{sT0}, s{sOB}, 8
        s_add_u32 s{sT0}, s{sT0}, {OFF_CNT}
        s_mov_b64 exec, 1
        buffer_atomic_add v{v}, off, s[{sREC}:{sREC+3}], s{sT0} {'sc0' if rtn else ''}
        s_mov_b64 exec, -1""")
    k(f"""v_mov_b32 v{vST}, 0x100
    s_cmp_lg_u32 s{sWAVE}, 0
    s_cbranch_scc1 L_p2_noann""")
    cnt_add(vST, False)
    k("L_p2_noann:")

    mplan = o.get("mplan", ["a3", "a9", "g0", "g1", "a0"])
    def mload(only=None, ahead=False):
        for u in range(5):
            if only is not None and u not in only: continue
            k(f"s_add_u32 s{sT0}, s{sMOFF}, {u*16384 + (R*8 if ahead else 0)}\nbuffer_load_dwordx4 v[{MP+4*u}:{MP+4*u+3}], v{vA16}, s[{sM}:{sM+3}], s{sT0} offen"); vm.issue("m")
    def mwrite(us=range(5)):
        for u in us:
            k(f"ds_write_b128 v{vWA if u < 4 else vWA2}, v[{MP+4*u}:{MP+4*u+3}] offset:{(u & 3)*16384}"); lg.issue("w")
    def dist_loads(sl):
        k(f"""s_lshl2_add_u32 s{sT0}, s{sOB}, s{sl}
        s_mul_i32 s{sT0}, s{sT0}, 5000
        s_add_u32 s{sT1}, s{sT0}, 4096
        v_min_u32 v{DD[1]}, 225, v0
        v_lshl_add_u32 v{DD[0]}, v0, 2, s{sT0}
        v_lshl_add_u32 v{DD[1]}, v{DD[1]}, 2, s{sT1}
        global_load_dword v{DD[0]}, v{DD[0]}, s[{sDI}:{sDI+1}] {o.get("dflag", "nt")}
        global_load_dword v{DD[1]}, v{DD[1]}, s[{sDI}:{sDI+1}] {o.get("dflag", "nt")}""")
    def gates(i):
        T = [14 + 2*r for r in range(8)]
        CA_, Gf, dd, tmp = 36, GH[i], 30, 32
        rnd = o.get("rnd", 1)
        k(f"v_lshlrev_b32 v{dd}, 16, v{DD[i]}\nv_and_b32 v{dd+1}, 0xffff0000, v{DD[i]}")
        if i == 0:
            for x in range(4): k(f"v_lshlrev_b32 v{CA_+2*x}, 16, v{CEN[x]}\nv_and_b32 v{CA_+2*x+1}, 0xffff0000, v{CEN[x]}")
        def rounds():
            if rnd:
                for r in range(8): rnd2(k, T[r], T[r]+1, tmp)
        for r in range(8):
            c0 = CA_ + (r & ~1)
            k(f"v_pk_add_f32 v[{T[r]}:{T[r]+1}], v[{dd}:{dd+1}], v[{c0}:{c0+1}] op_sel:[0,{r & 1}] op_sel_hi:[1,{r & 1}] neg_lo:[0,1] neg_hi:[0,1]")
        rounds()
        for r in range(8): k(f"v_pk_mul_f32 v[{T[r]}:{T[r]+1}], v[{T[r]}:{T[r]+1}], v[{T[r]}:{T[r]+1}]")
        rounds()
        k(f"v_mov_b32 v{dd}, {f2u(10.0 if rnd else SQ*SQ)}\nv_mov_b32 v{dd+1}, 0x3fb8aa3b")
        for r in range(8): k(f"v_pk_mul_f32 v[{T[r]}:{T[r]+1}], v[{T[r]}:{T[r]+1}], v[{dd}:{dd+1}] op_sel:[0,0] op_sel_hi:[1,0]")
        if rnd:
            rounds()
            for r in range(8): k(f"v_pk_mul_f32 v[{T[r]}:{T[r]+1}], v[{T[r]}:{T[r]+1}], v[{dd}:{dd+1}] op_sel:[0,1] op_sel_hi:[1,1]")
        for r in range(8): k(f"v_exp_f32 v{T[r]}, -v{T[r]}\nv_exp_f32 v{T[r]+1}, -v{T[r]+1}")
        for p in range(4):
            for e in range(2): k(f"v_cvt_pk_bf16_f32 v{T[2*p]+e}, v{T[2*p]+e}, v{T[2*p+1]+e}")
        for p in range(4):
            for dst, base in ((Gf, sWS_), (Gf + 8, sWR)):
                for c in range(4):
                    for e in range(2):
                        k(f"v_dot2_f32_bf16 v{dst+2*c+e}, v{T[2*p]+e}, s{base+4*p+c}, {'0' if p == 0 else 'v%d' % (dst+2*c+e)}")
    def gates2():
        lab = k.lab("g1")
        gates(0)
        k(f"s_cmp_ge_u32 s{sWAVE}, 4\ns_cbranch_scc1 {lab}")
        gates(1)
        k(f"{lab}:")
    mload()
    k(f"s_mov_b32 s{sT1}, {OFF_INFO1}")
    for i in range(2):
        k(f"buffer_load_dwordx4 v[{GD+16+4*i}:{GD+19+4*i}], v{TM[3]}, s[{sREC}:{sREC+3}], s{sT1} offen offset:{1024*i}"); vm.issue("info")
    assert CAP % 64 == 0
    k(f"""v_lshlrev_b32 v{vL16}, 10, v{TM[1]}
    v_mov_b32 v{vK3}, 21845
    v_add_u32 v{vWA}, {TILE}, v{vA16}
    v_add_u32 v{vWA2}, {TILE + 65536}, v{vA16}
    v_add_u32 v{TM[5]}, 65536, v{vA16}
    v_mov_b32 v{TM[4]}, 0x7f000000
    v_cmp_gt_u32 vcc, 904, v0
    s_mul_i32 s{sSCR}, s{sWAVE}, 240
    s_add_u32 s{sSCR}, s{sSCR}, {SP}
    v_cndmask_b32 v{vWA2}, v{TM[4]}, v{vWA2}, vcc
    v_cndmask_b32 v{TM[5]}, v{TM[4]}, v{TM[5]}, vcc
    v_lshl_add_u32 v{vSC}, v{TM[1]}, 2, s{sSCR}
    v_lshl_add_u32 v{vS2}, v{TM[1]}, 1, s{sSCR}
    v_cmp_gt_u32 vcc, {2*NW + 2}, v{TM[1]}
    s_lshl_b32 s{sWOFF}, s{sWAVE}, 16
    s_mov_b32 s{sK10}, 1024
    v_cndmask_b32 v{vSC}, v{TM[4]}, v{vSC}, vcc
    s_add_u32 s{sRW}, s{sREC}, {OFF_REC - (CAP << 14)}
    s_addc_u32 s{sRW+1}, s{sREC+1}, {16 << 16}
    s_mov_b32 s{sRW+2}, {(NBLK + CAP//64) << 16}
    s_mov_b32 s{sRW+3}, 0x00020000
    s_mov_b32 s{sTILE}, {TILE}
    s_and_b32 s{sACC}, s{sOB}, 1
    s_lshl_b32 s{sACC}, s{sACC}, 18
    {"s_sub_u32 s%d, s%d, s%d" % (sTILE, sTILE, sACC) if INTAG else ""}
    s_sub_u32 s{sACC}, {(-0x4000*8) & 0xffffffff}, s{sACC}
    v_lshlrev_b32 v{TM[8]}, 3, v0
    v_and_b32 v{TM[8]}, 16, v{TM[8]}
    v_and_b32 v{TM[9]}, 1, v0
    v_lshl_or_b32 v{TM[8]}, v{TM[9]}, 5, v{TM[8]}
    v_mov_b32 v{vID}, 0x3f80
    v_mov_b32 v{vID+1}, 0
    v_lshlrev_b64 v[{vID}:{vID+1}], v{TM[8]}, v[{vID}:{vID+1}]
    v_mov_b32 v{vCHK}, 0
    v_mov_b32 v{vZ}, 0
    v_mov_b32 v{TM[6]}, 0xff00
    v_bfe_u32 v{vBM}, v0, {1 if o.get("dm") else 0}, 1
    v_mul_u32_u24 v{vBM}, {40*R2}, v{vBM}
    v_add_u32 v{vBM}, s{sSCR}, v{vBM}
    ds_write2_b32 v{vSC}, v{vZ}, v{vZ} offset0:{MOFF//4} offset1:{MOFF//4 + 10}
    ds_write_b16 v{vS2}, v{TM[6]} offset:2""")
    for i in range(6): k(f"v_mov_b32 v{RT+i}, {BIAS*0x10001}")
    if o.get("rt2"):
        for i in (58, 59, 62, 63, 122, 123): k(f"v_mov_b32 v{i}, 0")
    k(f"""ds_write_b128 v{TM[5]}, v[{RT}:{RT+3}]
    v_lshrrev_b32 v{TM[7]}, 4, v{TM[1]}
    v_mul_u32_u24 v{TM[7]}, {16384 - 1024}, v{TM[7]}
    v_lshl_add_u32 v{TM[7]}, v{TM[1]}, 6, v{TM[7]}
    v_lshl_add_u32 v{TM[7]}, v{TM[0]}, 10, v{TM[7]}""")
    k("s_waitcnt lgkmcnt(0)")
    for i in range(4): k(f"v_mov_b32 v{CEN[i]}, s{40+i}")
    k(f"s_mov_b32 s{sK1}, {16384 + (CAP << 16)}\ns_mov_b32 s{sK2}, {16384 + 2*21845 + (CAP << 16)}")
    for base in (sWR, sWS_):
        for p in range(4):
            b = base + 4*p
            k(f"""s_pack_ll_b32_b16 s{sT0}, s{b}, s{b+2}
            s_pack_hh_b32_b16 s{sT1}, s{b}, s{b+2}
            s_pack_ll_b32_b16 s{b+2}, s{b+1}, s{b+3}
            s_pack_hh_b32_b16 s{b+3}, s{b+1}, s{b+3}
            s_mov_b32 s{b}, s{sT0}
            s_mov_b32 s{b+1}, s{sT1}""")
    for i in range(4):
        vm.wait(f"tab{i}")
        k(f"ds_write_b128 v{vA16}, v[{OS+4*i}:{OS+4*i+3}] offset:{i*16384}")
    for x in (0, 2, 1, 3): k(f"ds_read_b128 v[{OS+4*x}:{OS+4*x+3}], v{TM[7]} offset:{16*x}"); lg.issue(f"t{x}")
    for u in range(4): k(f"ds_write_b128 v{vA16}, v[{RT}:{RT+3}] offset:{u*16384}"); lg.issue("x")
    lg.wait("t2")

    def setup(half):
        a, b, c, d = TM[0:4]
        k(f"""v_mad_u32_u16 v{a}, v{OS}, v{vK3}, s{sK1} op_sel:[{half},0,0,0]
        v_mad_u32_u16 v{b}, v{OE}, v{vK3}, s{sK2} op_sel:[{half},0,0,0]
        v_sub_u32_sdwa v{c}, v{b}, v{a} dst_sel:DWORD dst_unused:UNUSED_PAD src0_sel:WORD_1 src1_sel:WORD_1
        s_nop 1
        v_add_u32_dpp v{c}, v{c}, v{c} row_shr:1 row_mask:0xf bank_mask:0xf bound_ctrl:0
        s_nop 1
        v_add_u32_dpp v{c}, v{c}, v{c} row_shr:2 row_mask:0xf bank_mask:0xf bound_ctrl:0
        s_nop 1
        v_add_u32_dpp v{c}, v{c}, v{c} row_shr:4 row_mask:0xf bank_mask:0xf bound_ctrl:0
        s_nop 1
        v_add_u32_dpp v{c}, v{c}, v{c} row_shr:8 row_mask:0xf bank_mask:0xf bound_ctrl:0
        s_nop 1
        v_add_u32_dpp v{c}, v{c}, v{c} row_bcast:15 row_mask:0xa bank_mask:0xf
        s_nop 1
        v_add_u32_dpp v{c}, v{c}, v{c} row_bcast:31 row_mask:0xc bank_mask:0xf
        v_sub_u32_sdwa v{b}, v{b}, v{c} dst_sel:DWORD dst_unused:UNUSED_PAD src0_sel:WORD_1 src1_sel:DWORD
        v_readlane_b32 s{sTOTN}, v{c}, 63
        v_add_u32 v{c}, -1, v{c}
        ds_write_b16 v{vS2}, v{b}
        v_lshlrev_b32_e64 v{d}, v{c}, 1
        v_lshrrev_b32 v{c}, 5, v{c}
        s_cmp_gt_u32 s{sTOTN}, {CAP}
        s_cselect_b32 s{sFAIL}, 1, s{sFAIL}""")
        if o.get("dm"):
            k(f"""s_cselect_b32 s{sT0}, 0, -1
            v_xor_b32_dpp v{a}, v{c}, v{c} quad_perm:[1,0,3,2] row_mask:0xf bank_mask:0xf
            v_cmp_eq_u32 vcc, 0, v{a}
            v_lshl_add_u32 v{c}, v{c}, 2, v{vBM}
            s_mov_b64 exec, vcc
            v_or_b32_dpp v{d}, v{d}, v{d} quad_perm:[1,0,3,2] row_mask:0xf bank_mask:0xf
            s_orn2_b32 vcc_lo, 0xaaaaaaaa, vcc_lo
            s_orn2_b32 vcc_hi, 0xaaaaaaaa, vcc_hi
            s_and_b32 exec_lo, vcc_lo, s{sT0}
            s_and_b32 exec_hi, vcc_hi, s{sT0}""")
        else:
            k(f"v_lshl_add_u32 v{c}, v{c}, 2, v{vBM}\ns_cselect_b64 exec, 0, -1")
        k(f"ds_or_b32 v{c}, v{d} offset:{MOFF}\ns_mov_b64 exec, -1")
        if R2: k(f"ds_wrxchg2_rtn_b32 v[{a}:{b}], v{vSC}, v{vZ}, v{vZ} offset0:{MOFF//4} offset1:{MOFF//4 + 10}")
        else: k(f"ds_wrxchg_rtn_b32 v{vMK}, v{vSC}, v{vZ} offset:{MOFF}")
        for t in ("x", "x", "mk"): lg.issue(t)
    def setup2():
        lg.wait("mk")
        if R2: k(f"v_or_b32 v{vMK}, v{TM[0]}, v{TM[1]}\ns_nop 0")
        for j in range(NW):
            k(f"v_readlane_b32 s{sMM+2*j}, v{vMK}, {2*j}\nv_readlane_b32 s{sMM+2*j+1}, v{vMK}, {2*j+1}")
        k(f"s_mov_b32 s{sTB}, s{sSCR}\ns_mov_b32 s{sSO}, s{sWOFF}\ns_mov_b32 s{sTOTC}, s{sTOT}\ns_mov_b32 s{sTOT}, s{sTOTN}")
    def agen1(j, ta, tb):
        k(f"""v_mbcnt_lo_u32_b32 v{ta}, s{sMM+2*j}, 0
        v_mbcnt_hi_u32_b32 v{ta}, s{sMM+2*j+1}, v{ta}
        s_bcnt1_i32_b64 s{sT0}, s[{sMM+2*j}:{sMM+2*j+1}]
        v_lshl_add_u32 v{tb}, v{ta}, 1, s{sTB}
        ds_read_u16 v{tb}, v{tb}
        s_add_u32 s{sMM+2*j}, s{sSO}, {j << 20}
        s_lshl1_add_u32 s{sTB}, s{sT0}, s{sTB}
        s_lshl_b32 s{sT0}, s{sT0}, 10
        s_add_u32 s{sSO}, s{sSO}, s{sT0}""")
        lg.issue(f"d{j}")
    def agen2(j, st, ta, tb, track=True):
        r = RAW[j]
        lg.wait(f"d{j}")
        k(f"""v_mad_u32_u16 v{tb}, v{tb}, s{sK10}, v{vL16}
        v_pk_lshrrev_b16 v{tb}, 10, v{tb} op_sel_hi:[1,1]
        v_lshl_add_u32 v{ta}, v{ta}, 6, v{tb}
        buffer_load_dwordx4 v[{r}:{r+3}], v{ta}, s[{sRW}:{sRW+3}], s{sMM+2*j} idxen""")
        if track: vm.issue(f"r{st}_{j}")
    TA, TB_ = 51, 55
    def agen_opt(st):
        assert vm.q[-1] == f"r{st}_{NW-1}" or f"r{st}_{NW-1}" not in vm.q
        lab = k.lab("noopt")
        k(f"s_cmp_le_u32 s{sTOT}, {64*NW}\ns_cbranch_scc1 {lab}")
        j = NW
        k(f"v_readlane_b32 s{sMM+2*j}, v{vMK}, {2*j}\nv_readlane_b32 s{sMM+2*j+1}, v{vMK}, {2*j+1}\ns_nop 1")
        save = list(lg.q)
        agen1(j, TA, TB_); agen2(j, st, TA, TB_, track=False)
        lg.q = save
        k(f"{lab}:")
    def gather(j, g):
        r = RAW[j]
        for x in range(3): k(f"v_mad_u32_u16 v{g+2*x}, v{r+x}, 8, s{sTILE}")
        for x in range(3): k(f"ds_read_b64 v[{g+2*x}:{g+2*x+1}], v{g+2*x}"); lg.issue(f"g{j}")
    RTS = [[RT, RT+2, RT+4], None] if o.get("rt2") else [[RT, RT+2, RT+4]]*2
    def check(p=None):
        for p in ((0, 1) if p is None and o.get("rt2") else (p or 0,)):
            lg.wait(f"rt{p}" if o.get("rt2") else "rt0")
            for x in RTS[p]: k(f"v_or3_b32 v{vCHK}, v{x}, v{x+1}, v{vCHK}")
    def accum(j, g, p=None):
        r = RAW[j]
        p = ((j & 1) if p is None else p) if o.get("rt2") else 0
        t = TM
        def cdec():
            if o.get("abl") == "noc": return
            k(f"""v_bfe_i32 v{t[0]}, v{r+3}, 2, 10
            v_bfe_i32 v{t[1]}, v{r+3}, 12, 10
            v_ashrrev_i32 v{t[2]}, 22, v{r+3}""")
            for x in range(3): k(f"v_cvt_f32_i32 v{t[x]}, v{t[x]}")
        def oaddr():
            for x in range(3): k(f"v_mad_u32_u16 v{r+x}, v{r+x}, 8, s{sACC} op_sel:[1,0,0,0]")
        if MF:
            cdec()
            lg.wait(f"g{j}")
            D = [t[4] + 4*x for x in range(3)]
            for x in range(3): k(f"v_mfma_f32_4x4x4_16b_bf16 v[{D[x]}:{D[x]+3}], v[{vID}:{vID+1}], v[{g+2*x}:{g+2*x+1}], 0")
            oaddr()
            A = [D[x] for x in range(3)]; B = [D[x] + 2 for x in range(3)]
        else:
            cdec(); oaddr()
            lg.wait(f"g{j}")
            A = [t[4 + 2*x] for x in range(3)]; B = [g + 2*x for x in range(3)]
            for x in range(3):
                for y in range(2): k(f"v_lshlrev_b32 v{A[x]+y}, 16, v{B[x]+y}\nv_and_b32 v{B[x]+y}, 0xffff0000, v{B[x]+y}")
        for x in range(3):
            c = t[x & ~1]; h = x & 1
            for a, mg in ((B[x], sMG2), (A[x], sMAG)):
                k(f"v_pk_fma_f32 v[{a}:{a+1}], v[{a}:{a+1}], v[{c}:{c+1}], s[{mg}:{mg+1}] op_sel:[0,{h},0] op_sel_hi:[1,{h},1]")
        for x in range(3): k(f"v_lshlrev_b64 v[{B[x]}:{B[x]+1}], 16, v[{B[x]}:{B[x]+1}]")
        for x in range(3): k(f"v_lshl_add_u64 v[{g+2*x}:{g+2*x+1}], v[{A[x]}:{A[x]+1}], 0, v[{B[x]}:{B[x]+1}]")
        if j == NW and o.get("oex"): k("s_mov_b64 vcc, exec\ns_mov_b64 exec, -1")
        check(p)
        if j == NW and o.get("oex"): k("s_mov_b64 exec, vcc")
        for x in range(3): k(f"ds_add_rtn_u64 v[{RTS[p][x]}:{RTS[p][x]+1}], v{r+x}, v[{g+2*x}:{g+2*x+1}]"); lg.issue(f"rt{p}")
    def optional(st):
        assert lg.q[-1][:2] == "rt" and f"r{st}_{NW-1}" not in vm.q
        p = int(lg.q[-1][2])
        lab = k.lab("noopt2")
        k(f"s_cmp_le_u32 s{sTOTC}, {64*NW}\ns_cbranch_scc1 {lab}")
        save = list(lg.q)
        gather(NW, GD); accum(NW, GD, p)
        lg.q = save
        k(f"{lab}:")

    def opt_part(tot, fn):
        lab = k.lab("noopt3")
        k(f"s_cmp_le_u32 s{tot}, {64*NW}\ns_cbranch_scc1 {lab}")
        save = list(lg.q)
        if o.get("oex"):
            k(f"s_sub_u32 s{sT1}, {CAP}, s{tot}\ns_and_b32 s{sT1}, s{sT1}, 60\ns_lshr_b64 exec, -1, s{sT1}")
        fn()
        if o.get("oex"): k("s_mov_b64 exec, -1")
        lg.q = save
        k(f"{lab}:")

    def rotate():
        for b in (OS, OE):
            for i in range(0, 6, 2): k(f"v_pk_mov_b32 v[{b+i}:{b+i+1}], v[{b+i}:{b+i+1}], v[{b+i+2}:{b+i+3}] op_sel:[1,0]")
            k(f"v_pk_mov_b32 v[{b+6}:{b+7}], v[{b+6}:{b+7}], v[{vCHK}:{vZ}] op_sel:[1,1]")
    early = o.get("early", 0)
    def first_loads():
        for j in range(NW): agen2(j, 0, RAW[j], RAW[j]+1)
        agen_opt(0)
    setup(0); setup2()
    for j in range(NW): agen1(j, RAW[j], RAW[j]+1)
    if not early: first_loads()
    vm.wait("m")
    mwrite()
    if early == 1:
        lg.wait("w"); k("s_barrier"); first_loads()
    vm.wait("info")
    I = GD + 16
    k(f"""v_max3_u32 v64, v{I}, v{I+2}, v{I+4}
    v_add_f32 v65, v{I+1}, v{I+3}
    v_add_f32 v66, v{I+5}, v{I+7}
    v_max_u32 v64, v64, v{I+6}
    v_add_f32 v65, v65, v66
    v_cmp_lt_u32 vcc, 0xffff, v64""")
    scan64(k, 64, "v_max_u32"); scan64(k, 65, "v_add_f32")
    k(f"""s_cmp_lg_u64 vcc, 0
    s_cselect_b32 s{sFAIL}, 1, s{sFAIL}
    v_lshlrev_b32 v64, 16, v64
    v_mul_f32 v66, {f2u(64.0/(4*E))}, v65
    v_mul_f32 v65, {f2u(33.0/(4*E))}, v65
    v_cmp_nle_f32 vcc, v64, v66
    v_max_u32 v64, v64, v65
    s_nop 0
    v_readlane_b32 s{sT0}, v64, 63
    s_bitcmp1_b32 vcc_hi, 31
    s_cselect_b32 s{sFAIL}, 1, s{sFAIL}
    s_lshr_b32 s{sT0}, s{sT0}, 23
    s_add_u32 s{sT0}, s{sT0}, 1
    s_cmp_lt_u32 s{sT0}, 40
    s_cselect_b32 s{sFAIL}, 1, s{sFAIL}
    s_cmp_gt_u32 s{sT0}, 230
    s_cselect_b32 s{sFAIL}, 1, s{sFAIL}
    s_sub_u32 s{sUNIT}, s{sT0}, 14
    s_lshl_b32 s{sUNIT}, s{sUNIT}, 23
    s_add_u32 s{sMAG}, s{sUNIT}, {((23 + 9) << 23) + 0x400000}
    s_lshr_b32 s{sT1}, s{sMAG}, 16
    s_sub_u32 s{sT1}, 0x10000, s{sT1}
    s_add_u32 s{sMG2}, s{sMAG}, s{sT1}
    s_sub_u32 s{sMAG+1}, s{sMG2}, 1
    s_mov_b32 s{sMG2+1}, s{sMAG+1}
    s_or_b32 s{sUNIT}, s{sUNIT}, {f2u(512.0/CQ) & 0x7fffff}
    s_sub_u32 s{sT0}, s{sT0}, 40
    s_cmp_gt_u32 s{sT0}, 190
    s_cselect_b32 s{sUNIT}, 0, s{sUNIT}""")
    if early != 1:
        lg.wait("w"); k("s_barrier")
    if early == 2: first_loads()
    mload([u for u in range(5) if mplan[u][0] == "a" and int(mplan[u][1]) >= o["na"]], ahead=True)
    setup(1)
    k(f"s_mov_b32 s{sIT}, 0")
    if o.get("prio"):
        for p in (1, 2, 3):
            lab = k.lab("pr")
            k(f"s_cmp_lt_u32 s{sWAVE}, {o['prio'][p-1]}\ns_cbranch_scc1 {lab}\ns_setprio {p}\n{lab}:")
    loop = "L_p2_loop"
    k(f"{loop}:")
    def body():
        for st in (0, 1):
            def st_(n):
                if o["stamp"] == 1 and n == 0:
                    k(f"s_lshl_b32 s{sT0}, s{sIT}, 1\ns_add_u32 s{sT0}, s{sT0}, {1+st}"); stamp(k, f"s{sT0}", 42)
            st_(0)
            k(f"s_add_u32 s{sMOFF}, s{sMOFF}, {R*8}")
            if st == 0:
                k(f"""s_lshl_b32 s{sT0}, s{sWAVE}, 4
                s_or_b32 s{sT0}, s{sT0}, s{sIT}
                s_cmp_lg_u32 s{sT0}, 5
                s_cbranch_scc1 L_p2_nost
                v_mov_b32 v{vST}, 0""")
                cnt_add(vST, True)
                k("L_p2_nost:")
            else:
                k(f"s_cmp_lg_u32 s{sIT}, 7\ns_cbranch_scc1 L_p2_nodist\ns_mov_b32 s{sRW+2}, 0")
                dist_loads(sQ)
                k("L_p2_nodist:")
            na = o["na"]
            gplan = o.get("gplan", [2, 2])
            gq = list(range(NW))
            def gathers(n):
                for _ in range(n):
                    j = gq.pop(0)
                    vm.wait(f"r{st}_{j}")
                    gather(j, GD + 6*j)
                    mload([u for u in range(5) if mplan[u] == f"g{j}"])
            gathers(gplan[0])
            setup2()
            osp = o.get("osp", 3)
            optat = o.get("optat", 2)
            for j in range(NW):
                if j == na:
                    assert not gq
                    if not osp & 1: optional(st)
                    lg.wait(f"g{NW-1}")
                    k("s_barrier")
                    vm.wait("m")
                    mwrite()
                if 0 < j < len(gplan):
                    gathers(gplan[j])
                    if osp & 1 and j == len(gplan) - 1:
                        assert not gq and j < na
                        opt_part(sTOTC, lambda: gather(NW, GD))
                agen1(j, TA, TB_)
                if osp & 2 and j == NW - 1:
                    def f():
                        k(f"v_readlane_b32 s{sMM+2*NW}, v{vMK}, {2*NW}\nv_readlane_b32 s{sMM+2*NW+1}, v{vMK}, {2*NW+1}\ns_nop 1")
                        agen1(NW, 62, 63)
                    opt_part(sTOT, f)
                accum(j, GD + 6*j)
                agen2(j, 1 - st, TA, TB_)
                if osp & 1 and j == optat:
                    assert lg.q[-1] == "rt0" and j >= len(gplan) - 1
                    opt_part(sTOTC, lambda: accum(NW, GD))
                if j == NW - 1:
                    if osp & 2: opt_part(sTOT, lambda: agen2(NW, 1 - st, 62, 63, track=False))
                    else: agen_opt(1 - st)
                mload([u for u in range(5) if mplan[u] == f"a{j}"], ahead=(j >= na))
            if st == 0: rotate()
            setup(st)
            mload([u for u in range(5) if mplan[u] == "a9"], ahead=True)
            lg.wait("w")
            if st == 1:
                k(f"s_add_u32 s{sIT}, s{sIT}, 1\ns_cmp_lt_u32 s{sIT}, 8")
            k("s_barrier")
    i0 = len(k.L)
    emit_loop(k, [vm, lg], body)
    abl = o.get("abl", "").split("+")
    if abl != [""]:
        import re
        L = k.L[i0:]
        dummy = f"    ds_read_b32 v125, v{vZ}"
        if "nortn" in abl: L = [re.sub(r"ds_add_rtn_u64 v\[\d+:\d+\], ", "ds_add_u64 ", l) for l in L if "v_or3" not in l]
        if "now" in abl: L = [dummy if "ds_write_b128" in l else l for l in L]
        if "noat" in abl: L = [dummy if "ds_add_rtn" in l else l for l in L]
        if "ling" in abl: L = [re.sub(r"(ds_read_b64 v\[\d+:\d+\]), v\d+", r"\1, v62", l) for l in L]
        if "nopack" in abl: L = [l for l in L if "v_lshlrev_b64" not in l]
        if "nomf" in abl: L = [l for l in L if "v_mfma" not in l]
        if "noopt" in abl: L = [l.replace("s_cbranch_scc1", "s_branch") if "noopt" in l and "cbranch" in l else l for l in L]
        k.L[i0:] = L
        k.L[i0-1:i0-1] = [f"    v_lshrrev_b32 v62, 1, v{vA16}", f"    v_add_u32 v62, {TILE}, v62"]
    k(f"s_cbranch_scc1 {loop}")
    if o["stamp"]: stamp(k, 40, 42)
    sOU, sU = 16, 44
    sSL, sTODO, sWORD, sDEL, sSC2 = 49, 51, 20, 21, 27
    vP = [vA16, 2]
    MM = [64, 68]
    PP = [8, 88]
    check()
    k(f"""s_mov_b32 s{sSC2}, s{sSCR}
    s_waitcnt vmcnt(0)
    v_mov_b32 v8, {SP + 232}
    s_cmp_lg_u32 s{sWAVE}, 0
    s_cselect_b64 exec, 0, 1
    ds_write_b32 v8, v{vST}
    s_mov_b64 exec, -1
    v_subrev_u32 v6, {TILE}, v{vWA2}
    s_mul_i32 s{sIT}, s{sQ}, 20000
    v_subrev_u32 v10, s{sIT}, v{vA16}
    v_mov_b32 v11, 0x7f000000
    s_waitcnt vmcnt(0) lgkmcnt(0)
    s_barrier""")
    if o["stamp"]: stamp(k, 41, 14)
    gw = o.get("gw", 12)
    gpos = o.get("gpos", 2)
    k(f"s_cmp_lt_u32 s{sWAVE}, {gw}\ns_cbranch_scc1 L_p2_ga")
    if gpos == 0: gates(0)
    k("L_p2_ga:\nds_read_b32 v9, v8")
    for u in range(4): k(f"ds_read_b128 v[{MP+4*u}:{MP+4*u+3}], v{vA16} offset:{u*16384}")
    k(f"""ds_read_b128 v[{MP+16}:{MP+19}], v6
    s_mul_i32 s{sT0}, s{sQ}, {E*8}
    s_mul_i32 s{sT1}, s{sOB}, {R*8}
    s_add_u32 s{sTB}, s{sT0}, s{sT1}
    s_add_u32 s{sTB}, s{sTB}, {OFF_P16}
    s_waitcnt lgkmcnt(5)
    v_readfirstlane_b32 s{sDEL}, v9
    s_nop 0
    s_bfe_u32 s{sDEL}, s{sDEL}, {8 | (8 << 16)}
    s_cmp_lg_u32 s{sDEL}, {99 if o.get('deleg') else 4}
    s_cselect_b32 s{sDEL}, 1, 0
    s_cselect_b32 s{sIT}, 0, 20000""")
    for u in range(5):
        k(f"""v_cmp_le_u32 vcc, s{sIT}, v10
        v_add_u32 v10, 16384, v10
        s_add_u32 s{sT0}, s{sTB}, {u*16384 if u < 4 else 0}
        v_cndmask_b32 v12, v11, v{vA16 if u < 4 else 6}, vcc
        s_waitcnt lgkmcnt({4-u})
        buffer_store_dwordx4 v[{MP+4*u}:{MP+4*u+3}], v12, s[{sREC}:{sREC+3}], s{sT0} offen sc1
        v_or3_b32 v{vCHK}, v{MP+4*u}, v{MP+4*u+1}, v{vCHK}
        v_or3_b32 v{vCHK}, v{MP+4*u+2}, v{MP+4*u+3}, v{vCHK}""")
    if o["stamp"]: stamp(k, 42, 14)
    k(f"s_load_dwordx2 s[{sOU}:{sOU+1}], s[0:1], {KA['out']}\ns_cmp_ge_u32 s{sWAVE}, {gw}\ns_cbranch_scc1 L_p2_gb")
    if gpos == 0: gates2()
    if gpos == 2: gates(0)
    k(f"""L_p2_gb:
    v_and_b32 v{vCHK}, 0x80008000, v{vCHK}
    v_cmp_ne_u32 vcc, 0, v{vCHK}
    v_mov_b32 v8, s{sSC2}
    v_and_b32 v10, 15, v0
    v_mul_u32_u24 v10, 240, v10
    v_add_u32 v10, {SP}, v10
    s_cmp_lg_u64 vcc, 0
    s_cselect_b32 s{sFAIL}, 1, s{sFAIL}
    v_mov_b32 v9, s{sFAIL}
    s_mov_b64 exec, 1
    ds_write_b32 v8, v9
    s_mov_b64 exec, -1
    v_add_u32 v{vP[1]}, 16384, v{vA16}
    v_mov_b32 v9, 0x3f000000
    v_cmp_gt_u32 vcc, 226, v0
    s_mov_b32 s{sSL}, s{sQ}
    s_mov_b32 s{sTODO}, 0
    v_cndmask_b32 v{vP[1]}, v9, v{vP[1]}, vcc
    s_waitcnt vmcnt(0) lgkmcnt(0)""")
    if o["stamp"]: stamp(k, 43, 14)
    k("s_barrier\nds_read_b32 v9, v10")
    k.srd_finish(sOU, E*8)
    def slice_loads():
        k(f"""s_lshl2_add_u32 s{sT0}, s{sOB}, s{sSL}
        s_mul_i32 s{sSO}, s{sT0}, 20000
        s_mov_b32 s{sM+2}, {E*8}""")
        for i in range(2): k(f"buffer_load_dwordx4 v[{MM[i]}:{MM[i]+3}], v{vP[i]}, s[{sM}:{sM+3}], s{sSO} offen")
    k(f"""s_waitcnt lgkmcnt(0)
    v_cmp_ne_u32 vcc, 0, v9
    s_nop 1
    s_cmp_lg_u64 vcc, 0
    s_cselect_b32 s{sFAIL}, {0 if o.get("abl") else 1}, 0
    {"" if o.get("abl") else "s_cbranch_scc1 L_p2_slow"}
    L_p2_signal:""")
    if o["stamp"]: stamp(k, 44, 14)
    k(f"""v_mov_b32 v8, {SP + 228}
    s_lshl_b32 s{sT1}, s{sFAIL}, 4
    s_or_b32 s{sT1}, s{sT1}, s{sDEL}
    s_add_u32 s{sT0}, s{sQ}, 16
    s_lshl_b32 s{sWORD}, s{sT1}, s{sT0}
    s_add_u32 s{sWORD}, s{sWORD}, 1
    v_mov_b32 v9, s{sWORD}
    s_cmp_lg_u32 s{sWAVE}, 15
    s_cbranch_scc1 L_p2_nosig0""")
    cnt_add(9, True)
    k("L_p2_nosig0:")
    slice_loads()
    for i in range(8): k(f"s_lshl_b32 s{sWU+2*i}, s{92+i}, 16\ns_and_b32 s{sWU+2*i+1}, s{92+i}, 0xffff0000")
    for i in range(7, -1, -1): k(f"s_and_b32 s{sWD+2*i+1}, s{sWD+i}, 0xffff0000\ns_lshl_b32 s{sWD+2*i}, s{sWD+i}, 16")
    k(f"""s_mov_b32 s{sU}, s{sUNIT}
    s_add_u32 s{sU+1}, s{sUNIT}, {0x80000000 + (16 << 23)}
    s_cmp_eq_u32 s{sUNIT}, 0
    s_cselect_b32 s{sU+1}, 0, s{sU+1}""")
    if gpos == 1: gates2()
    if gpos == 2:
        k(f"s_cmp_lt_u32 s{sWAVE}, {gw}\ns_cbranch_scc1 L_p2_gc")
        gates(0)
        k(f"L_p2_gc:\ns_cmp_ge_u32 s{sWAVE}, 4\ns_cbranch_scc1 L_p2_gd")
        gates(1)
        k("L_p2_gd:")
    k(f"""s_cmp_lg_u32 s{sWAVE}, 15
    s_cbranch_scc1 L_p2_nosig
    s_waitcnt vmcnt(2)
    v_readfirstlane_b32 s{sT1}, v9
    s_lshl_b32 s{sTODO}, 1, s{sQ}
    s_add_u32 s{sWORD}, s{sWORD}, s{sT1}
    s_and_b32 s{sT1}, s{sWORD}, 0xff
    s_cmp_eq_u32 s{sT1}, 4
    s_cbranch_scc0 L_p2_notlast
    s_bfe_u32 s{sT1}, s{sWORD}, {16 | (4 << 16)}
    s_or_b32 s{sTODO}, s{sTODO}, s{sT1}
    s_branch L_p2_pub
    L_p2_notlast:
    s_cmp_lg_u32 s{sDEL}, 0
    s_cselect_b32 s{sTODO}, 0, s{sTODO}
    s_cbranch_scc1 L_p2_pub
    L_p2_poll:
    v_mov_b32 v9, 0""")
    cnt_add(9, True)
    k(f"""s_waitcnt vmcnt(0)
    v_readfirstlane_b32 s{sWORD}, v9
    s_nop 0
    s_and_b32 s{sT1}, s{sWORD}, 0xff
    s_cmp_lt_u32 s{sT1}, 4
    s_cbranch_scc1 L_p2_poll
    L_p2_pub:
    s_lshl_b32 s{sT1}, s{sTODO}, 24
    s_or_b32 s{sT1}, s{sT1}, s{sWORD}
    v_mov_b32 v9, s{sT1}
    s_mov_b64 exec, 1
    ds_write_b32 v8, v9
    s_mov_b64 exec, -1
    s_waitcnt lgkmcnt(0)
    L_p2_nosig:
    s_barrier
    ds_read_b32 v9, v8
    s_waitcnt lgkmcnt(0)
    v_readfirstlane_b32 s{sWORD}, v9
    s_nop 0
    s_lshr_b32 s{sTODO}, s{sWORD}, 24
    s_cbranch_scc0 {end}
    L_p2_fin:""")
    if o["stamp"]: stamp(k, 45, 14)
    k(f"s_mul_i32 s{sIT}, s{sSL}, 20000")
    qoff = lambda i, sz, base: f"""s_add_u32 s{sT0}, s{sQ}, {i}
        s_and_b32 s{sT0}, s{sT0}, 3
        s_mul_i32 s{sT1}, s{sT0}, {E*sz}
        s_add_u32 s{sT1}, s{sT1}, {base}"""
    for i in range(1, 4):
        k(qoff(i, 8, OFF_P16) + f"\ns_add_u32 s{sT1}, s{sT1}, s{sSO}")
        for h in range(2): k(f"buffer_load_dwordx4 v[{PP[h]+4*i}:{PP[h]+4*i+3}], v{vP[h]}, s[{sREC}:{sREC+3}], s{sT1} offen sc1")
    for h in range(2):
        k(f"v_add_u32 v{24+h}, s{sIT}, v{vP[h]}\nds_read_b128 v[{PP[h]}:{PP[h]+3}], v{24+h}")
    assert 4*BIAS == 1 << 16
    if o["stamp"]: stamp(k, 46, 14)
    def finish(h):
        P, S, D = PP[h], 24, PP[h]
        if h == 0:
            k("s_waitcnt vmcnt(0) lgkmcnt(0)")
            if o["stamp"]: stamp(k, 48, 14)
        lab = k.lab("nof32a")
        k(f"s_bfe_u32 s{sT0}, s{sWORD}, {20 | (4 << 16)}\ns_cbranch_scc0 {lab}")
        for i in range(4):
            l2 = k.lab("q")
            k(f"s_add_u32 s{sT0}, s{sQ}, {i}\ns_and_b32 s{sT0}, s{sT0}, 3\ns_add_u32 s{sT0}, s{sT0}, 20\ns_bitcmp1_b32 s{sWORD}, s{sT0}\ns_cbranch_scc0 {l2}")
            for x in range(4): k(f"v_mov_b32 v{P+4*i+x}, {BIAS*0x10001}")
            k(f"{l2}:")
        k(f"{lab}:")
        for x in range(4): k(f"v_pk_add_u16 v{P+x}, v{P+x}, v{P+4+x}\nv_pk_add_u16 v{P+8+x}, v{P+8+x}, v{P+12+x}")
        for j in range(4):
            for e in range(2):
                x = 2*e + j//2
                k(f"v_add_u32_sdwa v{S+2*j+e}, v{P+x}, v{P+8+x} dst_sel:DWORD dst_unused:UNUSED_PAD src0_sel:WORD_{j & 1} src1_sel:WORD_{j & 1}")
        for x in range(8): k(f"v_cvt_f32_u32 v{S+x}, v{S+x}")
        for j in range(4): k(f"v_pk_fma_f32 v[{S+2*j}:{S+2*j+1}], v[{S+2*j}:{S+2*j+1}], s[{sU}:{sU+1}], s[{sU}:{sU+1}] op_sel:[0,0,1] op_sel_hi:[1,0,1]")
        lab = k.lab("nof32b")
        k(f"s_bfe_u32 s{sT0}, s{sWORD}, {20 | (4 << 16)}\ns_cbranch_scc0 {lab}\nv_lshlrev_b32 v32, 1, v{vP[h]}")
        for q in range(4):
            l2 = k.lab("q")
            k(f"""s_bitcmp1_b32 s{sWORD}, {20+q}
            s_cbranch_scc0 {l2}
            s_lshl_b32 s{sT1}, s{sSO}, 1
            s_add_u32 s{sT1}, s{sT1}, {OFF_P32 + q*E*16}
            buffer_load_dwordx4 v[{P}:{P+3}], v32, s[{sREC}:{sREC+3}], s{sT1} offen sc1
            buffer_load_dwordx4 v[{P+4}:{P+7}], v32, s[{sREC}:{sREC+3}], s{sT1} offen offset:16 sc1
            s_waitcnt vmcnt(0)""")
            for j in range(4):
                for e in range(2): k(f"v_add_f32 v{S+2*j+e}, v{S+2*j+e}, v{P+4*e+j}")
            k(f"{l2}:")
        k(f"{lab}:")
        def matvec(dst, src, w):
            for j in range(4):
                for c in range(4):
                    b = w + 4*j + (c & ~1); x = c & 1
                    if j == 0: k(f"v_pk_mul_f32 v[{dst+2*c}:{dst+2*c+1}], v[{src}:{src+1}], s[{b}:{b+1}] op_sel:[0,{x}] op_sel_hi:[1,{x}]")
                    else: k(f"v_pk_fma_f32 v[{dst+2*c}:{dst+2*c+1}], v[{src+2*j}:{src+2*j+1}], s[{b}:{b+1}], v[{dst+2*c}:{dst+2*c+1}] op_sel:[0,{x},0] op_sel_hi:[1,{x},1]")
        matvec(D, S, sWD)
        for c in range(4): k(f"v_pk_mul_f32 v[{D+2*c}:{D+2*c+1}], v[{D+2*c}:{D+2*c+1}], v[{GH[h]+2*c}:{GH[h]+2*c+1}]")
        matvec(S, D, sWU)
        for e in range(2):
            for x in range(2):
                k(f"v_lshlrev_b32 v{D+4*x+e}, 16, v{MM[h]+2*e+x}\nv_and_b32 v{D+4*x+2+e}, 0xffff0000, v{MM[h]+2*e+x}")
        for c in range(4): k(f"v_pk_fma_f32 v[{D+2*c}:{D+2*c+1}], v[{S+2*c}:{S+2*c+1}], v[{GH[h]+8+2*c}:{GH[h]+9+2*c}], v[{D+2*c}:{D+2*c+1}]")
        for e in range(2):
            for x in range(2): k(f"v_cvt_pk_bf16_f32 v{D+8+2*e+x}, v{D+4*x+e}, v{D+4*x+2+e}")
        k(f"buffer_store_dwordx4 v[{D+8}:{D+11}], v{vP[h]}, s[{sOU}:{sOU+3}], s{sSO} offen {o.get('oflag', '')}")
    finish(0)
    k(f"s_cmp_ge_u32 s{sWAVE}, 4\ns_cbranch_scc1 L_p2_f1")
    finish(1)
    k(f"""L_p2_f1:
    s_bitset0_b32 s{sTODO}, s{sSL}
    s_cmp_eq_u32 s{sTODO}, 0
    s_cbranch_scc1 L_p2_done
    s_ff1_i32_b32 s{sSL}, s{sTODO}""")
    dist_loads(sSL)
    k("s_waitcnt vmcnt(0)")
    gates2()
    slice_loads()
    k("s_branch L_p2_fin\nL_p2_done:")
    if o["stamp"]:
        stamp(k, 49, 42); k("s_waitcnt vmcnt(0)"); stamp(k, 58, 42); stamp(k, 61, 42, real=True)
        stamp_dump(k, f"s_lshl_b32 s{sT0}, s{sOB}, 8\ns_lshl_b32 s{sT1}, s{sQ}, 4\ns_or_b32 s{sT0}, s{sT0}, s{sT1}\ns_or_b32 s{sT0}, s{sT0}, s{sWAVE}\ns_cmp_eq_u32 s{sT0}, {(o.get('dob', 5) << 8) | (o.get('dq', 1) << 4) | o.get('dw', 5)}", 52)
    k(f"s_branch {end}\nL_p2_slow:")
    k(f"""s_barrier
    v_mov_b32 v8, 0
    v_mov_b32 v9, 0
    v_mov_b32 v10, 0
    v_mov_b32 v11, 0
    v_mov_b32 v12, v{vA16}""")
    for u in range(10):
        k("ds_write_b128 v12, v[8:11]\nv_add_u32 v12, 16384, v12")
    k(f"""v_mul_u32_u24 v13, {TAB_ROW}, v0
    v_mov_b32 v29, 0x7fc00000
    v_add_u32 v28, 32, v13
    v_lshlrev_b32 v14, 10, v0
    v_add_u32 v14, {OFF_REC}, v14
    s_mul_i32 s{sTB}, s{sQ}, 65
    s_add_u32 s{sTB}, s{sTB}, s{sOB}
    s_lshl_b32 s{sTB}, s{sTB}, 5
    s_add_u32 s{sTB}, s{sTB}, {OFF_TAB}
    s_lshl_b32 s{sACC}, s{sACC}, 1
    s_mul_i32 s{sMOFF}, s{sQ}, {16*R*8}
    s_mov_b32 s{sIT}, 0
    s_waitcnt lgkmcnt(0)
    s_barrier
    L_p2_sstep:
    buffer_load_ushort v15, v13, s[{sREC}:{sREC+3}], s{sTB} offen
    buffer_load_ushort v16, v28, s[{sREC}:{sREC+3}], s{sTB} offen
    s_waitcnt vmcnt(0)
    L_p2_srec:
    v_cmp_lt_u32 vcc, v15, v16
    s_nop 1
    s_and_b64 exec, exec, vcc
    s_cbranch_execz L_p2_sdone
    v_mul_u32_u24 v17, 43691, v15
    v_lshrrev_b32 v17, 17, v17
    v_mad_i32_i24 v18, v17, -3, v15
    v_lshrrev_b32 v19, 6, v17
    v_lshl_add_u32 v19, v19, 20, v14
    v_and_b32 v17, 63, v17
    v_lshl_add_u32 v17, v17, 4, v19
    v_lshl_add_u32 v19, v18, 2, v17
    buffer_load_dword v20, v19, s[{sREC}:{sREC+3}], 0 offen
    buffer_load_dword v21, v17, s[{sREC}:{sREC+3}], 0 offen offset:12
    v_add_u32 v15, 1, v15
    v_mad_u32_u24 v18, v18, 10, 2
    s_waitcnt vmcnt(0)
    v_and_b32 v19, 0x3fff, v20
    v_lshlrev_b32 v19, 3, v19
    buffer_load_dwordx2 v[22:23], v19, s[{sM}:{sM+3}], s{sMOFF} offen
    v_mad_u32_u16 v20, v20, 16, s{sACC} op_sel:[1,0,0,0]
    v_bfe_i32 v21, v21, v18, 10
    v_cmp_eq_i32 vcc, -512, v21
    v_cvt_f32_i32 v21, v21
    v_mul_f32 v21, {f2u(1.0/CQ)}, v21
    v_cndmask_b32 v21, v21, v29, vcc
    s_waitcnt vmcnt(0)
    v_lshlrev_b32 v24, 16, v22
    v_and_b32 v25, 0xffff0000, v22
    v_lshlrev_b32 v26, 16, v23
    v_and_b32 v27, 0xffff0000, v23
    v_mul_f32 v24, v21, v24
    v_mul_f32 v25, v21, v25
    v_mul_f32 v26, v21, v26
    v_mul_f32 v27, v21, v27
    ds_add_f32 v20, v24
    ds_add_f32 v20, v25 offset:4
    ds_add_f32 v20, v26 offset:8
    ds_add_f32 v20, v27 offset:12
    s_branch L_p2_srec
    L_p2_sdone:
    s_mov_b64 exec, -1
    s_add_u32 s{sTB}, s{sTB}, 2
    s_add_u32 s{sMOFF}, s{sMOFF}, {R*8}
    s_add_u32 s{sIT}, s{sIT}, 1
    s_cmp_lt_u32 s{sIT}, 16
    s_cbranch_scc1 L_p2_sstep
    s_waitcnt lgkmcnt(0)
    s_barrier
    s_mul_i32 s{sT0}, s{sQ}, {E*16}
    s_mul_i32 s{sT1}, s{sOB}, {R*16}
    s_add_u32 s{sSO}, s{sT0}, s{sT1}
    s_add_u32 s{sSO}, s{sSO}, {OFF_P32}
    v_mov_b32 v12, v{vA16}
    s_mov_b32 s{sIT}, 0
    L_p2_sout:
    v_cmp_gt_u32 vcc, {R*16}, v12
    ds_read_b128 v[8:11], v12
    s_nop 0
    s_and_b64 exec, exec, vcc
    s_cbranch_execz L_p2_sfin
    s_waitcnt lgkmcnt(0)
    buffer_store_dwordx4 v[8:11], v12, s[{sREC}:{sREC+3}], s{sSO} offen sc1
    s_waitcnt vmcnt(0)
    v_add_u32 v12, 16384, v12
    s_branch L_p2_sout
    L_p2_sfin:
    s_mov_b64 exec, -1
    s_waitcnt vmcnt(0) lgkmcnt(0)
    s_barrier
    s_branch L_p2_signal
    {end}:
    s_endpgm""")
    return k


def rnd2(k, a, b, t):
    k(f"""v_cvt_pk_bf16_f32 v{t}, v{a}, v{b}
    v_lshlrev_b32 v{a}, 16, v{t}
    v_and_b32 v{b}, 0xffff0000, v{t}""")


NOTES = """
Generated by tools/gen.py (hand-written generator; edit that file, not this one).
S[e] = sum over triplets t with idx_out[t] = e of cos(freq * angle[t]) * m[idx_in[t]]
out  = m + (((S @ w_down) * (rbf @ w_sbf)) @ w_up) * (rbf @ w_rbf)
p1: counting sort of 1024 chunks of 40000 triplets by (idx_in / 10000, idx_out / 10000) through LDS.
p2: workgroup = (10000 output edges, quarter of the input rows): m tile and scaled-integer sums in LDS
    (scale from max|m| and mean|m|, every add range-checked); any failed check reruns the workgroup with
    f32 sums.  The four quarters exchange partial sums and each finishes 2500 edges.
"""

if __name__ == "__main__":
    if sys.argv[1] == "p2var":
        import json
        for n, oo in json.loads(sys.argv[2]).items():
            o1 = oo.pop("p1", {})
            only1 = oo.pop("only1", 0); tl = oo.pop("tl", 0); nempty = oo.pop("nempty", 0); stt = oo.pop("selftime", 0)
            if only1: o1.setdefault("cpf", 1)
            ks = [pass1(**o1)] if only1 else [pass1(**o1), pass2(opts=oo)]
            if tl: ks = [timeline(x, i) for i, x in enumerate(ks)]
            if stt: selftime(ks[0], ks[1])
            ls = list(ks)
            if nempty:
                e = K("e_kernel", 256, 64, 0, 8); e("s_endpgm"); ks.append(e)
                ls = ls[:1] + [e]*nempty + ls[1:]
            open(f"p2_{n}.s", "w").write(assemble_file(ks, ls))
    else:
        ks = [pass1(), pass2(force_slow=(len(sys.argv) > 2 and sys.argv[2] == "slow"))]
        open(sys.argv[1], "w").write(assemble_file(ks, notes=NOTES))
```

```python
import sys
from asmlib import *

C = 40000
NCH = 1024
R = 10000
CMAX = 40064
import os
INTAG = int(os.environ.get("INTAG", 1))
CQ = 511
NBLK = ((CMAX + 2) // 3 + 255) // 256
TAB_ROW = 4 * 65 * 32
TAB_BYTES = NCH * TAB_ROW
OFF_REC = 0
OFF_TAB = NBLK << 22
OFF_INFO1 = OFF_TAB + TAB_BYTES
OFF_CNT = OFF_INFO1 + 4096
OFF_MC = OFF_CNT + 64 * 256
OFF_P16 = OFF_MC
OFF_P32 = OFF_P16 + 4 * E * 8
assert OFF_P32 + 4 * E * 16 <= WS_BYTES
MAGIC_DIV = (2**32 + R - 1) // R
LDS_ALL = 163840
SD = "dst_sel:DWORD dst_unused:UNUSED_PAD src0_sel:DWORD"


import struct
f2u = lambda x: struct.unpack("<I", struct.pack("<f", x))[0]


class Cnt:
    def __init__(self, k, name, mx):
        self.k, self.name, self.mx, self.q = k, name, mx, []
        self.rec, self.forced = [], None
    def issue(self, tag=None):
        self.q.append(tag)
    def wait(self, tag):
        idx = [i for i, t in enumerate(self.q) if t == tag]
        n = min(len(self.q) - 1 - idx[-1], self.mx) if idx else None
        if self.forced is not None:
            f = self.forced[len(self.rec)]
            assert n is None or (f is not None and f <= n)
            n = f
        self.rec.append(n)
        if n is None:
            return
        self.k(f"s_waitcnt {self.name}({n})")
        if len(self.q) > n:
            self.q = self.q[len(self.q) - n:] if n else []


def emit_loop(k, cnts, body):
    n0, lab0 = len(k.L), k.nlab
    entry = [list(c.q) for c in cnts]
    recs = []
    for trial in range(3):
        for c in cnts: c.rec, c.forced = [], None
        k.first = trial == 0
        body()
        recs.append([list(c.rec) for c in cnts])
        del k.L[n0:]; k.nlab = lab0
    last = [list(c.q) for c in cnts]
    for i, c in enumerate(cnts):
        merged = []
        for col in zip(*[r[i] for r in recs]):
            v = [x for x in col if x is not None]
            merged.append(min(v) if v else None)
        c.q, c.rec, c.forced = entry[i], [], merged
    k.first = True
    body()
    for i, c in enumerate(cnts):
        c.forced, c.rec, c.q = None, [], last[i]


def stamp(k, i, sa, v=125, real=False):
    k(f"""s_waitcnt lgkmcnt(0)
    {'s_memrealtime' if real else 's_memtime'} s[{sa}:{sa+1}]
    s_waitcnt lgkmcnt(0)""")
    if isinstance(i, str):
        k(f"s_mov_b32 m0, {i}\nv_writelane_b32 v{v}, s{sa}, m0")
    else:
        k(f"v_writelane_b32 v{v}, s{sa}, {i}")


def stamp_dump(k, cond, sa, v=125, vt=126):
    lab = k.lab("nodump")
    k(cond)
    k(f"""s_cbranch_scc0 {lab}
    s_load_dwordx2 s[{sa}:{sa+1}], s[0:1], 96
    s_waitcnt lgkmcnt(0)
    s_mov_b32 s{sa+2}, 256
    s_mov_b32 s{sa+3}, 0x00020000
    v_and_b32 v{vt}, 63, v0
    v_lshlrev_b32 v{vt}, 2, v{vt}
    buffer_store_dword v{v}, v{vt}, s[{sa}:{sa+3}], 0 offen
    {lab}:""")


def timeline(k, idx):
    first = [i for i, l in enumerate(k.L) if "s_cbranch_scc1" in l][0]
    k.L[first+1:first+1] = ["    s_memrealtime s[98:99]", "    s_lshl_b32 s97, s2, 24", "    s_waitcnt lgkmcnt(0)", "    s_and_b32 s98, s98, 0xffffff", "    s_or_b32 m0, s97, s98"]
    k.L[first] = f"    s_cbranch_scc1 L_tl_{idx}"
    last = len(k.L) - 1
    assert "s_endpgm" in k.L[last]
    nw = k.block // 64
    k.L[last:last] = ["    " + l.strip() for l in f"""s_waitcnt vmcnt(0) lgkmcnt(0)
    s_load_dwordx2 s[4:5], s[0:1], 104
    s_memrealtime s[98:99]
    s_waitcnt lgkmcnt(0)
    s_mov_b32 s6, {WS_BYTES}
    s_mov_b32 s7, 0x00020000
    s_and_b32 s96, m0, 0xffffff
    s_lshr_b32 s97, m0, 24
    s_and_b32 s98, s98, 0xffffff
    s_mov_b64 exec, 1
    v_mov_b32 v2, s96
    v_mov_b32 v3, s98
    v_mov_b32 v4, 0
    s_lshl_b32 s97, s97, 3
    s_add_u32 s97, s97, {610000000 + idx*65536}
    buffer_store_dwordx2 v[2:3], v4, s[4:7], s97 offen""".split("\n")] + [f"L_tl_{idx}:"]
    k.sgpr = 102
    return k


def selftime(k1, k):
    first = [i for i, l in enumerate(k1.L) if "s_cbranch_scc1" in l][0]
    k1.L[first+1:first+1] = ["    " + l.strip() for l in f"""s_cmp_lg_u32 s2, 0
    s_cbranch_scc1 L_st1
    s_memrealtime s[8:9]
    s_load_dwordx2 s[4:5], s[0:1], 104
    s_waitcnt lgkmcnt(0)
    s_mov_b32 s6, {WS_BYTES}
    s_mov_b32 s7, 0x00020000
    s_mov_b32 s10, 620000000
    v_mov_b32 v2, s8
    buffer_store_dword v2, off, s[4:7], s10
    s_waitcnt vmcnt(0)""".split("\n")] + ["L_st1:"]
    first = [i for i, l in enumerate(k.L) if "s_cbranch_scc1" in l][0]
    k.L[first+1:first+1] = ["    s_memrealtime s[98:99]", "    s_memtime s[96:97]", "    s_waitcnt lgkmcnt(0)", "    v_mov_b32 v51, s98", "    v_mov_b32 v55, s96"]
    k.L[first] = "    s_cbranch_scc1 L_st"
    last = len(k.L) - 1
    k.L[last:last] = ["    " + l.strip() for l in """s_waitcnt vmcnt(0) lgkmcnt(0)
    s_mov_b64 exec, 1
    s_mov_b32 s10, 620000000
    buffer_load_dword v5, off, s[4:7], s10
    s_load_dwordx2 s[4:5], s[0:1], 96
    s_memrealtime s[98:99]
    s_memtime s[96:97]
    s_waitcnt lgkmcnt(0) vmcnt(0)
    s_mov_b32 s6, 256
    s_mov_b32 s7, 0x00020000
    v_sub_u32 v2, s98, v5
    v_sub_u32 v3, v51, v5
    v_sub_u32 v4, s96, v55
    s_cmp_lg_u32 s13, 0
    s_cbranch_scc1 L_st
    buffer_atomic_umax v2, off, s[4:7], 0
    buffer_atomic_umax v3, off, s[4:7], 0 offset:4
    buffer_atomic_umax v4, off, s[4:7], 0 offset:8""".split("\n")] + ["L_st:"]


def code_prefetch(k, sp, va, vd, label_from, nbytes):
    lab = k.lab("pc")
    k(f"""s_getpc_b64 s[{sp}:{sp+1}]
    {lab}:
    s_add_u32 s{sp}, s{sp}, {label_from}-{lab}
    s_addc_u32 s{sp+1}, s{sp+1}, 0
    v_lshlrev_b32 v{va}, 7, v0
    v_min_u32 v{va}, {nbytes}, v{va}
    global_load_dword v{vd}, v{va}, s[{sp}:{sp+1}]""")


def scan64(k, v, op="v_add_u32"):
    for sh in (1, 2, 4, 8):
        k(f"s_nop 1\n{op}_dpp v{v}, v{v}, v{v} row_shr:{sh} row_mask:0xf bank_mask:0xf bound_ctrl:0")
    k(f"s_nop 1\n{op}_dpp v{v}, v{v}, v{v} row_bcast:15 row_mask:0xa bank_mask:0xf")
    k(f"s_nop 1\n{op}_dpp v{v}, v{v}, v{v} row_bcast:31 row_mask:0xc bank_mask:0xf")


def scan16(k, v, op="v_add_u32"):
    for sh in (1, 2, 4, 8):
        k(f"s_nop 1\n{op}_dpp v{v}, v{v}, v{v} row_shr:{sh} row_mask:0xf bank_mask:0xf bound_ctrl:0")


def pass1(stflag="sc1", plan=None, diag=None, tabflag="sc1", cplan=None, nearly=0, rb=10, rsw=0, grp=2, contig=0, ibar="", cpf=2, flip=0, pre=5, mpos=0, mcopy=0, ltabat="pe", thr=None, thrf=None, thrs=0, thro=None, thre=None, abl="", late=1, tsch="0||1|2|3|", dfr=1, dpf=0, wpf=0, thrx="", thrh="", force=None, nvote=64, vmin=6, ppos=5, pwave=0):
    k = K("p1_kernel", 256, 1024, LDS_ALL, 128)
    def st_(n):
        if diag is not None:
            k(f"s_mul_i32 s82, s40, 12\ns_add_u32 s82, s82, {1+n}"); stamp(k, "s82", 80, v=5)
    vm = Cnt(k, "vmcnt", 63)
    sWS, sIN, sOUT, sANG, sREC, sTAB, sM = 4, 8, 12, 16, 20, 24, 28
    sCI, sOI, sOA, sT0, sT1, sNEG, sKC, sWAVE, sIT, sKF, sTO, sPERM = 32, 33, 34, 35, 36, 37, 38, 39, 40, 41, 42, 43
    sM9 = 44
    sNUL, sTOTAL, sBAD = 46, 54, 55
    sF4, sF2, sD3 = 48, 49, 50
    sE0, sE1 = 56, 64
    vA16, vA8, vTR, vONE, vNAN = 1, 2, 3, 4, 5
    TMP = list(range(6, 16))
    NPF = 4
    SLOT = [16 + 8*i for i in range(NPF)]
    RB = 48
    H, H2, CA, SP = 0, 16384, 16384, CMAX*4
    PRE = SP + 512
    sPAD, sW13, sSL0, sDBG = 53, 42, 76, 84
    DEC = SP + 640
    Q = [RB + 4*q for q in range(13)]
    B = [RB + 52 + 4*b for b in range(7)]
    XQ = 12
    Cr = lambda j: B[0] + j // 2
    LAND = {g: (SLOT[g], SLOT[g] + 4) for g in range(NPF)}
    LAND.update({4: (Q[6], Q[7]), 5: (Q[8], B[0]), 6: (Q[9], B[1]), 7: (Q[10], B[2]), 8: (Q[11], B[3]), 9: (Q[12], B[4])})
    tsch = [[int(c) for c in part] for part in tsch.split("|")]
    trest = [g for g in range(10) if not any(g in p for p in tsch)]
    wfree, pfree, WS_, PS_ = [B[6] + 3], [B[5] + x for x in range(4)] + [B[6] + x for x in range(3)], {}, {}
    def free_quad(r): wfree.extend([r, r + 1, r + 2]); pfree.append(r + 3)
    def place(g):
        I, O = LAND[g]
        if I in Q: free_quad(I)
        PS_[g] = [pfree.pop(0) for _ in range(2)]
        if O in Q: free_quad(O)
        WS_[g] = [wfree.pop(0) for _ in range(4)]
    for it in range(6):
        free_quad(Q[it])
        for g in tsch[it]:
            assert g < NPF + it
            place(g)
    for g in trest: place(g)
    assert not wfree and not pfree
    Wr = lambda j: WS_[j // 4][j & 3]
    Pr = lambda j: PS_[j // 4][(j >> 1) & 1]
    M9 = f"s_mov_b64 exec, s[{sM9}:{sM9+1}]"
    end = "L_p1_end"
    k(f"s_cmp_ge_u32 s2, 256\ns_cbranch_scc1 {end}")
    if flip: k(f"s_xor_b32 s2, s2, {flip}")
    k.ldptr(sWS, "ws"); k.ldptr(sIN, "idx_in"); k.ldptr(sOUT, "idx_out"); k.ldptr(sANG, "angle"); k.ldptr(sM, "m")
    k.ldptr(6, "ang_freq"); k.ldptr(sDBG, "dbg")
    if dpf: k.ldptr(76, "dist")
    if wpf: k(f"s_load_dwordx2 s[76:77], s[0:1], {KA['centers']}\ns_load_dwordx8 s[84:91], s[0:1], {KA['w_rbf']}")
    if cpf:
        k("v_cmp_gt_u32 vcc, 256, v0\ns_nop 1\ns_cbranch_vccz L_p1_nopf")
        code_prefetch(k, 72, 14, 15, "L_p1_nopf", "L_p2_end-L_p1_nopf" if cpf == 2 else "L_p1_end-L_p1_nopf")
        k("L_p1_nopf:")
    k(f"""v_lshlrev_b32 v{vA16}, 4, v0
    v_lshlrev_b32 v{vA8}, 3, v0
    v_lshrrev_b32 v6, 6, v0
    v_and_b32 v{vTR}, 1023, v{vA16}
    v_mov_b32 v{vONE}, 1
    v_mov_b32 v{vNAN}, 0
    v_readfirstlane_b32 s{sWAVE}, v6
    v_cmp_gt_u32 vcc, 784, v0
    """)
    def regroup(d, n):
        k(f"""s_and_b32 s{d}, s2, 7
        s_lshl_b32 s{d}, s{d}, {n}
        s_bfe_u32 s{sT0}, s2, {3 | (n << 16)}
        s_add_u32 s{d}, s{d}, s{sT0}
        s_and_b32 s{sT0}, s2, {255 & ~((8 << n) - 1)}
        s_add_u32 s{d}, s{d}, s{sT0}""")
    regroup(51, rsw)
    nfull = 784 >> rb; part = 784 - (nfull << rb)
    k(f"""s_lshr_b32 s{sT0}, s{sWAVE}, {rb-6}
    s_mul_i32 s{sT1}, s{sT0}, {255*(16 << rb)}
    s_lshl_b32 s{sOI}, s51, {4+rb}
    s_add_u32 s{sOI}, s{sOI}, s{sT1}
    s_lshr_b32 s{sOA}, s{sOI}, 1
    s_mul_i32 s{sF4}, s51, {((1 << rb) - part)*16}
    s_cmp_ge_u32 s{sT0}, {nfull}
    s_cselect_b32 s{sF4}, s{sF4}, 0
    s_lshr_b32 s{sF2}, s{sF4}, 1
    """)
    if contig:
        k(f"""s_mul_i32 s{sOI}, s51, {C*4*(4 if contig == 2 else 1)}
        s_lshr_b32 s{sOA}, s{sOI}, 1
        s_mov_b32 s{sF4}, 0
        s_mov_b32 s{sF2}, 0""")
    GS = 1 if contig else 256
    RS = 1 if contig == 2 else 256
    k(f"""
    s_mov_b64 s[{sM9}:{sM9+1}], vcc
    s_waitcnt lgkmcnt(0)
    s_load_dword s3, s[6:7], 0""")
    k.srd_finish(sIN, T*4); k.srd_finish(sOUT, T*4); k.srd_finish(sANG, T*2)
    if contig == 2: k(f"s_add_u32 s{sIN+2}, s{sOI}, {C*16}\ns_mov_b32 s{sOUT+2}, s{sIN+2}")
    if diag is not None:
        stamp(k, 0, 80, v=5); stamp(k, 60, 80, v=5, real=True)

    def load_idx(g, which, nxt=False):
        srd = (sIN, sOUT)[which]; d = LAND[g][which]
        k(f"s_add_u32 s{sT0}, s{sOI}, {g*16384*GS + (RS*C*4 if nxt else 0)}")
        a = vA16
        if g == 9:
            a = d
            k(f"s_sub_u32 s{sT0}, s{sT0}, s{sF4}\nv_cndmask_b32 v{a}, 2.0, v{vA16}, s[{sM9}:{sM9+1}]")
        k(f"buffer_load_dwordx4 v[{d}:{d+3}], v{a}, s[{srd}:{srd+3}], s{sT0} offen nt"); vm.issue(f"g{g}")
    def load_ang(g):
        d = Cr(4*g)
        k(f"s_add_u32 s{sT0}, s{sOA}, {g*8192*GS}")
        a = vA8
        if g == 9:
            a = d
            k(f"s_sub_u32 s{sT0}, s{sT0}, s{sF2}\nv_cndmask_b32 v{a}, 2.0, v{vA8}, s[{sM9}:{sM9+1}]")
        k(f"buffer_load_dwordx2 v[{d}:{d+1}], v{a}, s[{sANG}:{sANG+3}], s{sT0} offen nt"); vm.issue(f"a{g}")

    k.srd_finish(sDBG, 256)
    def probe():
        k(f"""s_cmp_lg_u32 s{sWAVE}, {pwave}
        s_cbranch_scc1 L_p1_noprobe
        s_cmp_ge_u32 s2, {nvote}
        s_cbranch_scc1 L_p1_noprobe
        s_mul_i32 s88, s2, {52*256//nvote}
        s_lshr_b32 s88, s88, 8
        s_lshl_b32 s88, s88, 22
        s_and_b32 s90, s2, 63
        s_mul_i32 s90, s90, {0x4000}
        s_add_u32 s88, s88, s90
        s_add_u32 s88, s{sWS}, s88
        s_addc_u32 s89, s{sWS+1}, 0
        s_load_dword s91, s[88:89], 0x1000
        s_lshl_b32 s90, s2, 10
        s_and_b32 s90, s90, 0x2000
        s_xor_b32 s94, s90, 0x2000
        s_waitcnt lgkmcnt(0)
        s_load_dword s91, s[88:89], s90
        s_load_dwordx2 s[92:93], s[88:89], s94
        s_waitcnt lgkmcnt(2)
        s_getreg_b32 s{sT0}, hwreg(HW_REG_IB_STS, 9, 1)
        s_waitcnt lgkmcnt(0)
        s_getreg_b32 s91, hwreg(HW_REG_XCC_ID, 0, 3)
        s_lshr_b32 s90, s2, 3
        s_lshr_b32 s92, s91, 2
        s_xor_b32 s90, s90, s92
        s_xor_b32 s90, s90, s{sT0}
        s_and_b32 s90, s90, 1
        s_or_b32 s90, s90, 0x10000
        v_mov_b32 v8, s90
        s_mov_b64 exec, 1
        buffer_atomic_add v8, off, s[{sDBG}:{sDBG+3}], 0 offset:128 sc0
        s_sub_u32 s91, s91, s2
        s_and_b32 s91, s91, 7
        s_or_b32 s92, s91, 8
        s_waitcnt vmcnt(0)
        v_readfirstlane_b32 s93, v8""")
        nq = nvote*3//4
        k(f"""s_nop 0
        s_add_u32 s90, s90, s93
        s_cmp_le_u32 s90, {(nq << 16) + nq//2 - vmin}
        s_cselect_b32 s92, s92, 16
        s_cmp_ge_u32 s90, {(nq << 16) + nq//2 + vmin}
        s_cselect_b32 s92, s91, s92
        s_or_b32 s92, s92, 32
        {"" if force is None else "s_mov_b32 s92, %d" % (32 | force)}
        v_mov_b32 v8, s92
        v_mov_b32 v9, 0
        s_lshr_b32 s90, s90, 16
        s_cmp_lg_u32 s90, {nq}
        s_cbranch_scc1 L_p1_voted
        buffer_atomic_cmpswap v[8:9], off, s[{sDBG}:{sDBG+3}], 0
        L_p1_voted:
        s_mov_b64 exec, -1
        L_p1_noprobe:""")
    for g in range(pre + 1):
        if g == ppos: probe()
        if g == mpos:
            k(f"""s_mul_i32 s{sT1}, s2, 20000
            s_add_u32 s{sM+2}, s{sT1}, 20000
            s_mov_b32 s{sM+3}, 0x00020000
            s_add_u32 s{sT0}, s{sT1}, 16384
            buffer_load_dwordx4 v[{RB}:{RB+3}], v{vA16}, s[{sM}:{sM+3}], s{sT1} offen {"nt" if mcopy else ""}
            buffer_load_dwordx4 v[{RB+4}:{RB+7}], v{vA16}, s[{sM}:{sM+3}], s{sT0} offen {"nt" if mcopy else ""}""")
            vm.issue("m"); vm.issue("m")
            if wpf:
                k(f"s_lshr_b32 s{sT0}, s2, 3\ns_or_b32 s{sT0}, s{sT0}, s{sWAVE}\ns_cbranch_scc1 L_p1_nowpf\nv_mov_b32 v13, 0")
                for p in (76, 84, 86, 88, 90): k(f"global_load_dword v14, v13, s[{p}:{p+1}]")
                k("L_p1_nowpf:")
            if dpf:
                k(f"""s_mul_i32 s{sT1}, s2, 5000
                s_add_u32 s78, s{sT1}, 5000
                s_mov_b32 s79, 0x00020000
                v_lshlrev_b32 v13, 6, v0
                buffer_load_dword v13, v13, s[76:79], s{sT1} offen"""); vm.issue("d")
        if g < pre: load_idx(g, 0); load_idx(g, 1)
    k(f"""s_mov_b32 s{sREC}, s{sWS}
    s_mov_b32 s{sREC+1}, s{sWS+1}
    s_mov_b32 s{sREC+2}, 0
    s_mov_b32 s{sREC+3}, 0x00020000
    s_add_u32 s{sTAB}, s{sWS}, {OFF_TAB}
    s_addc_u32 s{sTAB+1}, s{sWS+1}, 0
    s_mov_b32 s{sTAB+2}, {OFF_MC - OFF_TAB}
    s_mov_b32 s{sTAB+3}, 0x00020000
    s_mov_b32 s{sNEG}, {((-R) & 0xffff) | ((0x8000 - R) << 16)}
    s_mov_b32 s{sBAD}, 0
    s_mov_b64 s[{sSL0}:{sSL0+1}], 0
    s_mul_i32 s{sW13}, s{sWAVE}, 13
    s_mov_b64 s[72:73], s[{sWS}:{sWS+1}]
    s_mov_b32 s74, 0
    s_mov_b32 s75, 0x00020000
    s_mov_b32 s{sD3}, 21845
    s_mov_b32 s52, 0x8000
    s_mov_b32 s{sKC}, {256 | (4 << 16)}
    s_mov_b32 s{sPERM}, 0x05040100
    s_mov_b32 s{sIT}, 0
    v_mov_b32 v8, 0
    v_mov_b32 v9, 0
    v_mov_b32 v10, 0
    v_mov_b32 v11, 0
    ds_write_b128 v{vA16}, v[8:11] offset:{H}
    v_min_u32 v7, 16, v0
    v_lshlrev_b32 v7, 2, v7
    v_add_u32 v7, {PRE}, v7
    ds_write_b32 v7, v8
    s_waitcnt lgkmcnt(0)
    s_lshl_b32 s3, s3, 16
    v_mov_b32 v12, s3
    v_mul_f32 v12, 0.15915494, v12
    s_nop 0
    v_readfirstlane_b32 s{sKF}, v12""")
    vm.wait("m")
    if mcopy:
        k(f"""s_add_u32 s{sM}, s{sWS}, {OFF_MC}
        s_addc_u32 s{sM+1}, s{sWS+1}, 0
        s_mul_i32 s{sT1}, s2, 20000
        s_add_u32 s{sT0}, s{sT1}, 16384
        buffer_store_dwordx4 v[{RB}:{RB+3}], v{vA16}, s[{sM}:{sM+3}], s{sT1} offen
        buffer_store_dwordx4 v[{RB+4}:{RB+7}], v{vA16}, s[{sM}:{sM+3}], s{sT0} offen
        s_nop 0""")
        vm.issue("mc"); vm.issue("mc")
    k("v_mov_b32 v12, 0x3f803f80")
    for i in range(8):
        k(f"v_and_b32 v{RB+i}, 0x7fff7fff, v{RB+i}")
    for i in range(8):
        k(f"v_pk_max_u16 v8, v8, v{RB+i}\nv_dot2c_f32_bf16 v9, v{RB+i}, v12")
    k(f"v_lshrrev_b32 v10, 16, v8\nv_and_b32 v8, 0xffff, v8\nv_max_u32 v8, v8, v10\ns_nop 0")
    scan64(k, 8, "v_max_u32"); scan64(k, 9, "v_add_f32")
    k(f"""s_lshl_b32 s{sT0}, s{sWAVE}, 4
    s_add_u32 s{sT0}, s{sT0}, {SP+64}
    v_mov_b32 v10, s{sT0}
    s_mov_b32 exec_lo, 0
    s_brev_b32 exec_hi, 1
    ds_write_b64 v10, v[8:9]
    s_mov_b64 exec, -1""")
    k(f"""s_waitcnt lgkmcnt(0)
    s_barrier
    s_cmp_lg_u32 s{sWAVE}, 0
    s_cbranch_scc1 L_p1_first
    v_and_b32 v6, 15, v0
    v_lshlrev_b32 v6, 4, v6
    v_add_u32 v6, {SP+64}, v6
    ds_read_b64 v[8:9], v6
    s_waitcnt lgkmcnt(0)""")
    scan16(k, 8, "v_max_u32"); scan16(k, 9, "v_add_f32")
    k(f"""s_lshl_b32 s{sT0}, s2, 3
    s_add_u32 s{sT0}, s{sT0}, {TAB_BYTES}
    v_mov_b32 v6, 0
    s_mov_b64 exec, 0x8000
    buffer_store_dwordx2 v[8:9], v6, s[{sTAB}:{sTAB+3}], s{sT0} offen sc1
    s_lshl_b32 s{sT0}, s2, 8
    s_add_u32 s{sT0}, s{sT0}, {OFF_CNT - OFF_TAB}
    buffer_store_dword v6, v6, s[{sTAB}:{sTAB+3}], s{sT0} offen sc1
    s_mov_b64 exec, -1
    s_branch L_p1_first""")

    QORD = [13, 6, 7, 0, 8, 1, 9, 2, 10, 3, 11, 4, 12, 5]
    STG = [B[b] + 2*x for b in (5, 6, 0, 1, 2, 3, 4) for x in range(2)]
    NST = 14
    def goff(q):
        return f"""s_add_u32 s{sT1}, s{sW13}, {PN(q)}
        s_and_b32 s{sT0}, s{sT1}, 3
        s_mul_i32 s{sT0}, s{sT0}, {(1 << 20) - 1024}
        s_lshl_b32 s{sT1}, s{sT1}, 20
        s_sub_u32 s{sT1}, s{sT1}, s{sT0}"""
    PN = lambda q: (QORD.index(q) - 1) % 14
    def cread(n):
        pn = PN(QORD[n])
        k(f"ds_read_b64 v[{STG[n]}:{STG[n]+1}], v6 offset:{CA + pn*512}")
    DQ = [1, 2, 10, 3, 11, 4, 12, 5] if dfr else []
    assert not dfr or tsch == [[0], [], [1], [2], [3], []]
    sOLD = 72
    def store_quad(q, defer=False):
        r = Q[q] if q < 13 else XQ
        n = QORD.index(q); d = STG[n]; x = r + 3
        if q == 13:
            lab = k.lab("nox"); k(f"s_cmp_lg_u32 s{sWAVE}, 15\ns_cbranch_scc1 {lab}")
        if n < 4: k(f"s_waitcnt lgkmcnt({13-n if n < 3 else 0})")
        if late:
            k(f"v_lshlrev_b32 v{x}, 16, v{d}\nv_and_b32 v{d}, 0xffff0000, v{d}\nv_lshlrev_b32 v{d+1}, 16, v{d+1}")
            for y in (x, d, d+1): k(f"v_mul_f32 v{y}, s{sKF}, v{y}")
            for y in (x, d, d+1): k(f"v_fract_f32 v{y}, v{y}")
            for y in (x, d, d+1): k(f"v_cos_f32 v{y}, v{y}")
            for y in (x, d, d+1): k(f"v_fmaak_f32 v{y}, v10, v{y}, {0x4b400000 + 512}")
            k(f"v_lshlrev_b32 v{x}, 22, v{x}")
        else: k(f"v_lshlrev_b32 v{x}, 22, v{d}\nv_lshrrev_b32 v{d}, 16, v{d}")
        k(f"""v_alignbit_b32 v{x}, v{d}, v{x}, 10
        v_alignbit_b32 v{x}, v{d+1}, v{x}, 10
        v_xor_b32 v{x}, 0x80200800, v{x}""")
        if defer:
            l0, l1 = k.lab("now"), k.lab("held"); h = SLOT[0] + 4*DQ.index(q)
            k(f"""s_cmp_lg_u32 s{sIT}, 3
            s_cbranch_scc1 {l0}
            v_mov_b64 v[{h}:{h+1}], v[{r}:{r+1}]
            v_mov_b64 v[{h+2}:{h+3}], v[{r+2}:{r+3}]
            s_branch {l1}
            {l0}:""")
        k(goff(q) + f"\nbuffer_store_dwordx4 v[{r}:{r+3}], v{vTR}, s[{sREC}:{sREC+3}], s{sT1} offen {stflag}")
        if defer: k(f"{l1}:")
        if q == 13: k(f"{lab}:")

    def transform(g):
        I, O = LAND[g]
        t = TMP[0:4]
        for j in range(4): k(f"v_perm_b32 v{t[j]}, v{O+j}, v{I+j}, s{sPERM}")
        for j in range(4): k(f"v_mul_hi_u32_u24 v{I+j}, {MAGIC_DIV}, v{I+j}\nv_mul_hi_u32_u24 v{O+j}, {MAGIC_DIV}, v{O+j}")
        for j in range(4): k(f"v_lshl_or_b32 v{I+j}, v{O+j}, 16, v{I+j}")
        for j in range(4): k(f"v_dot2_u32_u16 v{O+j}, v{I+j}, s{sKC}, 0")
        for j in range(4): k(f"v_pk_mad_u16 v{t[j]}, v{I+j}, s{sNEG}, v{t[j]}")
        for j in range(4): k(f"ds_add_u32 v{O+j}, v{vONE} offset:{H}")
        if INTAG:
            for j in range(4): k(f"v_pk_mad_u16 v{t[j]}, v{I+j}, s52, v{t[j]} op_sel:[1,0,0] op_sel_hi:[1,1,1]")
        k(f"v_perm_b32 v{Pr(4*g+2)}, v{O+3}, v{O+2}, s{sPERM}\nv_perm_b32 v{Pr(4*g)}, v{O+1}, v{O}, s{sPERM}")
        for j in range(4): k(f"v_or_b32 v{Wr(4*g+j)}, 0x40000000, v{t[j]}")

    def cosines(g, t, vq):
        vm.wait(f"a{g}")
        A = Cr(4*g)
        if late:
            if diag is None: k(f"v_pk_maximum3_f16 v{vNAN}, v{A}, v{A+1}, v{vNAN}")
            return
        k(f"""v_lshlrev_b32 v{t[0]}, 16, v{A}
        v_lshlrev_b32 v{t[1]}, 16, v{A+1}
        v_and_b32 v{A}, 0xffff0000, v{A}
        v_and_b32 v{A+1}, 0xffff0000, v{A+1}""")
        r = [t[0], A, t[1], A+1]
        for x in r: k(f"v_mul_f32 v{x}, s{sKF}, v{x}")
        for x in r: k(f"v_fract_f32 v{x}, v{x}")
        for x in r: k(f"v_cos_f32 v{x}, v{x}")
        for x in r: k(f"v_fmaak_f32 v{x}, v{vq}, v{x}, {0x4b400000 + 512}")
        if diag is None: k(f"v_or3_b32 v{vNAN}, v{r[0]}, v{r[1]}, v{vNAN}\nv_or3_b32 v{vNAN}, v{r[2]}, v{r[3]}, v{vNAN}")
        k(f"v_perm_b32 v{A}, v{A}, v{t[0]}, s{sPERM}\nv_perm_b32 v{A+1}, v{A+1}, v{t[1]}, s{sPERM}")

    cplan = (cplan or "r10 r11 r13 r14 r16 r17 r19 r21 r24 r27").split()
    if late: cplan = [f"r2{g}" for g in range(10)]
    def cos_at(site, t, vq, masked=False):
        for g in range(10):
            if cplan[g] == site:
                if g == 9 and not masked: k(M9)
                if g != 9 and masked: k("s_mov_b64 exec, -1")
                cosines(g, t, vq)
                if g == 9 and not masked: k("s_mov_b64 exec, -1")
                if g != 9 and masked: k(M9)

    loop = "L_p1_loop"
    k(f"{loop}:")
    plan0 = plan
    def body():
        save = list(vm.q)
        late = list(range(NST, 14))
        def throttle(n):
            if n is None: return
            lab = k.lab("thr")
            k(f"s_cbranch_vccz {lab}\ns_waitcnt vmcnt({n})\n{lab}:")
            if thro is not None: k(f"s_waitcnt vmcnt({thro})")
        if dfr: k(f"s_mov_b64 s[{sOLD}:{sOLD+1}], s[{sREC}:{sREC+1}]\ns_mov_b32 s{sOLD+2}, s{sREC+2}")
        def sq(q):
            store_quad(q, q in DQ)
            if q != 13 and q not in DQ: vm.issue("st")
            if thrs: throttle(thr)
        if thr is not None: k("s_getreg_b32 s51, hwreg(HW_REG_XCC_ID, 0, 1)\ns_cmp_eq_u32 s51, 0\ns_cselect_b64 vcc, -1, 0")
        def ingest(g, live=True):
            if live: vm.wait(f"g{g}")
            else: vm.wait("none")
            if g == 9: k(M9)
            transform(g)
            if g == 9: k("s_mov_b64 exec, -1")
        sq(13); sq(6)
        for g in range(NPF, 10):
            sq(g + 3)
            if str(g) in thrx: throttle(0)
            sq(g - NPF)
            if str(g) in thrx + thrh: throttle(0)
            load_idx(g, 0)
            if thrs: throttle(thr)
            if str(g) in thrx: throttle(0)
            load_idx(g, 1)
            throttle(thr)
            for x in tsch[g - NPF]: ingest(x, not k.first)
        if k.first: vm.q = save
        else: save = list(vm.q)
        k("s_branch L_p1_join\nL_p1_first:")
        for g in range(pre, 10): load_idx(g, 0); load_idx(g, 1)
        k(f"""s_cmp_lg_u32 s{sWAVE}, 15
        s_cbranch_scc1 L_p1_nofetch
        buffer_load_dword v12, off, s[{sDBG}:{sDBG+3}], 0 sc1
        L_p1_nofetch:""")
        for p in tsch:
            for x in p: ingest(x, k.first)
        if not k.first: vm.q = save
        k("L_p1_join:")
        st_(0)
        plan = list(plan0.split() if plan0 else "pre b1 b2 po1 po2 po3 po5 po6 po7 po8 r10 r13 r16 r19 rb1 r22 r25 r28".split())
        pend = [("a", g) for g in range(10)] + [(g, w) for g in range(NPF) for w in range(2)]
        def pf(site):
            while plan and plan[0] == site:
                plan.pop(0)
                a, b = pend.pop(0)
                if a == "a": load_ang(b)
                else:
                    assert a < NPF or site == "rb2" or (site[:2] == "r2" and int(site[2]) >= 2*(a - 5) + 1), site
                    if dfr:
                        l0, l1 = k.lab("ld"), k.lab("st"); h = LAND[a][b]
                        k(f"""s_cmp_lg_u32 s{sIT}, 3
                        s_cbranch_scc1 {l0}
                        {goff(DQ[2*a + b])}
                        buffer_store_dwordx4 v[{h}:{h+3}], v{vTR}, s[{sOLD}:{sOLD+3}], s{sT1} offen {stflag}
                        s_branch {l1}
                        {l0}:""")
                    load_idx(a, b, nxt=True)
                    if dfr: k(f"{l1}:")
        for g in trest:
            ingest(g)
            pf(f"in{g}")
        assert k.L[-1].strip() == "s_mov_b64 exec, -1" and not vm.q
        k(f"""s_xor_b32 s{sT0}, s{sWAVE}, 15
        s_or_b32 s{sT0}, s{sT0}, s{sIT}
        s_cbranch_scc1 L_p1_nodec
        s_mov_b64 exec, 1
        v_cmp_eq_u32 vcc, 0, v12
        v_mov_b32 v6, {DEC}
        s_nop 0
        s_cbranch_vccz L_p1_dec
        v_mov_b32 v12, 48
        v_mov_b32 v13, 0
        buffer_atomic_cmpswap v[12:13], off, s[{sDBG}:{sDBG+3}], 0 sc0
        s_waitcnt vmcnt(0)
        v_cmp_eq_u32 vcc, 0, v12
        s_nop 1
        v_cndmask_b32 v12, v12, 48, vcc
        L_p1_dec:
        ds_write_b32 v6, v12
        s_mov_b64 exec, -1
        L_p1_nodec:""")
        pf("pre")
        st_(1)
        k(f"""s_lshl2_add_u32 s{sT0}, s{sWAVE}, {PRE}
        v_mov_b32 v13, s{sT0}
        v_mov_b32 v7, 2.0
        v_and_b32 v6, 63, v0
        s_mov_b32 s{sT1}, {PRE}
        s_lshl_b32 s{sT0}, 0x1fffe, s{sWAVE}
        s_and_b32 s{sT0}, s{sT0}, 0x1ffff
        s_mov_b32 exec_hi, 0
        s_mov_b32 exec_lo, s{sT0}
        v_lshl_add_u32 v7, v6, 2, s{sT1}
        s_mov_b64 exec, -1
        v_mov_b32 v14, {PRE + 64}
        s_mov_b32 s{sPAD}, 2
        s_waitcnt lgkmcnt(0)
        s_barrier""")
        st_(2)
        k(f"ds_read_b128 v[8:11], v{vA16} offset:{H}")
        pf("b1")
        lab = k.lab("nomask")
        k(f"""L_p1_redo:
        s_waitcnt lgkmcnt(0)
        v_min3_u32 v12, v8, v9, v10
        v_min_u32 v12, v12, v11
        v_cmp_gt_u32 vcc, s{sPAD}, v12
        s_nop 0
        s_mov_b64 s[{sNUL}:{sNUL+1}], vcc
        s_cbranch_vccz {lab}""")
        for i in range(4):
            k(f"""v_cmp_eq_u32 s[{sE0+2*i}:{sE0+2*i+1}], 0, v{8+i}
            v_cmp_ge_u32 s[{sE1+2*i}:{sE1+2*i+1}], 1, v{8+i}
            v_max_u32 v{8+i}, 2, v{8+i}""")
        k(f"""{lab}:
        v_add_u32 v9, v8, v9
        v_add_u32 v10, v9, v10
        v_add_u32 v11, v10, v11
        s_nop 1
        v_add_u32_dpp v6, v11, v11 row_shr:1 row_mask:0xf bank_mask:0xf bound_ctrl:0""")
        for d in ("row_shr:2 row_mask:0xf bank_mask:0xf bound_ctrl:0", "row_shr:4 row_mask:0xf bank_mask:0xf bound_ctrl:0",
                  "row_shr:8 row_mask:0xf bank_mask:0xf bound_ctrl:0", "row_bcast:15 row_mask:0xa bank_mask:0xf", "row_bcast:31 row_mask:0xc bank_mask:0xf"):
            k(f"s_nop 1\nv_add_u32_dpp v6, v6, v6 {d}")
        k(f"""s_nop 0
        v_readlane_b32 s{sT0}, v6, 63
        v_sub_u32 v6, v6, v11
        v_add_u32 v8, v8, v6
        v_mov_b32 v12, s{sT0}
        ds_add_u32 v7, v12
        v_add_u32 v9, v9, v6
        v_add_u32 v10, v10, v6
        s_waitcnt lgkmcnt(0)
        s_barrier
        ds_read_b32 v12, v14
        ds_read_b32 v11, v13""")
        pf("b2")
        k(f"""s_waitcnt lgkmcnt(1)
        v_readfirstlane_b32 s{sTOTAL}, v12
        s_waitcnt lgkmcnt(0)
        s_cmp_ge_u32 s{sTOTAL}, {CMAX-1}
        s_cbranch_scc0 L_p1_fits
        s_barrier
        v_mov_b32 v12, 0
        ds_write_b32 v7, v12
        s_mov_b32 s{sPAD}, 0
        s_mov_b32 s{sBAD}, 1
        s_waitcnt lgkmcnt(0)
        s_barrier
        ds_read_b128 v[8:11], v{vA16} offset:{H}
        s_branch L_p1_redo
        L_p1_fits:
        s_mov_b64 exec, 1
        v_mov_b32 v7, {H2 + 8192}
        ds_write_b16 v7, v12
        s_mov_b64 exec, -1
        v_add_u32 v12, v11, v6
        v_add_u32 v13, v11, v8
        v_add_u32 v14, v11, v9
        v_add_u32 v15, v11, v10
        ds_write_b128 v{vA16}, v[12:15] offset:{H}
        s_add_u32 s{sT0}, s{sTOTAL}, 2
        s_mul_hi_u32 s{sT0}, s{sT0}, {(2**32 + 2)//3}
        v_perm_b32 v15, v15, v14, s{sPERM}
        v_perm_b32 v14, v13, v12, s{sPERM}
        ds_write_b64 v{vA8}, v[14:15] offset:{H2}
        s_lshl_b32 s{sT0}, s{sT0}, 4
        s_add_u32 s{sT0}, s{sT0}, {(13 << 24) - 13*16384 + 127}
        s_andn2_b32 s{sT0}, s{sT0}, 127
        s_min_u32 s{sREC+2}, s{sT0}, {(13 << 24) + 1024}
        s_waitcnt lgkmcnt(0)
        s_barrier""")
        st_(3)
        k(f"""s_cmp_lg_u32 s{sIT}, 0
        s_cbranch_scc1 L_p1_slot
        v_mov_b32 v6, {DEC}
        ds_read_b32 v6, v6
        s_waitcnt lgkmcnt(0)
        v_readfirstlane_b32 s90, v6
        s_lshr_b32 s92, s2, 3
        s_add_u32 s91, s2, s90
        s_and_b32 s{sT0}, s91, 3
        s_lshl_b32 s{sT0}, s{sT0}, 5
        s_or_b32 s{sT0}, s{sT0}, s92
        s_andn2_b32 s{sT1}, s{sT0}, 1
        s_add_u32 s{sSL0}, s{sT0}, s{sT1}
        s_lshr_b32 s91, s91, 2
        s_lshr_b32 s{sT0}, s90, 3
        s_xor_b32 s91, s91, s{sT0}
        s_lshr_b32 s{sT0}, s90, 4
        s_and_b32 s{sT0}, s{sT0}, s92
        s_xor_b32 s91, s91, s{sT0}
        s_and_b32 s91, s91, 1
        s_lshl1_add_u32 s{sSL0}, s91, s{sSL0}
        s_lshr_b32 s{sSL0+1}, s90, 3
        L_p1_slot:
        s_lshl_b32 s{sT0}, s{sIT}, 8
        s_lshl_b32 s{sT1}, s{sIT}, 1
        s_and_b32 s{sT1}, s{sT1}, s{sSL0+1}
        s_xor_b32 s{sT1}, s{sT1}, s{sIT}
        s_and_b32 s{sT1}, s{sT1}, 2
        s_or_b32 s{sT0}, s{sT0}, s{sT1}
        s_xor_b32 s{sCI}, s{sSL0}, s{sT0}
        s_and_b32 s{sCI}, s{sCI}, 1023
        s_lshl_b32 s{sT0}, s{sCI}, 12
        s_add_u32 s{sREC}, s{sWS}, s{sT0}
        s_addc_u32 s{sREC+1}, s{sWS+1}, 0""")
        pf("b3")
        def lin_table():
            lab = k.lab("notab")
            k(f"""s_cmp_gt_u32 s{sWAVE}, 8
            s_cbranch_scc1 {lab}
            v_lshrrev_b32 v6, 1, v0
            v_mul_u32_u24 v7, 1009, v6
            v_lshrrev_b32 v7, 16, v7
            v_mul_u32_u24 v7, {1024 - 65}, v7
            v_and_b32 v8, 1, v0
            v_lshl_add_u32 v7, v8, 9, v7
            v_add_lshl_u32 v13, v7, v6, 1""")
            for x in range(8): k(f"ds_read_u16 v{6+x}, v13 offset:{H2 + 128*x}")
            k(f"s_mul_i32 s{sT0}, s{sCI}, {TAB_ROW}\ns_add_u32 s{sTAB+2}, s{sT0}, {TAB_ROW}")
            for x in range(4): k(f"s_waitcnt lgkmcnt({6-2*x})\nv_perm_b32 v{6+x}, v{7+2*x}, v{6+2*x}, s{sPERM}")
            k(f"buffer_store_dwordx4 v[6:9], v{vA16}, s[{sTAB}:{sTAB+3}], s{sT0} offen {tabflag}\ns_nop 1\n{lab}:")
        if ltabat == "b3": lin_table()
        def pos_issue(g):
            t = TMP[(g % 2)*4:]
            if g == 9: k(M9)
            for i in range(2): k(f"v_and_b32 v{t[2*i]}, 0xffff, v{Pr(4*g+2*i)}\nv_lshrrev_b32 v{t[2*i+1]}, 16, v{Pr(4*g+2*i)}")
            for i in range(4): k(f"ds_add_rtn_u32 v{t[i]}, v{t[i]}, v{vONE} offset:{H}")
            if g == 9: k("s_mov_b64 exec, -1")
        k("s_nop 0")
        pos_issue(0)
        for g in range(10):
            if g < 9:
                pos_issue(g+1)
                k("s_waitcnt lgkmcnt(4)")
            else:
                k("s_waitcnt lgkmcnt(0)")
            t = TMP[(g % 2)*4:]
            for i in range(2): k(f"v_perm_b32 v{Pr(4*g+2*i)}, v{t[2*i+1]}, v{t[2*i]}, s{sPERM}")
            if f"po{g}" in cplan:
                k(f"v_mov_b32 v{t[2]}, {f2u(float(CQ))}"); cos_at(f"po{g}", t[0:2], t[2])
            pf(f"po{g}")
        if ltabat == "pe": lin_table()
        st_(4)
        k("s_barrier")
        st_(5)
        lab = k.lab("nonull")
        k(f"""s_lshl_b32 s{sT0}, s{sTOTAL}, 2
        v_mov_b32 v6, s{sT0}
        v_mov_b32 v7, 0
        v_mov_b32 v12, {f2u(float(CQ))}
        s_mov_b64 exec, 1
        ds_write2_b32 v6, v7, v7 offset0:0 offset1:1
        s_cmp_eq_u64 s[{sNUL}:{sNUL+1}], 0
        s_cbranch_scc1 {lab}""")
        for i in range(4):
            k(f"""s_mov_b64 exec, s[{sE1+2*i}:{sE1+2*i+1}]
            v_lshlrev_b32_sdwa v6, 2, v{14+i//2} {SD} src1_sel:WORD_{i & 1}
            ds_write_b32 v6, v7 offset:4
            s_mov_b64 exec, s[{sE0+2*i}:{sE0+2*i+1}]
            ds_write_b32 v6, v7""")
        k(f"{lab}:\ns_mov_b64 exec, -1")
        for g in range(10):
            if g == 9: k(M9)
            for i in range(4): k(f"v_lshlrev_b32_sdwa v{6+i}, 2, v{Pr(4*g+i)} {SD} src1_sel:WORD_{i & 1}")
            for i in range(4): k(f"ds_write_b32 v{6+i}, v{Wr(4*g+i)}")
            cos_at(f"r1{g}", (10, 11), 12, g == 9)
            if g == 9: k("s_mov_b64 exec, -1")
            pf(f"r1{g}")
        k(f"""s_mul_i32 s{sT0}, s{sWAVE}, {(832-64)*12}
        v_mad_u32_u24 v6, v0, 12, s{sT0}
        s_waitcnt lgkmcnt(0)
        s_barrier""")
        st_(6)
        lab = k.lab("nox")
        k(f"s_cmp_lg_u32 s{sWAVE}, 15\ns_cbranch_scc1 {lab}")
        for x in range(3): k(f"ds_read_b32 v{XQ+x}, v6 offset:{13*768 + 4*x}")
        k(f"{lab}:")
        for q in range(13):
            for x in range(3): k(f"ds_read_b32 v{Q[q]+x}, v6 offset:{PN(q)*768 + 4*x}")
        pf("rb1")
        k(f"""v_mov_b32 v8, 0
        v_mov_b32 v9, 0
        v_mov_b32 v10, 0
        v_mov_b32 v11, 0
        v_mov_b32 v15, 16384
        v_min_u32 v7, 16, v0
        v_lshlrev_b32 v7, 2, v7
        v_add_u32 v7, {PRE}, v7
        s_waitcnt lgkmcnt(0)
        s_barrier
        ds_write_b128 v{vA16}, v[8:11] offset:{H}
        ds_write_b32 v7, v8
        s_nop 1""")
        st_(7)
        for g in range(10):
            if f"r2{g}" in cplan:
                if not late: k(f"v_mov_b32 v6, {f2u(float(CQ))}")
                cos_at(f"r2{g}", (10, 11), 6)
            if g == 9: k(M9)
            for i in range(4): k(f"v_mad_u32_u16 v{6+i}, v{Pr(4*g+i)}, s{sD3}, v15 op_sel:[{i & 1},0,0,0]")
            for i in range(4): k(f"v_add_u32_sdwa v{6+i}, v{6+i}, v{Pr(4*g+i)} dst_sel:DWORD dst_unused:UNUSED_PAD src0_sel:WORD_1 src1_sel:WORD_{i & 1}")
            for i in range(4): k(f"v_add_u32 v{6+i}, v{6+i}, v{6+i}")
            for i in range(4): k(f"ds_write_b16{'_d16_hi' if i & 1 else ''} v{6+i}, v{Cr(4*g+i)} offset:{CA}")
            if g == 9: k("s_mov_b64 exec, -1")
            pf(f"r2{g}")
        k(f"""s_mul_i32 s{sT0}, s{sWAVE}, {(832-64)*8}
        v_add_u32 v6, s{sT0}, v{vA8}
        v_mov_b32 v10, {f2u(float(CQ))}
        s_waitcnt lgkmcnt(0)
        s_barrier""")
        st_(8)
        for n in range(NST): cread(n)
        pf("rb2")
        assert not plan and not pend, (plan, pend)
    i0 = len(k.L)
    emit_loop(k, [vm], body)
    if abl:
        L = k.L[i0:]
        if "r2h" in abl: L = [l for l in L if "ds_write_b16_d16_hi" not in l]
        if "rb1" in abl:
            n = [i for i, l in enumerate(L) if "ds_read_b32" in l and ", v6 offset" in l]
            L = [l for i, l in enumerate(L) if i not in n[1::2]]
        if "cos" in abl: L = [l for l in L if not any(x in l for x in ("v_fract", "v_cos", "v_mul_f32"))]
        if "fract" in abl: L = [l for l in L if "v_fract" not in l]
        k.L[i0:] = L
    k(f"""s_add_u32 s{sOI}, s{sOI}, {RS*C*4}
    s_add_u32 s{sOA}, s{sOA}, {RS*C*2}
    s_add_u32 s{sIT}, s{sIT}, 1
    s_cmp_lt_u32 s{sIT}, 4
    s_cbranch_scc1 {loop}""")
    if diag is not None: stamp(k, 56, 80, v=5)
    if thre is not None: k("s_getreg_b32 s51, hwreg(HW_REG_XCC_ID, 0, 1)\ns_cmp_eq_u32 s51, 0\ns_cselect_b64 vcc, -1, 0")
    for q in QORD:
        store_quad(q)
        if thre is not None:
            lab = k.lab("thr"); k(f"s_cbranch_vccz {lab}\ns_waitcnt vmcnt({thre})\n{lab}:")
    if diag is not None:
        stamp(k, 57, 80, v=5); k("s_waitcnt vmcnt(0)"); stamp(k, 58, 80, v=5); stamp(k, 61, 80, v=5, real=True)
        stamp_dump(k, f"s_lshl_b32 s82, s2, 4\ns_or_b32 s82, s82, s{sWAVE}\ns_cmp_eq_u32 s82, {diag}", 84, v=5, vt=6)
        k("v_mov_b32 v5, 0")
    if late: k(f"v_and_b32 v6, 0x7c007c00, v{vNAN}\nv_add_u32 v6, 0x04000400, v6\nv_and_b32 v6, 0x80008000, v6")
    else: k(f"v_and_b32 v6, 0x34800000, v{vNAN}")
    k(f"""v_cmp_ne_u32 vcc, 0, v6
    s_lshl_b32 s{sT0}, s2, 3
    s_add_u32 s{sT0}, s{sT0}, {TAB_BYTES + 2}
    s_mov_b32 s{sTAB+2}, {OFF_MC - OFF_TAB}
    s_cmp_lg_u64 vcc, 0
    s_cselect_b32 s{sBAD}, 1, s{sBAD}
    s_cmp_eq_u32 s{sBAD}, 0
    s_cbranch_scc1 {end}
    s_mov_b64 exec, 1
    buffer_store_short v{vONE}, off, s[{sTAB}:{sTAB+3}], s{sT0} sc1
    {end}:
    s_endpgm""")
    return k


BIAS = 0x4000
NW = 4
CAP = 64 * (NW + 1)


def pass2(force_slow=False, opts=None):
    o = dict(na=2, stamp=0)
    o.update(opts or {})
    k = K("p2_kernel", 256, 1024, LDS_ALL, 128, sgpr=102)
    vm = Cnt(k, "vmcnt", 63); lg = Cnt(k, "lgkmcnt", 15)
    sREC, sM = 4, 8
    sOB, sQ, sWAVE, sT0, sT1, sMAG, sPERM, sTILE, sSCR, sFAIL = 3, 12, 13, 14, 15, 16, 17, 18, 19, 2
    sMG2 = 20
    MF = o.get("mf", 1); vID = 58
    sMOFF, sK10, sIT, sTB, sSO, sWOFF = 22, 23, 24, 25, 26, 27
    sTOT, sTOTC = 28, 51
    sMM = 30
    sK1, sK2 = 40, 41
    sRW = 44
    sUNIT, sJ, sACC, sTOTN = 48, 49, 50, 29
    sWR, sWS_, sWD, sWU = 52, 68, 84, 28
    GH = [72, 112]
    CEN = [53, 54, 56, 57]
    DD = [60, 61]
    vST = 52
    sDI = 100
    SQ = 3.798282560733770
    TILE, SP = 80000, 160000
    SLB = o.get("slb", 156*128)
    N2L = (R*8 - 3*SLB)//16 - 1024
    MOFF = 136
    vBM = 127
    R2 = o.get("r2", 1)
    RAW = [8 + 4*j for j in range(NW + 1)]
    OS, OE = 28, 36
    RT = 44
    vK3 = 50
    GD = 64
    MP = 88
    TM = list(range(108, 122))
    vA16, vL16, vWA, vCHK, vZ, vSC, vMK = 1, 2, 3, 4, 5, 6, 7
    vWA2, vS2 = 124, 126
    end = "L_p2_end"
    k(f"s_cmp_ge_u32 s2, 256\ns_cbranch_scc1 {end}")
    if o["stamp"]:
        k("v_mov_b32 v125, 0"); stamp(k, 0, 42); stamp(k, 60, 42, real=True)
    k.ldptr(sREC, "ws")
    k.ldptr(sDI, "dist")
    mcopy = o.get("mcopy", 0)
    if not mcopy: k.ldptr(sM, "m")
    if o.get("cpf"):
        k("v_cmp_gt_u32 vcc, 128, v0\ns_nop 1\ns_cbranch_vccz L_p2_nopf")
        code_prefetch(k, 52, 122, 123, "L_p2_nopf", "L_p2_slow-L_p2_nopf")
        k("L_p2_nopf:")
    k("""s_load_dwordx2 s[30:31], s[0:1], 40
    s_load_dwordx4 s[32:35], s[0:1], 56
    s_load_dwordx4 s[36:39], s[0:1], 72""")
    k(f"""s_and_b32 s{sT0}, s2, 7
    s_lshr_b32 s{sJ}, s2, 3
    s_and_b32 s{sOB}, s{sT0}, 1
    s_lshl_b32 s{sOB}, s{sOB}, 5
    s_add_u32 s{sOB}, s{sOB}, s{sJ}
    s_lshr_b32 s{sQ}, s{sT0}, 1
    v_lshrrev_b32 v{TM[0]}, 6, v0
    v_lshlrev_b32 v{vA16}, 4, v0
    v_and_b32 v{TM[1]}, 63, v0
    v_readfirstlane_b32 s{sWAVE}, v{TM[0]}
    v_lshlrev_b32 v{TM[3]}, 4, v{TM[1]}
    v_lshrrev_b32 v{TM[2]}, 2, v{TM[1]}
    v_mul_u32_u24 v{TM[2]}, {TAB_ROW - 64}, v{TM[2]}
    v_add_u32 v{TM[2]}, v{TM[2]}, v{TM[3]}
    s_mul_i32 s{sT0}, s{sQ}, 65
    s_add_u32 s{sT0}, s{sT0}, s{sOB}
    s_lshl_b32 s{sT0}, s{sT0}, 5
    s_mul_i32 s{sT1}, s{sWAVE}, {64*TAB_ROW}
    s_add_u32 s{sT0}, s{sT0}, s{sT1}
    s_add_u32 s{sTB}, s{sT0}, {OFF_TAB}
    s_mul_i32 s{sMOFF}, s{sQ}, {16*R*8}
    s_mov_b32 s{sFAIL}, {1 if force_slow else 0}
    s_waitcnt lgkmcnt(0)""")
    k.srd_finish(sREC, WS_BYTES)
    if mcopy: k(f"s_add_u32 s{sM}, s{sREC}, {OFF_MC}\ns_addc_u32 s{sM+1}, s{sREC+1}, 0")
    k(f"s_add_u32 s{sM+2}, s{sMOFF}, {16*R*8}\ns_mov_b32 s{sM+3}, 0x00020000")
    for i in range(4):
        k(f"s_add_u32 s{sT1}, s{sTB}, {16*i*TAB_ROW}\nbuffer_load_dwordx4 v[{OS+4*i}:{OS+4*i+3}], v{TM[2]}, s[{sREC}:{sREC+3}], s{sT1} offen"); vm.issue(f"tab{i}")
    k(f"""s_load_dwordx4 s[40:43], s[30:31], 0
    s_load_dwordx16 s[{sWR}:{sWR+15}], s[32:33], 0
    s_load_dwordx16 s[{sWS_}:{sWS_+15}], s[34:35], 0
    s_load_dwordx8 s[{sWD}:{sWD+7}], s[36:37], 0
    s_load_dwordx8 s[92:99], s[38:39], 0""")
    def cnt_add(v, rtn):
        k(f"""s_lshl_b32 s{sT0}, s{sOB}, 8
        s_add_u32 s{sT0}, s{sT0}, {OFF_CNT}
        s_mov_b64 exec, 1
        buffer_atomic_add v{v}, off, s[{sREC}:{sREC+3}], s{sT0} {'sc0' if rtn else ''}
        s_mov_b64 exec, -1""")
    k(f"""v_mov_b32 v{vST}, 0x100
    s_cmp_lg_u32 s{sWAVE}, 0
    s_cbranch_scc1 L_p2_noann""")
    cnt_add(vST, False)
    k("L_p2_noann:")

    mplan = o.get("mplan", ["a3", "a9", "g0", "g1", "a0"])
    def mload(only=None, ahead=False):
        for u in range(5):
            if only is not None and u not in only: continue
            if u == 4 and only is not None and o.get("mt", 1):
                k(f"s_sub_u32 s{sT0}, s{sMOFF}, {0 if ahead else TILE}\nbuffer_load_dwordx4 v[{MP+16}:{MP+19}], v{vWA2}, s[{sM}:{sM+3}], s{sT0} offen"); vm.issue("m")
                continue
            k(f"s_add_u32 s{sT0}, s{sMOFF}, {u*16384 + (R*8 if ahead else 0)}\nbuffer_load_dwordx4 v[{MP+4*u}:{MP+4*u+3}], v{vA16}, s[{sM}:{sM+3}], s{sT0} offen {o.get('mflag', '')}"); vm.issue("m")
    def mwrite(us=range(5)):
        for u in us:
            k(f"ds_write_b128 v{vWA if u < 4 else vWA2}, v[{MP+4*u}:{MP+4*u+3}] offset:{(u & 3)*16384}"); lg.issue("w")
    def dist_loads(sl):
        k(f"""s_mul_i32 s{sT0}, s{sOB}, {R*2}
        s_mul_i32 s{sT1}, s{sl}, {SLB//4}
        s_add_u32 s{sT0}, s{sT0}, s{sT1}
        s_add_u32 s{sT1}, s{sT0}, 4096
        v_min_u32 v{DD[1]}, {N2L - 1}, v0
        v_lshl_add_u32 v{DD[0]}, v0, 2, s{sT0}
        v_lshl_add_u32 v{DD[1]}, v{DD[1]}, 2, s{sT1}
        global_load_dword v{DD[0]}, v{DD[0]}, s[{sDI}:{sDI+1}] {o.get("dflag", "nt")}
        global_load_dword v{DD[1]}, v{DD[1]}, s[{sDI}:{sDI+1}] {o.get("dflag", "nt")}""")
    def gates(i):
        T = [14 + 2*r for r in range(8)]
        CA_, Gf, dd, tmp = 36, GH[i], 30, 32
        rnd = o.get("rnd", 1)
        k(f"v_lshlrev_b32 v{dd}, 16, v{DD[i]}\nv_and_b32 v{dd+1}, 0xffff0000, v{DD[i]}")
        if i == 0:
            for x in range(4): k(f"v_lshlrev_b32 v{CA_+2*x}, 16, v{CEN[x]}\nv_and_b32 v{CA_+2*x+1}, 0xffff0000, v{CEN[x]}")
        def rounds():
            if rnd:
                for r in range(8): rnd2(k, T[r], T[r]+1, tmp)
        for r in range(8):
            c0 = CA_ + (r & ~1)
            k(f"v_pk_add_f32 v[{T[r]}:{T[r]+1}], v[{dd}:{dd+1}], v[{c0}:{c0+1}] op_sel:[0,{r & 1}] op_sel_hi:[1,{r & 1}] neg_lo:[0,1] neg_hi:[0,1]")
        rounds()
        for r in range(8): k(f"v_pk_mul_f32 v[{T[r]}:{T[r]+1}], v[{T[r]}:{T[r]+1}], v[{T[r]}:{T[r]+1}]")
        rounds()
        k(f"v_mov_b32 v{dd}, {f2u(10.0 if rnd else SQ*SQ)}\nv_mov_b32 v{dd+1}, 0x3fb8aa3b")
        for r in range(8): k(f"v_pk_mul_f32 v[{T[r]}:{T[r]+1}], v[{T[r]}:{T[r]+1}], v[{dd}:{dd+1}] op_sel:[0,0] op_sel_hi:[1,0]")
        if rnd:
            rounds()
            for r in range(8): k(f"v_pk_mul_f32 v[{T[r]}:{T[r]+1}], v[{T[r]}:{T[r]+1}], v[{dd}:{dd+1}] op_sel:[0,1] op_sel_hi:[1,1]")
        for r in range(8): k(f"v_exp_f32 v{T[r]}, -v{T[r]}\nv_exp_f32 v{T[r]+1}, -v{T[r]+1}")
        for p in range(4):
            for e in range(2): k(f"v_cvt_pk_bf16_f32 v{T[2*p]+e}, v{T[2*p]+e}, v{T[2*p+1]+e}")
        for p in range(4):
            for dst, base in ((Gf, sWS_), (Gf + 8, sWR)):
                for c in range(4):
                    for e in range(2):
                        k(f"v_dot2_f32_bf16 v{dst+2*c+e}, v{T[2*p]+e}, s{base+4*p+c}, {'0' if p == 0 else 'v%d' % (dst+2*c+e)}")
    def gates2():
        lab = k.lab("g1")
        gates(0)
        k(f"s_cmp_ge_u32 s{sWAVE}, 4\ns_cbranch_scc1 {lab}")
        gates(1)
        k(f"{lab}:")
    mload()
    k(f"s_mov_b32 s{sT1}, {OFF_INFO1}")
    for i in range(2):
        k(f"buffer_load_dwordx4 v[{GD+16+4*i}:{GD+19+4*i}], v{TM[3]}, s[{sREC}:{sREC+3}], s{sT1} offen offset:{1024*i}"); vm.issue("info")
    assert CAP % 64 == 0
    k(f"""v_mov_b32 v{vL16}, v{TM[1]}
    v_mov_b32 v{vK3}, 21845
    v_add_u32 v{vWA}, {TILE}, v{vA16}
    v_add_u32 v{vWA2}, {TILE + 65536}, v{vA16}
    v_add_u32 v{TM[5]}, 65536, v{vA16}
    v_mov_b32 v{TM[4]}, 0x7f000000
    v_cmp_gt_u32 vcc, 904, v0
    s_mul_i32 s{sSCR}, s{sWAVE}, 240
    s_add_u32 s{sSCR}, s{sSCR}, {SP}
    v_cndmask_b32 v{vWA2}, v{TM[4]}, v{vWA2}, vcc
    v_cndmask_b32 v{TM[5]}, v{TM[4]}, v{TM[5]}, vcc
    v_lshl_add_u32 v{vSC}, v{TM[1]}, 2, s{sSCR}
    v_lshl_add_u32 v{vS2}, v{TM[1]}, 1, s{sSCR}
    v_cmp_gt_u32 vcc, {2*NW + 2}, v{TM[1]}
    s_lshl_b32 s{sWOFF}, s{sWAVE}, 18
    s_mov_b32 s{sK10}, {(1 << 18) - 256}
    v_cndmask_b32 v{vSC}, v{TM[4]}, v{vSC}, vcc
    s_mov_b32 s{sRW}, s{sREC}
    s_add_u32 s{sRW+1}, s{sREC+1}, {16 << 16}
    s_mov_b32 s{sRW+2}, {NBLK << 18}
    s_mov_b32 s{sRW+3}, 0x00020000
    s_mov_b32 s{sTILE}, {TILE}
    s_and_b32 s{sACC}, s{sOB}, 1
    s_lshl_b32 s{sACC}, s{sACC}, 18
    {"s_sub_u32 s%d, s%d, s%d" % (sTILE, sTILE, sACC) if INTAG else ""}
    s_sub_u32 s{sACC}, {(-0x4000*8) & 0xffffffff}, s{sACC}
    v_lshlrev_b32 v{TM[8]}, 3, v0
    v_and_b32 v{TM[8]}, 16, v{TM[8]}
    v_and_b32 v{TM[9]}, 1, v0
    v_lshl_or_b32 v{TM[8]}, v{TM[9]}, 5, v{TM[8]}
    v_mov_b32 v{vID}, 0x3f80
    v_mov_b32 v{vID+1}, 0
    v_lshlrev_b64 v[{vID}:{vID+1}], v{TM[8]}, v[{vID}:{vID+1}]
    v_mov_b32 v{vCHK}, 0
    v_mov_b32 v{vZ}, 0
    v_mov_b32 v{TM[6]}, 0xff00
    v_bfe_u32 v{vBM}, v0, {1 if o.get("dm") else 0}, 1
    v_mul_u32_u24 v{vBM}, {40*R2}, v{vBM}
    v_add_u32 v{vBM}, s{sSCR}, v{vBM}
    ds_write2_b32 v{vSC}, v{vZ}, v{vZ} offset0:{MOFF//4} offset1:{MOFF//4 + 10}
    ds_write_b16 v{vS2}, v{TM[6]} offset:2""")
    for i in range(6): k(f"v_mov_b32 v{RT+i}, {BIAS*0x10001}")
    if o.get("rt2"):
        for i in (58, 59, 62, 63, 122, 123): k(f"v_mov_b32 v{i}, 0")
    k(f"""ds_write_b128 v{TM[5]}, v[{RT}:{RT+3}]
    v_lshrrev_b32 v{TM[7]}, 4, v{TM[1]}
    v_mul_u32_u24 v{TM[7]}, {16384 - 1024}, v{TM[7]}
    v_lshl_add_u32 v{TM[7]}, v{TM[1]}, 6, v{TM[7]}
    v_lshl_add_u32 v{TM[7]}, v{TM[0]}, 10, v{TM[7]}""")
    k("s_waitcnt lgkmcnt(0)")
    for i in range(4): k(f"v_mov_b32 v{CEN[i]}, s{40+i}")
    k(f"s_mov_b32 s{sK1}, {16384 + (CAP << 16)}\ns_mov_b32 s{sK2}, {16384 + 2*21845 + (CAP << 16)}")
    for base in (sWR, sWS_):
        for p in range(4):
            b = base + 4*p
            k(f"""s_pack_ll_b32_b16 s{sT0}, s{b}, s{b+2}
            s_pack_hh_b32_b16 s{sT1}, s{b}, s{b+2}
            s_pack_ll_b32_b16 s{b+2}, s{b+1}, s{b+3}
            s_pack_hh_b32_b16 s{b+3}, s{b+1}, s{b+3}
            s_mov_b32 s{b}, s{sT0}
            s_mov_b32 s{b+1}, s{sT1}""")
    for i in range(4):
        vm.wait(f"tab{i}")
        k(f"ds_write_b128 v{vA16}, v[{OS+4*i}:{OS+4*i+3}] offset:{i*16384}")
    for x in (0, 2, 1, 3): k(f"ds_read_b128 v[{OS+4*x}:{OS+4*x+3}], v{TM[7]} offset:{16*x}"); lg.issue(f"t{x}")
    for u in range(4): k(f"ds_write_b128 v{vA16}, v[{RT}:{RT+3}] offset:{u*16384}"); lg.issue("x")
    lg.wait("t2")

    GI = o.get("gi", 1); LS = o.get("ls", 1); EM = 1
    def setup(half, idx=False):
        a, b, c, d = TM[0:4]
        if idx: k(f"s_add_u32 s{sT0}, s{sIT}, 1\ns_min_u32 s{sT0}, s{sT0}, 7\ns_set_gpr_idx_on s{sT0}, gpr_idx(SRC0)")
        k(f"""v_mad_u32_u16 v{a}, v{OS}, v{vK3}, s{sK1} op_sel:[{half},0,0,0]
        v_mad_u32_u16 v{b}, v{OE}, v{vK3}, s{sK2} op_sel:[{half},0,0,0]
        {"s_set_gpr_idx_off" if idx else ""}
        v_sub_u32_sdwa v{c}, v{b}, v{a} dst_sel:DWORD dst_unused:UNUSED_PAD src0_sel:WORD_1 src1_sel:WORD_1
        s_nop 1
        v_add_u32_dpp v{c}, v{c}, v{c} row_shr:1 row_mask:0xf bank_mask:0xf bound_ctrl:0
        s_nop 1
        v_add_u32_dpp v{c}, v{c}, v{c} row_shr:2 row_mask:0xf bank_mask:0xf bound_ctrl:0
        s_nop 1
        v_add_u32_dpp v{c}, v{c}, v{c} row_shr:4 row_mask:0xf bank_mask:0xf bound_ctrl:0
        s_nop 1
        v_add_u32_dpp v{c}, v{c}, v{c} row_shr:8 row_mask:0xf bank_mask:0xf bound_ctrl:0
        s_nop 1
        v_add_u32_dpp v{c}, v{c}, v{c} row_bcast:15 row_mask:0xa bank_mask:0xf
        s_nop 1
        v_add_u32_dpp v{c}, v{c}, v{c} row_bcast:31 row_mask:0xc bank_mask:0xf
        v_sub_u32_sdwa v{b}, v{b}, v{c} dst_sel:DWORD dst_unused:UNUSED_PAD src0_sel:WORD_1 src1_sel:DWORD
        v_readlane_b32 s{sTOTN}, v{c}, 63
        v_add_u32 v{c}, -1, v{c}
        ds_write_b16 v{vS2}, v{b}
        v_lshlrev_b32_e64 v{d}, v{c}, 1
        v_lshrrev_b32 v{c}, 5, v{c}
        s_cmp_gt_u32 s{sTOTN}, {CAP}
        s_cselect_b32 s{sFAIL}, 1, s{sFAIL}""")
        if o.get("dm"):
            k(f"""s_cselect_b32 s{sT0}, 0, -1
            v_xor_b32_dpp v{a}, v{c}, v{c} quad_perm:[1,0,3,2] row_mask:0xf bank_mask:0xf
            v_cmp_eq_u32 vcc, 0, v{a}
            v_lshl_add_u32 v{c}, v{c}, 2, v{vBM}
            s_mov_b64 exec, vcc
            v_or_b32_dpp v{d}, v{d}, v{d} quad_perm:[1,0,3,2] row_mask:0xf bank_mask:0xf
            s_orn2_b32 vcc_lo, 0xaaaaaaaa, vcc_lo
            s_orn2_b32 vcc_hi, 0xaaaaaaaa, vcc_hi
            s_and_b32 exec_lo, vcc_lo, s{sT0}
            s_and_b32 exec_hi, vcc_hi, s{sT0}""")
        else:
            k(f"v_lshl_add_u32 v{c}, v{c}, 2, v{vBM}\ns_cselect_b64 exec, 0, -1")
        k(f"ds_or_b32 v{c}, v{d} offset:{MOFF}\ns_mov_b64 exec, -1")
        if R2: k(f"ds_wrxchg2_rtn_b32 v[{a}:{b}], v{vSC}, v{vZ}, v{vZ} offset0:{MOFF//4} offset1:{MOFF//4 + 10}")
        else: k(f"ds_wrxchg_rtn_b32 v{vMK}, v{vSC}, v{vZ} offset:{MOFF}")
        for t in ("x", "x", "mk"): lg.issue(t)
    def setup2():
        lg.wait("mk")
        if R2: k(f"v_or_b32 v{vMK}, v{TM[0]}, v{TM[1]}\ns_nop 0")
        for j in range(NW):
            k(f"v_readlane_b32 s{sMM+2*j}, v{vMK}, {2*j}\nv_readlane_b32 s{sMM+2*j+1}, v{vMK}, {2*j+1}")
        k(f"s_mov_b32 s{sTB}, s{sSCR}\ns_mov_b32 s{sSO}, s{sWOFF}\ns_mov_b32 s{sTOTC}, s{sTOT}\ns_mov_b32 s{sTOT}, s{sTOTN}")
    def agen1(j, ta, tb):
        k(f"""v_mbcnt_lo_u32_b32 v{ta}, s{sMM+2*j}, 0
        v_mbcnt_hi_u32_b32 v{ta}, s{sMM+2*j+1}, v{ta}
        s_bcnt1_i32_b64 s{sT0}, s[{sMM+2*j}:{sMM+2*j+1}]
        v_lshl_add_u32 v{tb}, v{ta}, 1, s{sTB}
        ds_read_u16 v{tb}, v{tb}
        s_mov_b32 s{sMM+2*j}, s{sSO}
        s_movk_i32 s{sMM+2*j+1}, {64*j - CAP}
        s_lshl1_add_u32 s{sTB}, s{sT0}, s{sTB}
        s_lshl_b32 s{sT0}, s{sT0}, 12
        s_add_u32 s{sSO}, s{sSO}, s{sT0}""")
        lg.issue(f"d{j}")
    def agen2(j, st, ta, tb, track=True):
        r = RAW[j]
        lg.wait(f"d{j}")
        k(f"""v_add3_u32 v{tb}, v{tb}, v{vL16}, s{sMM+2*j+1}
        v_lshl_add_u32 v{ta}, v{ta}, 8, v{tb}
        v_lshrrev_b32 v{tb}, 8, v{tb}
        v_mad_u32_u24 v{ta}, v{tb}, s{sK10}, v{ta}
        buffer_load_dwordx4 v[{r}:{r+3}], v{ta}, s[{sRW}:{sRW+3}], s{sMM+2*j} idxen {o.get("rflag", "")}""")
        if track: vm.issue(f"r{st}_{j}")
    TA, TB_ = 51, 55
    def agen_opt(st):
        assert vm.q[-1] == f"r{st}_{NW-1}" or f"r{st}_{NW-1}" not in vm.q
        lab = k.lab("noopt")
        k(f"s_cmp_le_u32 s{sTOT}, {64*NW}\ns_cbranch_scc1 {lab}")
        j = NW
        k(f"v_readlane_b32 s{sMM+2*j}, v{vMK}, {2*j}\nv_readlane_b32 s{sMM+2*j+1}, v{vMK}, {2*j+1}\ns_nop 1")
        save = list(lg.q)
        agen1(j, TA, TB_); agen2(j, st, TA, TB_, track=False)
        lg.q = save
        k(f"{lab}:")
    def gather(j, g):
        r = RAW[j]
        for x in range(3): k(f"v_mad_u32_u16 v{g+2*x}, v{r+x}, 8, s{sTILE}")
        for x in range(3): k(f"ds_read_b64 v[{g+2*x}:{g+2*x+1}], v{g+2*x}"); lg.issue(f"g{j}")
    RTS = [[RT, RT+2, RT+4], None] if o.get("rt2") else [[RT, RT+2, RT+4]]*2
    def check(p=None):
        for p in ((0, 1) if p is None and o.get("rt2") else (p or 0,)):
            lg.wait(f"rt{p}" if o.get("rt2") else "rt0")
            for x in RTS[p]: k(f"v_or3_b32 v{vCHK}, v{x}, v{x+1}, v{vCHK}")
    def accum(j, g, p=None):
        r = RAW[j]
        p = ((j & 1) if p is None else p) if o.get("rt2") else 0
        t = TM
        def cdec():
            if o.get("abl") == "noc": return
            k(f"""v_bfe_i32 v{t[0]}, v{r+3}, 2, 10
            v_bfe_i32 v{t[1]}, v{r+3}, 12, 10
            v_ashrrev_i32 v{t[2]}, 22, v{r+3}""")
            for x in range(3): k(f"v_cvt_f32_i32 v{t[x]}, v{t[x]}")
        def oaddr():
            for x in range(3): k(f"v_mad_u32_u16 v{r+x}, v{r+x}, 8, s{sACC} op_sel:[1,0,0,0]")
        if MF:
            cdec()
            lg.wait(f"g{j}")
            D = [t[4] + 4*x for x in range(3)]
            for x in range(3): k(f"v_mfma_f32_4x4x4_16b_bf16 v[{D[x]}:{D[x]+3}], v[{vID}:{vID+1}], v[{g+2*x}:{g+2*x+1}], 0")
            oaddr()
            A = [D[x] for x in range(3)]; B = [D[x] + 2 for x in range(3)]
        else:
            cdec(); oaddr()
            lg.wait(f"g{j}")
            A = [t[4 + 2*x] for x in range(3)]; B = [g + 2*x for x in range(3)]
            for x in range(3):
                for y in range(2): k(f"v_lshlrev_b32 v{A[x]+y}, 16, v{B[x]+y}\nv_and_b32 v{B[x]+y}, 0xffff0000, v{B[x]+y}")
        for x in range(3):
            c = t[x & ~1]; h = x & 1
            for a, mg in ((B[x], sMG2), (A[x], sMAG)):
                k(f"v_pk_fma_f32 v[{a}:{a+1}], v[{a}:{a+1}], v[{c}:{c+1}], s[{mg}:{mg+1}] op_sel:[0,{h},0] op_sel_hi:[1,{h},1]")
        for x in range(3): k(f"v_lshlrev_b64 v[{B[x]}:{B[x]+1}], 16, v[{B[x]}:{B[x]+1}]")
        for x in range(3): k(f"v_lshl_add_u64 v[{g+2*x}:{g+2*x+1}], v[{A[x]}:{A[x]+1}], 0, v[{B[x]}:{B[x]+1}]")
        if j == NW and o.get("oex"): k("s_mov_b64 vcc, exec\ns_mov_b64 exec, -1")
        check(p)
        if j == NW and o.get("oex"): k("s_mov_b64 exec, vcc")
        for x in range(3): k(f"ds_add_rtn_u64 v[{RTS[p][x]}:{RTS[p][x]+1}], v{r+x}, v[{g+2*x}:{g+2*x+1}]"); lg.issue(f"rt{p}")
    def optional(st):
        assert lg.q[-1][:2] == "rt" and f"r{st}_{NW-1}" not in vm.q
        p = int(lg.q[-1][2])
        lab = k.lab("noopt2")
        k(f"s_cmp_le_u32 s{sTOTC}, {64*NW}\ns_cbranch_scc1 {lab}")
        save = list(lg.q)
        gather(NW, GD); accum(NW, GD, p)
        lg.q = save
        k(f"{lab}:")

    def opt_part(tot, fn):
        lab = k.lab("noopt3")
        k(f"s_cmp_le_u32 s{tot}, {64*NW}\ns_cbranch_scc1 {lab}")
        save = list(lg.q)
        if o.get("oex"):
            k(f"s_sub_u32 s{sT1}, {CAP}, s{tot}\ns_and_b32 s{sT1}, s{sT1}, 60\ns_lshr_b64 exec, -1, s{sT1}")
        fn()
        if o.get("oex"): k("s_mov_b64 exec, -1")
        lg.q = save
        k(f"{lab}:")

    def rotate():
        for b in (OS, OE):
            for i in range(0, 6, 2): k(f"v_pk_mov_b32 v[{b+i}:{b+i+1}], v[{b+i}:{b+i+1}], v[{b+i+2}:{b+i+3}] op_sel:[1,0]")
            k(f"v_pk_mov_b32 v[{b+6}:{b+7}], v[{b+6}:{b+7}], v[{vCHK}:{vZ}] op_sel:[1,1]")
    early = o.get("early", 0)
    def first_loads():
        for j in range(NW): agen2(j, 0, RAW[j], RAW[j]+1)
        agen_opt(0)
    setup(0); setup2()
    for j in range(NW): agen1(j, RAW[j], RAW[j]+1)
    if not early: first_loads()
    vm.wait("m")
    mwrite()
    if early == 1:
        lg.wait("w"); k("s_barrier"); first_loads()
    vm.wait("info")
    I = GD + 16
    k(f"""v_max3_u32 v64, v{I}, v{I+2}, v{I+4}
    v_add_f32 v65, v{I+1}, v{I+3}
    v_add_f32 v66, v{I+5}, v{I+7}
    v_max_u32 v64, v64, v{I+6}
    v_add_f32 v65, v65, v66
    v_cmp_lt_u32 vcc, 0xffff, v64""")
    scan64(k, 64, "v_max_u32"); scan64(k, 65, "v_add_f32")
    k(f"""s_cmp_lg_u64 vcc, 0
    s_cselect_b32 s{sFAIL}, 1, s{sFAIL}
    v_lshlrev_b32 v64, 16, v64
    v_mul_f32 v66, {f2u(64.0/(4*E))}, v65
    v_mul_f32 v65, {f2u(33.0/(4*E))}, v65
    v_cmp_nle_f32 vcc, v64, v66
    v_max_u32 v64, v64, v65
    s_nop 0
    v_readlane_b32 s{sT0}, v64, 63
    s_bitcmp1_b32 vcc_hi, 31
    s_cselect_b32 s{sFAIL}, 1, s{sFAIL}
    s_lshr_b32 s{sT0}, s{sT0}, 23
    s_add_u32 s{sT0}, s{sT0}, 1
    s_cmp_lt_u32 s{sT0}, 40
    s_cselect_b32 s{sFAIL}, 1, s{sFAIL}
    s_cmp_gt_u32 s{sT0}, 230
    s_cselect_b32 s{sFAIL}, 1, s{sFAIL}
    s_sub_u32 s{sUNIT}, s{sT0}, 14
    s_lshl_b32 s{sUNIT}, s{sUNIT}, 23
    s_add_u32 s{sMAG}, s{sUNIT}, {((23 + 9) << 23) + 0x400000}
    s_lshr_b32 s{sT1}, s{sMAG}, 16
    s_sub_u32 s{sT1}, 0x10000, s{sT1}
    s_add_u32 s{sMG2}, s{sMAG}, s{sT1}
    s_sub_u32 s{sMAG+1}, s{sMG2}, 1
    s_mov_b32 s{sMG2+1}, s{sMAG+1}
    s_or_b32 s{sUNIT}, s{sUNIT}, {f2u(512.0/CQ) & 0x7fffff}
    s_sub_u32 s{sT0}, s{sT0}, 40
    s_cmp_gt_u32 s{sT0}, 190
    s_cselect_b32 s{sUNIT}, 0, s{sUNIT}""")
    if early != 1:
        lg.wait("w"); k("s_barrier")
    if early == 2: first_loads()
    mload([u for u in range(5) if mplan[u][0] == "a" and int(mplan[u][1]) >= o["na"]], ahead=True)
    setup(1)
    k(f"s_mov_b32 s{sIT}, 0")
    if o.get("prio"):
        for p in (1, 2, 3):
            lab = k.lab("pr")
            k(f"s_cmp_lt_u32 s{sWAVE}, {o['prio'][p-1]}\ns_cbranch_scc1 {lab}\ns_setprio {p}\n{lab}:")
    loop = "L_p2_loop"
    k(f"{loop}:")
    def body():
        for st in (0, 1):
            def st_(n):
                if o["stamp"] == 1 and n == 0:
                    k(f"s_lshl_b32 s{sT0}, s{sIT}, 1\ns_add_u32 s{sT0}, s{sT0}, {1+st}"); stamp(k, f"s{sT0}", 42)
            st_(0)
            k(f"s_add_u32 s{sMOFF}, s{sMOFF}, {R*8}")
            if st == 0:
                k(f"""s_lshl_b32 s{sT0}, s{sWAVE}, 4
                s_or_b32 s{sT0}, s{sT0}, s{sIT}
                s_cmp_lg_u32 s{sT0}, 5
                s_cbranch_scc1 L_p2_nost
                v_mov_b32 v{vST}, 0""")
                cnt_add(vST, True)
                k("L_p2_nost:")
            else:
                k(f"s_cmp_eq_u32 s{sIT}, 7\ns_cselect_b32 s{sRW+2}, 0, s{sRW+2}")
            def final_loads():
                dist_loads(sQ)
                k(f"""s_lshl_b32 s{sT0}, s{sT0}, 2
                s_lshl_b32 s{sT1}, s{sT1}, 2
                v_min_u32 v{OE}, {N2L - 1}, v0
                v_add_u32 v{OS}, s{sT0}, v{vA16}
                v_lshl_add_u32 v{OE}, v{OE}, 4, s{sT1}
                global_load_dwordx4 v[{OS}:{OS+3}], v{OS}, s[{sM}:{sM+1}]
                global_load_dwordx4 v[{OE}:{OE+3}], v{OE}, s[{sM}:{sM+1}]""")
            fl = o.get("fl", "m14")
            def final_at(site):
                if fl == site + str(14 + st) and fl != "m15":
                    k(f"s_cmp_lg_u32 s{sIT}, {o.get('fit', 7)}\ns_cbranch_scc1 L_p2_nofin"); final_loads(); k("L_p2_nofin:")
            final_at("s")
            na = o["na"]
            gplan = o.get("gplan", [2, 2])
            gq = list(range(NW))
            def gathers(n):
                for _ in range(n):
                    j = gq.pop(0)
                    vm.wait(f"r{st}_{j}")
                    gather(j, GD + 6*j)
                    mload([u for u in range(5) if mplan[u] == f"g{j}"])
            gathers(gplan[0])
            setup2()
            osp = o.get("osp", 3)
            optat = o.get("optat", 2)
            for j in range(NW):
                if j == na:
                    assert not gq
                    if not osp & 1: optional(st)
                    lg.wait(f"g{NW-1}")
                    if st == 1 and LS:
                        k(f"s_cmp_lg_u32 s{sIT}, 7\ns_cbranch_scc1 L_p2_stage")
                        if fl == "m15": final_loads()
                        k("s_waitcnt lgkmcnt(0)\ns_branch L_p2_staged\nL_p2_stage:")
                    k("s_barrier")
                    vm.wait("m")
                    mwrite()
                    if st == 1 and LS: k("L_p2_staged:")
                    final_at("m")
                if 0 < j < len(gplan):
                    gathers(gplan[j])
                    final_at("g")
                    if osp & 1 and j == len(gplan) - 1:
                        assert not gq and j < na
                        opt_part(sTOTC, lambda: gather(NW, GD))
                agen1(j, TA, TB_)
                if osp & 2 and j == NW - 1:
                    def f():
                        k(f"v_readlane_b32 s{sMM+2*NW}, v{vMK}, {2*NW}\nv_readlane_b32 s{sMM+2*NW+1}, v{vMK}, {2*NW+1}\ns_nop 1")
                        agen1(NW, 62, 63)
                    opt_part(sTOT, f)
                accum(j, GD + 6*j)
                agen2(j, 1 - st, TA, TB_)
                if osp & 1 and j == optat:
                    assert lg.q[-1] == "rt0" and j >= len(gplan) - 1
                    opt_part(sTOTC, lambda: accum(NW, GD))
                if j == NW - 1:
                    if osp & 2: opt_part(sTOT, lambda: agen2(NW, 1 - st, 62, 63, track=False))
                    else: agen_opt(1 - st)
                mload([u for u in range(5) if mplan[u] == f"a{j}"], ahead=(j >= na))
            if st == 0 and not GI: rotate()
            if st == 1 and LS: k(f"s_cmp_eq_u32 s{sIT}, 7\ns_cbranch_scc1 L_p2_exit")
            setup(st, GI)
            mload([u for u in range(5) if mplan[u] == "a9"], ahead=True)
            final_at("e")
            lg.wait("w")
            if st == 1:
                k(f"s_add_u32 s{sIT}, s{sIT}, 1\ns_cmp_lt_u32 s{sIT}, 8")
            k("s_barrier")
    i0 = len(k.L)
    emit_loop(k, [vm, lg], body)
    abl = o.get("abl", "").split("+")
    if abl != [""]:
        import re
        L = k.L[i0:]
        dummy = f"    ds_read_b32 v56, v{vZ}"
        if "nortn" in abl: L = [re.sub(r"ds_add_rtn_u64 v\[\d+:\d+\], ", "ds_add_u64 ", l) for l in L if "v_or3" not in l]
        if "now" in abl: L = [dummy if "ds_write_b128" in l else l for l in L]
        if "noat" in abl: L = [dummy if "ds_add_rtn" in l else l for l in L]
        if "ling" in abl: L = [re.sub(r"(ds_read_b64 v\[\d+:\d+\]), v\d+", r"\1, v57", l) for l in L]
        if "nom" in abl: L = [l.replace(f"s[{sM}:{sM+3}], s{sT0} offen", f"s[{sM}:{sM+3}], s{sT0} offen").replace(f"v{vA16}, s[{sM}", f"v125, s[{sM}") if "v[88:91]" in l or "v[96:99]" in l or "v[100:103]" in l else l for l in L]
        if "nopack" in abl: L = [l for l in L if "v_lshlrev_b64" not in l]
        if "nomf" in abl: L = [l for l in L if "v_mfma" not in l]
        if "noopt" in abl: L = [l.replace("s_cbranch_scc1", "s_branch") if "noopt" in l and "cbranch" in l else l for l in L]
        k.L[i0:] = L
        k.L[i0-1:i0-1] = [f"    v_lshrrev_b32 v57, 1, v{vA16}", f"    v_add_u32 v57, {TILE}, v57", "    v_mov_b32 v125, 2.0"]
    k(f"s_cbranch_scc1 {loop}")
    if LS: k("L_p2_exit:\ns_waitcnt lgkmcnt(0)"); lg.q = []
    if o["stamp"]: stamp(k, 40, 42)
    sOU, sU = 16, 44
    sSL, sTODO, sWORD, sDEL, sSC2 = 49, 51, 20, 21, 27
    vP = [vA16, 2]
    MM = [64, 68]
    PP = [8, 88]
    check()
    k(f"""s_mov_b32 s{sSC2}, s{sSCR}
    s_waitcnt vmcnt(0)""")
    if EM:
        for i, src in enumerate((OS, OE)):
            k(f"v_mov_b64 v[{MM[i]}:{MM[i]+1}], v[{src}:{src+1}]\nv_mov_b64 v[{MM[i]+2}:{MM[i]+3}], v[{src+2}:{src+3}]")
    k(f"""v_mov_b32 v8, {SP + 232}
    s_cmp_lg_u32 s{sWAVE}, 0
    s_cselect_b64 exec, 0, 1
    ds_write_b32 v8, v{vST}
    s_mov_b64 exec, -1
    v_subrev_u32 v6, {TILE}, v{vWA2}
    s_mul_i32 s{sIT}, s{sQ}, {SLB}
    v_subrev_u32 v10, s{sIT}, v{vA16}
    v_mov_b32 v11, 0x7f000000
    s_waitcnt vmcnt(0) lgkmcnt(0)
    s_barrier""")
    if o["stamp"]: stamp(k, 41, 14)
    gw = o.get("gw", 12)
    gpos = o.get("gpos", 2)
    k(f"s_cmp_lt_u32 s{sWAVE}, {gw}\ns_cbranch_scc1 L_p2_ga")
    if gpos == 0: gates(0)
    k("L_p2_ga:\nds_read_b32 v9, v8")
    for u in range(4): k(f"ds_read_b128 v[{MP+4*u}:{MP+4*u+3}], v{vA16} offset:{u*16384}")
    k(f"""ds_read_b128 v[{MP+16}:{MP+19}], v6
    s_mul_i32 s{sT0}, s{sQ}, {E*8}
    s_mul_i32 s{sT1}, s{sOB}, {R*8}
    s_add_u32 s{sTB}, s{sT0}, s{sT1}
    s_add_u32 s{sTB}, s{sTB}, {OFF_P16}
    s_cmp_eq_u32 s{sQ}, 3
    s_cselect_b32 s{sT1}, {R*8 - 4*SLB}, 0
    s_add_u32 s{sT1}, s{sT1}, {SLB}
    s_waitcnt lgkmcnt(5)
    v_readfirstlane_b32 s{sDEL}, v9
    s_nop 0
    s_bfe_u32 s{sDEL}, s{sDEL}, {8 | (8 << 16)}
    s_cmp_lg_u32 s{sDEL}, {99 if o.get('deleg') else 4}
    s_cselect_b32 s{sDEL}, 1, 0
    s_cselect_b32 s{sIT}, 0, s{sT1}""")
    for u in range(5):
        k(f"""v_cmp_le_u32 vcc, s{sIT}, v10
        v_add_u32 v10, 16384, v10
        s_add_u32 s{sT0}, s{sTB}, {u*16384 if u < 4 else 0}
        v_cndmask_b32 v12, v11, v{vA16 if u < 4 else 6}, vcc
        s_waitcnt lgkmcnt({4-u})
        buffer_store_dwordx4 v[{MP+4*u}:{MP+4*u+3}], v12, s[{sREC}:{sREC+3}], s{sT0} offen sc1
        v_or3_b32 v{vCHK}, v{MP+4*u}, v{MP+4*u+1}, v{vCHK}
        v_or3_b32 v{vCHK}, v{MP+4*u+2}, v{MP+4*u+3}, v{vCHK}""")
    if o["stamp"]: stamp(k, 42, 14)
    k(f"s_load_dwordx2 s[{sOU}:{sOU+1}], s[0:1], {KA['out']}\ns_cmp_ge_u32 s{sWAVE}, {gw}\ns_cbranch_scc1 L_p2_gb")
    if gpos == 0: gates2()
    if gpos == 2: gates(0)
    k(f"""L_p2_gb:
    v_and_b32 v{vCHK}, 0x80008000, v{vCHK}
    v_cmp_ne_u32 vcc, 0, v{vCHK}
    v_mov_b32 v8, s{sSC2}
    v_and_b32 v10, 15, v0
    v_mul_u32_u24 v10, 240, v10
    v_add_u32 v10, {SP}, v10
    s_cmp_lg_u64 vcc, 0
    s_cselect_b32 s{sFAIL}, 1, s{sFAIL}
    v_mov_b32 v9, s{sFAIL}
    s_mov_b64 exec, 1
    ds_write_b32 v8, v9
    s_mov_b64 exec, -1
    s_mov_b32 s{sSL}, s{sQ}
    s_mov_b32 s{sTODO}, 0
    s_waitcnt vmcnt(0) lgkmcnt(0)""")
    if o["stamp"]: stamp(k, 43, 14)
    k("s_barrier\nds_read_b32 v9, v10")
    k.srd_finish(sOU, E*8)
    def slice_loads(rows=True):
        k(f"""s_cmp_eq_u32 s{sSL}, 3
        s_cselect_b32 s{sT1}, {(R*8 - 4*SLB)//16}, 0
        s_add_u32 s{sT1}, s{sT1}, {SLB//16 - 1024}
        v_add_u32 v{vP[1]}, 16384, v{vA16}
        v_cmp_gt_u32 vcc, s{sT1}, v0
        s_mul_i32 s{sT0}, s{sOB}, {R*8}
        s_mul_i32 s{sSO}, s{sSL}, {SLB}
        s_add_u32 s{sSO}, s{sSO}, s{sT0}
        v_cndmask_b32 v{vP[1]}, 0.5, v{vP[1]}, vcc
        s_mov_b32 s{sM+2}, {E*8}""")
        for i in range(2 if rows else 0): k(f"buffer_load_dwordx4 v[{MM[i]}:{MM[i]+3}], v{vP[i]}, s[{sM}:{sM+3}], s{sSO} offen")
    k(f"""s_waitcnt lgkmcnt(0)
    v_cmp_ne_u32 vcc, 0, v9
    s_nop 1
    s_cmp_lg_u64 vcc, 0
    s_cselect_b32 s{sFAIL}, {0 if o.get("abl") else 1}, 0
    {"" if o.get("abl") else "s_cbranch_scc1 L_p2_slow"}
    L_p2_signal:""")
    if o["stamp"]: stamp(k, 44, 14)
    k(f"""v_mov_b32 v8, {SP + 228}
    s_lshl_b32 s{sT1}, s{sFAIL}, 4
    s_or_b32 s{sT1}, s{sT1}, s{sDEL}
    s_add_u32 s{sT0}, s{sQ}, 16
    s_lshl_b32 s{sWORD}, s{sT1}, s{sT0}
    s_add_u32 s{sWORD}, s{sWORD}, 1
    v_mov_b32 v9, s{sWORD}
    s_cmp_lg_u32 s{sWAVE}, 15
    s_cbranch_scc1 L_p2_nosig0""")
    cnt_add(9, True)
    k("L_p2_nosig0:")
    slice_loads(not EM)
    for i in range(8): k(f"s_lshl_b32 s{sWU+2*i}, s{92+i}, 16\ns_and_b32 s{sWU+2*i+1}, s{92+i}, 0xffff0000")
    for i in range(7, -1, -1): k(f"s_and_b32 s{sWD+2*i+1}, s{sWD+i}, 0xffff0000\ns_lshl_b32 s{sWD+2*i}, s{sWD+i}, 16")
    k(f"""s_mov_b32 s{sU}, s{sUNIT}
    s_add_u32 s{sU+1}, s{sUNIT}, {0x80000000 + (16 << 23)}
    s_cmp_eq_u32 s{sUNIT}, 0
    s_cselect_b32 s{sU+1}, 0, s{sU+1}""")
    if gpos == 1: gates2()
    if gpos == 2:
        k(f"s_cmp_lt_u32 s{sWAVE}, {gw}\ns_cbranch_scc1 L_p2_gc")
        gates(0)
        k(f"L_p2_gc:\ns_cmp_ge_u32 s{sWAVE}, 4\ns_cbranch_scc1 L_p2_gd")
        gates(1)
        k("L_p2_gd:")
    k(f"""s_cmp_lg_u32 s{sWAVE}, 15
    s_cbranch_scc1 L_p2_nosig
    s_waitcnt vmcnt({0 if EM else 2})
    v_readfirstlane_b32 s{sT1}, v9
    s_lshl_b32 s{sTODO}, 1, s{sQ}
    s_add_u32 s{sWORD}, s{sWORD}, s{sT1}
    s_and_b32 s{sT1}, s{sWORD}, 0xff
    s_cmp_eq_u32 s{sT1}, 4
    s_cbranch_scc0 L_p2_notlast
    s_bfe_u32 s{sT1}, s{sWORD}, {16 | (4 << 16)}
    s_or_b32 s{sTODO}, s{sTODO}, s{sT1}
    s_branch L_p2_pub
    L_p2_notlast:
    s_cmp_lg_u32 s{sDEL}, 0
    s_cselect_b32 s{sTODO}, 0, s{sTODO}
    s_cbranch_scc1 L_p2_pub
    L_p2_poll:
    v_mov_b32 v9, 0""")
    cnt_add(9, True)
    k(f"""s_waitcnt vmcnt(0)
    v_readfirstlane_b32 s{sWORD}, v9
    s_nop 0
    s_and_b32 s{sT1}, s{sWORD}, 0xff
    s_cmp_lt_u32 s{sT1}, 4
    s_cbranch_scc1 L_p2_poll
    L_p2_pub:
    s_lshl_b32 s{sT1}, s{sTODO}, 24
    s_or_b32 s{sT1}, s{sT1}, s{sWORD}
    v_mov_b32 v9, s{sT1}
    s_mov_b64 exec, 1
    ds_write_b32 v8, v9
    s_mov_b64 exec, -1
    s_waitcnt lgkmcnt(0)
    L_p2_nosig:
    s_barrier
    ds_read_b32 v9, v8
    s_waitcnt lgkmcnt(0)
    v_readfirstlane_b32 s{sWORD}, v9
    s_nop 0
    s_lshr_b32 s{sTODO}, s{sWORD}, 24
    s_cbranch_scc0 {end}
    L_p2_fin:""")
    if o["stamp"]: stamp(k, 45, 14)
    k(f"s_mul_i32 s{sIT}, s{sSL}, {SLB}")
    qoff = lambda i, sz, base: f"""s_add_u32 s{sT0}, s{sQ}, {i}
        s_and_b32 s{sT0}, s{sT0}, 3
        s_mul_i32 s{sT1}, s{sT0}, {E*sz}
        s_add_u32 s{sT1}, s{sT1}, {base}"""
    for i in range(1, 4):
        k(qoff(i, 8, OFF_P16) + f"\ns_add_u32 s{sT1}, s{sT1}, s{sSO}")
        for h in range(2): k(f"buffer_load_dwordx4 v[{PP[h]+4*i}:{PP[h]+4*i+3}], v{vP[h]}, s[{sREC}:{sREC+3}], s{sT1} offen sc1")
    for h in range(2):
        k(f"v_add_u32 v{24+h}, s{sIT}, v{vP[h]}\nds_read_b128 v[{PP[h]}:{PP[h]+3}], v{24+h}")
    assert 4*BIAS == 1 << 16
    if o["stamp"]: stamp(k, 46, 14)
    def finish(h):
        P, S, D = PP[h], 24, PP[h]
        if h == 0:
            k("s_waitcnt vmcnt(0) lgkmcnt(0)")
            if o["stamp"]: stamp(k, 48, 14)
        lab = k.lab("nof32a")
        k(f"s_bfe_u32 s{sT0}, s{sWORD}, {20 | (4 << 16)}\ns_cbranch_scc0 {lab}")
        for i in range(4):
            l2 = k.lab("q")
            k(f"s_add_u32 s{sT0}, s{sQ}, {i}\ns_and_b32 s{sT0}, s{sT0}, 3\ns_add_u32 s{sT0}, s{sT0}, 20\ns_bitcmp1_b32 s{sWORD}, s{sT0}\ns_cbranch_scc0 {l2}")
            for x in range(4): k(f"v_mov_b32 v{P+4*i+x}, {BIAS*0x10001}")
            k(f"{l2}:")
        k(f"{lab}:")
        for x in range(4): k(f"v_pk_add_u16 v{P+x}, v{P+x}, v{P+4+x}\nv_pk_add_u16 v{P+8+x}, v{P+8+x}, v{P+12+x}")
        for j in range(4):
            for e in range(2):
                x = 2*e + j//2
                k(f"v_add_u32_sdwa v{S+2*j+e}, v{P+x}, v{P+8+x} dst_sel:DWORD dst_unused:UNUSED_PAD src0_sel:WORD_{j & 1} src1_sel:WORD_{j & 1}")
        for x in range(8): k(f"v_cvt_f32_u32 v{S+x}, v{S+x}")
        for j in range(4): k(f"v_pk_fma_f32 v[{S+2*j}:{S+2*j+1}], v[{S+2*j}:{S+2*j+1}], s[{sU}:{sU+1}], s[{sU}:{sU+1}] op_sel:[0,0,1] op_sel_hi:[1,0,1]")
        lab = k.lab("nof32b")
        k(f"s_bfe_u32 s{sT0}, s{sWORD}, {20 | (4 << 16)}\ns_cbranch_scc0 {lab}\nv_lshlrev_b32 v32, 1, v{vP[h]}")
        for q in range(4):
            l2 = k.lab("q")
            k(f"""s_bitcmp1_b32 s{sWORD}, {20+q}
            s_cbranch_scc0 {l2}
            s_lshl_b32 s{sT1}, s{sSO}, 1
            s_add_u32 s{sT1}, s{sT1}, {OFF_P32 + q*E*16}
            buffer_load_dwordx4 v[{P}:{P+3}], v32, s[{sREC}:{sREC+3}], s{sT1} offen sc1
            buffer_load_dwordx4 v[{P+4}:{P+7}], v32, s[{sREC}:{sREC+3}], s{sT1} offen offset:16 sc1
            s_waitcnt vmcnt(0)""")
            for j in range(4):
                for e in range(2): k(f"v_add_f32 v{S+2*j+e}, v{S+2*j+e}, v{P+4*e+j}")
            k(f"{l2}:")
        k(f"{lab}:")
        def matvec(dst, src, w):
            for j in range(4):
                for c in range(4):
                    b = w + 4*j + (c & ~1); x = c & 1
                    if j == 0: k(f"v_pk_mul_f32 v[{dst+2*c}:{dst+2*c+1}], v[{src}:{src+1}], s[{b}:{b+1}] op_sel:[0,{x}] op_sel_hi:[1,{x}]")
                    else: k(f"v_pk_fma_f32 v[{dst+2*c}:{dst+2*c+1}], v[{src+2*j}:{src+2*j+1}], s[{b}:{b+1}], v[{dst+2*c}:{dst+2*c+1}] op_sel:[0,{x},0] op_sel_hi:[1,{x},1]")
        matvec(D, S, sWD)
        for c in range(4): k(f"v_pk_mul_f32 v[{D+2*c}:{D+2*c+1}], v[{D+2*c}:{D+2*c+1}], v[{GH[h]+2*c}:{GH[h]+2*c+1}]")
        matvec(S, D, sWU)
        for e in range(2):
            for x in range(2):
                k(f"v_lshlrev_b32 v{D+4*x+e}, 16, v{MM[h]+2*e+x}\nv_and_b32 v{D+4*x+2+e}, 0xffff0000, v{MM[h]+2*e+x}")
        for c in range(4): k(f"v_pk_fma_f32 v[{D+2*c}:{D+2*c+1}], v[{S+2*c}:{S+2*c+1}], v[{GH[h]+8+2*c}:{GH[h]+9+2*c}], v[{D+2*c}:{D+2*c+1}]")
        for e in range(2):
            for x in range(2): k(f"v_cvt_pk_bf16_f32 v{D+8+2*e+x}, v{D+4*x+e}, v{D+4*x+2+e}")
        k(f"buffer_store_dwordx4 v[{D+8}:{D+11}], v{vP[h]}, s[{sOU}:{sOU+3}], s{sSO} offen {o.get('oflag', '')}")
    finish(0)
    k(f"s_cmp_ge_u32 s{sWAVE}, 4\ns_cbranch_scc1 L_p2_f1")
    finish(1)
    k(f"""L_p2_f1:
    s_bitset0_b32 s{sTODO}, s{sSL}
    s_cmp_eq_u32 s{sTODO}, 0
    s_cbranch_scc1 L_p2_done
    s_ff1_i32_b32 s{sSL}, s{sTODO}""")
    dist_loads(sSL)
    k("s_waitcnt vmcnt(0)")
    gates2()
    slice_loads()
    k("s_branch L_p2_fin\nL_p2_done:")
    if o["stamp"]:
        stamp(k, 49, 42); k("s_waitcnt vmcnt(0)"); stamp(k, 58, 42); stamp(k, 61, 42, real=True)
        stamp_dump(k, f"s_lshl_b32 s{sT0}, s{sOB}, 8\ns_lshl_b32 s{sT1}, s{sQ}, 4\ns_or_b32 s{sT0}, s{sT0}, s{sT1}\ns_or_b32 s{sT0}, s{sT0}, s{sWAVE}\ns_cmp_eq_u32 s{sT0}, {(o.get('dob', 5) << 8) | (o.get('dq', 1) << 4) | o.get('dw', 5)}", 52)
    k(f"s_branch {end}\nL_p2_slow:")
    k(f"""s_barrier
    v_mov_b32 v8, 0
    v_mov_b32 v9, 0
    v_mov_b32 v10, 0
    v_mov_b32 v11, 0
    v_mov_b32 v12, v{vA16}""")
    for u in range(10):
        k("ds_write_b128 v12, v[8:11]\nv_add_u32 v12, 16384, v12")
    k(f"""v_mul_u32_u24 v13, {TAB_ROW}, v0
    v_mov_b32 v29, 0x7fc00000
    v_add_u32 v28, 32, v13
    v_lshlrev_b32 v14, 12, v0
    v_add_u32 v14, {OFF_REC}, v14
    s_mul_i32 s{sTB}, s{sQ}, 65
    s_add_u32 s{sTB}, s{sTB}, s{sOB}
    s_lshl_b32 s{sTB}, s{sTB}, 5
    s_add_u32 s{sTB}, s{sTB}, {OFF_TAB}
    s_lshl_b32 s{sACC}, s{sACC}, 1
    s_mul_i32 s{sMOFF}, s{sQ}, {16*R*8}
    s_mov_b32 s{sIT}, 0
    s_waitcnt lgkmcnt(0)
    s_barrier
    L_p2_sstep:
    buffer_load_ushort v15, v13, s[{sREC}:{sREC+3}], s{sTB} offen
    buffer_load_ushort v16, v28, s[{sREC}:{sREC+3}], s{sTB} offen
    s_waitcnt vmcnt(0)
    L_p2_srec:
    v_cmp_lt_u32 vcc, v15, v16
    s_nop 1
    s_and_b64 exec, exec, vcc
    s_cbranch_execz L_p2_sdone
    v_mul_u32_u24 v17, 43691, v15
    v_lshrrev_b32 v17, 17, v17
    v_mad_i32_i24 v18, v17, -3, v15
    v_lshrrev_b32 v19, 8, v17
    v_lshl_add_u32 v19, v19, 22, v14
    v_and_b32 v17, 255, v17
    v_lshl_add_u32 v17, v17, 4, v19
    v_lshl_add_u32 v19, v18, 2, v17
    buffer_load_dword v20, v19, s[{sREC}:{sREC+3}], 0 offen
    buffer_load_dword v21, v17, s[{sREC}:{sREC+3}], 0 offen offset:12
    v_add_u32 v15, 1, v15
    v_mad_u32_u24 v18, v18, 10, 2
    s_waitcnt vmcnt(0)
    v_and_b32 v19, 0x3fff, v20
    v_lshlrev_b32 v19, 3, v19
    buffer_load_dwordx2 v[22:23], v19, s[{sM}:{sM+3}], s{sMOFF} offen
    v_mad_u32_u16 v20, v20, 16, s{sACC} op_sel:[1,0,0,0]
    v_bfe_i32 v21, v21, v18, 10
    v_cmp_eq_i32 vcc, -512, v21
    v_cvt_f32_i32 v21, v21
    v_mul_f32 v21, {f2u(1.0/CQ)}, v21
    v_cndmask_b32 v21, v21, v29, vcc
    s_waitcnt vmcnt(0)
    v_lshlrev_b32 v24, 16, v22
    v_and_b32 v25, 0xffff0000, v22
    v_lshlrev_b32 v26, 16, v23
    v_and_b32 v27, 0xffff0000, v23
    v_mul_f32 v24, v21, v24
    v_mul_f32 v25, v21, v25
    v_mul_f32 v26, v21, v26
    v_mul_f32 v27, v21, v27
    ds_add_f32 v20, v24
    ds_add_f32 v20, v25 offset:4
    ds_add_f32 v20, v26 offset:8
    ds_add_f32 v20, v27 offset:12
    s_branch L_p2_srec
    L_p2_sdone:
    s_mov_b64 exec, -1
    s_add_u32 s{sTB}, s{sTB}, 2
    s_add_u32 s{sMOFF}, s{sMOFF}, {R*8}
    s_add_u32 s{sIT}, s{sIT}, 1
    s_cmp_lt_u32 s{sIT}, 16
    s_cbranch_scc1 L_p2_sstep
    s_waitcnt lgkmcnt(0)
    s_barrier
    s_mul_i32 s{sT0}, s{sQ}, {E*16}
    s_mul_i32 s{sT1}, s{sOB}, {R*16}
    s_add_u32 s{sSO}, s{sT0}, s{sT1}
    s_add_u32 s{sSO}, s{sSO}, {OFF_P32}
    v_mov_b32 v12, v{vA16}
    s_mov_b32 s{sIT}, 0
    L_p2_sout:
    v_cmp_gt_u32 vcc, {R*16}, v12
    ds_read_b128 v[8:11], v12
    s_nop 0
    s_and_b64 exec, exec, vcc
    s_cbranch_execz L_p2_sfin
    s_waitcnt lgkmcnt(0)
    buffer_store_dwordx4 v[8:11], v12, s[{sREC}:{sREC+3}], s{sSO} offen sc1
    s_waitcnt vmcnt(0)
    v_add_u32 v12, 16384, v12
    s_branch L_p2_sout
    L_p2_sfin:
    s_mov_b64 exec, -1
    s_waitcnt vmcnt(0) lgkmcnt(0)
    s_barrier
    s_branch L_p2_signal
    {end}:
    s_endpgm""")
    return k


def rnd2(k, a, b, t):
    k(f"""v_cvt_pk_bf16_f32 v{t}, v{a}, v{b}
    v_lshlrev_b32 v{a}, 16, v{t}
    v_and_b32 v{b}, 0xffff0000, v{t}""")


NOTES = """
Generated by tools/gen.py (hand-written generator; edit that file, not this one).
S[e] = sum over triplets t with idx_out[t] = e of cos(freq * angle[t]) * m[idx_in[t]]
out  = m + (((S @ w_down) * (rbf @ w_sbf)) @ w_up) * (rbf @ w_rbf)
p1: counting sort of 1024 chunks of 40000 triplets by (idx_in / 10000, idx_out / 10000) through LDS.
p2: workgroup = (10000 output edges, quarter of the input rows): m tile and scaled-integer sums in LDS
    (scale from max|m| and mean|m|, every add range-checked); any failed check reruns the workgroup with
    f32 sums.  The four quarters exchange partial sums and each finishes 2500 edges.
"""

if __name__ == "__main__":
    if sys.argv[1] == "p2var":
        import json
        for n, oo in json.loads(sys.argv[2]).items():
            o1 = oo.pop("p1", {})
            only1 = oo.pop("only1", 0); tl = oo.pop("tl", 0); nempty = oo.pop("nempty", 0); stt = oo.pop("selftime", 0)
            if only1: o1.setdefault("cpf", 1)
            ks = [pass1(**o1)] if only1 else [pass1(**o1), pass2(opts=oo)]
            if tl: ks = [timeline(x, i) for i, x in enumerate(ks)]
            if stt: selftime(ks[0], ks[1])
            ls = list(ks)
            if nempty:
                e = K("e_kernel", 256, 64, 0, 8); e("s_endpgm"); ks.append(e)
                ls = ls[:1] + [e]*nempty + ls[1:]
            open(f"p2_{n}.s", "w").write(assemble_file(ks, ls))
    else:
        ks = [pass1(), pass2(force_slow=(len(sys.argv) > 2 and sys.argv[2] == "slow"))]
        open(sys.argv[1], "w").write(assemble_file(ks, notes=NOTES))
```

```python
import sys
from asmlib import *

C = 40000
NCH = 1024
R = 10000
CMAX = 40064
import os
INTAG = int(os.environ.get("INTAG", 1))
CQ = 511
NBLK = ((CMAX + 2) // 3 + 255) // 256
TAB_ROW = 4 * 65 * 32
TAB_BYTES = NCH * TAB_ROW
OFF_REC = 0
OFF_TAB = NBLK << 22
OFF_INFO1 = OFF_TAB + TAB_BYTES
OFF_CNT = OFF_INFO1 + 4096
OFF_MC = OFF_CNT + 64 * 256
OFF_P16 = OFF_MC
OFF_P32 = OFF_P16 + 4 * E * 8
assert OFF_P32 + 4 * E * 16 <= WS_BYTES
MAGIC_DIV = (2**32 + R - 1) // R
LDS_ALL = 163840
SD = "dst_sel:DWORD dst_unused:UNUSED_PAD src0_sel:DWORD"


import struct
f2u = lambda x: struct.unpack("<I", struct.pack("<f", x))[0]


class Cnt:
    def __init__(self, k, name, mx):
        self.k, self.name, self.mx, self.q = k, name, mx, []
        self.rec, self.forced = [], None
    def issue(self, tag=None):
        self.q.append(tag)
    def wait(self, tag):
        idx = [i for i, t in enumerate(self.q) if t == tag]
        n = min(len(self.q) - 1 - idx[-1], self.mx) if idx else None
        if self.forced is not None:
            f = self.forced[len(self.rec)]
            assert n is None or (f is not None and f <= n)
            n = f
        self.rec.append(n)
        if n is None:
            return
        self.k(f"s_waitcnt {self.name}({n})")
        if len(self.q) > n:
            self.q = self.q[len(self.q) - n:] if n else []


def emit_loop(k, cnts, body):
    n0, lab0 = len(k.L), k.nlab
    entry = [list(c.q) for c in cnts]
    recs = []
    for trial in range(3):
        for c in cnts: c.rec, c.forced = [], None
        k.first = trial == 0
        body()
        recs.append([list(c.rec) for c in cnts])
        del k.L[n0:]; k.nlab = lab0
    last = [list(c.q) for c in cnts]
    for i, c in enumerate(cnts):
        merged = []
        for col in zip(*[r[i] for r in recs]):
            v = [x for x in col if x is not None]
            merged.append(min(v) if v else None)
        c.q, c.rec, c.forced = entry[i], [], merged
    k.first = True
    body()
    for i, c in enumerate(cnts):
        c.forced, c.rec, c.q = None, [], last[i]


def stamp(k, i, sa, v=125, real=False):
    k(f"""s_waitcnt lgkmcnt(0)
    {'s_memrealtime' if real else 's_memtime'} s[{sa}:{sa+1}]
    s_waitcnt lgkmcnt(0)""")
    if isinstance(i, str):
        k(f"s_mov_b32 m0, {i}\nv_writelane_b32 v{v}, s{sa}, m0")
    else:
        k(f"v_writelane_b32 v{v}, s{sa}, {i}")


def stamp_dump(k, cond, sa, v=125, vt=126):
    lab = k.lab("nodump")
    k(cond)
    k(f"""s_cbranch_scc0 {lab}
    s_load_dwordx2 s[{sa}:{sa+1}], s[0:1], 96
    s_waitcnt lgkmcnt(0)
    s_mov_b32 s{sa+2}, 256
    s_mov_b32 s{sa+3}, 0x00020000
    v_and_b32 v{vt}, 63, v0
    v_lshlrev_b32 v{vt}, 2, v{vt}
    buffer_store_dword v{v}, v{vt}, s[{sa}:{sa+3}], 0 offen
    {lab}:""")


def timeline(k, idx):
    first = [i for i, l in enumerate(k.L) if "s_cbranch_scc1" in l][0]
    k.L[first+1:first+1] = ["    s_memrealtime s[98:99]", "    s_lshl_b32 s97, s2, 24", "    s_waitcnt lgkmcnt(0)", "    s_and_b32 s98, s98, 0xffffff", "    s_or_b32 m0, s97, s98"]
    k.L[first] = f"    s_cbranch_scc1 L_tl_{idx}"
    last = len(k.L) - 1
    assert "s_endpgm" in k.L[last]
    nw = k.block // 64
    k.L[last:last] = ["    " + l.strip() for l in f"""s_waitcnt vmcnt(0) lgkmcnt(0)
    s_load_dwordx2 s[4:5], s[0:1], 104
    s_memrealtime s[98:99]
    s_waitcnt lgkmcnt(0)
    s_mov_b32 s6, {WS_BYTES}
    s_mov_b32 s7, 0x00020000
    s_and_b32 s96, m0, 0xffffff
    s_lshr_b32 s97, m0, 24
    s_and_b32 s98, s98, 0xffffff
    s_mov_b64 exec, 1
    v_mov_b32 v2, s96
    v_mov_b32 v3, s98
    v_mov_b32 v4, 0
    s_lshl_b32 s97, s97, 3
    s_add_u32 s97, s97, {610000000 + idx*65536}
    buffer_store_dwordx2 v[2:3], v4, s[4:7], s97 offen""".split("\n")] + [f"L_tl_{idx}:"]
    k.sgpr = 102
    return k


def selftime(k1, k):
    first = [i for i, l in enumerate(k1.L) if "s_cbranch_scc1" in l][0]
    k1.L[first+1:first+1] = ["    " + l.strip() for l in f"""s_cmp_lg_u32 s2, 0
    s_cbranch_scc1 L_st1
    s_memrealtime s[8:9]
    s_load_dwordx2 s[4:5], s[0:1], 104
    s_waitcnt lgkmcnt(0)
    s_mov_b32 s6, {WS_BYTES}
    s_mov_b32 s7, 0x00020000
    s_mov_b32 s10, 620000000
    v_mov_b32 v2, s8
    buffer_store_dword v2, off, s[4:7], s10
    s_waitcnt vmcnt(0)""".split("\n")] + ["L_st1:"]
    first = [i for i, l in enumerate(k.L) if "s_cbranch_scc1" in l][0]
    k.L[first+1:first+1] = ["    s_memrealtime s[98:99]", "    s_memtime s[96:97]", "    s_waitcnt lgkmcnt(0)", "    v_mov_b32 v51, s98", "    v_mov_b32 v55, s96"]
    k.L[first] = "    s_cbranch_scc1 L_st"
    last = len(k.L) - 1
    k.L[last:last] = ["    " + l.strip() for l in """s_waitcnt vmcnt(0) lgkmcnt(0)
    s_mov_b64 exec, 1
    s_mov_b32 s10, 620000000
    buffer_load_dword v5, off, s[4:7], s10
    s_load_dwordx2 s[4:5], s[0:1], 96
    s_memrealtime s[98:99]
    s_memtime s[96:97]
    s_waitcnt lgkmcnt(0) vmcnt(0)
    s_mov_b32 s6, 256
    s_mov_b32 s7, 0x00020000
    v_sub_u32 v2, s98, v5
    v_sub_u32 v3, v51, v5
    v_sub_u32 v4, s96, v55
    s_cmp_lg_u32 s13, 0
    s_cbranch_scc1 L_st
    buffer_atomic_umax v2, off, s[4:7], 0
    buffer_atomic_umax v3, off, s[4:7], 0 offset:4
    buffer_atomic_umax v4, off, s[4:7], 0 offset:8""".split("\n")] + ["L_st:"]


def code_prefetch(k, sp, va, vd, label_from, nbytes):
    lab = k.lab("pc")
    k(f"""s_getpc_b64 s[{sp}:{sp+1}]
    {lab}:
    s_add_u32 s{sp}, s{sp}, {label_from}-{lab}
    s_addc_u32 s{sp+1}, s{sp+1}, 0
    v_lshlrev_b32 v{va}, 7, v0
    v_min_u32 v{va}, {nbytes}, v{va}
    global_load_dword v{vd}, v{va}, s[{sp}:{sp+1}]""")


def scan64(k, v, op="v_add_u32"):
    for sh in (1, 2, 4, 8):
        k(f"s_nop 1\n{op}_dpp v{v}, v{v}, v{v} row_shr:{sh} row_mask:0xf bank_mask:0xf bound_ctrl:0")
    k(f"s_nop 1\n{op}_dpp v{v}, v{v}, v{v} row_bcast:15 row_mask:0xa bank_mask:0xf")
    k(f"s_nop 1\n{op}_dpp v{v}, v{v}, v{v} row_bcast:31 row_mask:0xc bank_mask:0xf")


def scan16(k, v, op="v_add_u32"):
    for sh in (1, 2, 4, 8):
        k(f"s_nop 1\n{op}_dpp v{v}, v{v}, v{v} row_shr:{sh} row_mask:0xf bank_mask:0xf bound_ctrl:0")


def pass1(stflag="sc1", plan=None, diag=None, tabflag="sc1", cplan=None, nearly=0, rb=10, rsw=0, grp=2, contig=0, ibar="", cpf=2, flip=0, pre=5, mpos=0, mcopy=0, ltabat="pe", thr=None, thrf=None, thrs=0, thro=None, thre=None, abl="", late=1, tsch="0||1|2|3|", dfr=1, dpf=0, wpf=0, thrx="", thrh="", force=None, nvote=64, vmin=8, nrace=2, warm=1, ppos=5, pwave=0, pbar=1, byat=4,
          xplan="b1=l0 po1=a0 po2=a1 po3=a2 po5=a3 po6=a4 po7=a5 po9=a6 r10=a7 r11=a8 r12=a9 r14=l1 r17=l2 rb1=l3 r21=l4 r24=l5 r27=l6 r29=l7"):
    k = K("p1_kernel", 256, 1024, LDS_ALL, 128)
    def st_(n):
        if diag is not None:
            k(f"s_mul_i32 s82, s40, 12\ns_add_u32 s82, s82, {1+n}"); stamp(k, "s82", 80, v=5)
    vm = Cnt(k, "vmcnt", 63)
    sWS, sIN, sOUT, sANG, sREC, sTAB, sM = 4, 8, 12, 16, 20, 24, 28
    sCI, sOI, sOA, sT0, sT1, sNEG, sKC, sWAVE, sIT, sKF, sTO, sPERM = 32, 33, 34, 35, 36, 37, 38, 39, 40, 41, 42, 43
    sM9 = 44
    sNUL, sTOTAL, sBAD = 46, 54, 55
    sF4, sF2, sD3 = 48, 49, 50
    sE0, sE1 = 56, 64
    vA16, vA8, vTR, vONE, vNAN = 1, 2, 3, 4, 5
    TMP = list(range(6, 16))
    NPF = 4
    SLOT = [16 + 8*i for i in range(NPF)]
    RB = 48
    H, H2, CA, SP = 0, 16384, 24704, CMAX*4
    PRE = SP + 512
    sPAD, sW13, sSL0, sDBG = 53, 42, 76, 84
    DEC = SP + 640
    Q = [RB + 4*q for q in range(13)]
    B = [RB + 52 + 4*b for b in range(7)]
    XQ = 12
    Cr = lambda j: B[0] + j // 2
    LAND = {g: (SLOT[g], SLOT[g] + 4) for g in range(NPF)}
    LAND.update({4: (Q[6], Q[7]), 5: (Q[8], B[0]), 6: (Q[9], B[1]), 7: (Q[10], B[2]), 8: (Q[11], B[3]), 9: (Q[12], B[4])})
    tsch = [[int(c) for c in part] for part in tsch.split("|")]
    trest = [g for g in range(10) if not any(g in p for p in tsch)]
    wfree, pfree, WS_, PS_ = [B[6] + 3], [B[5] + x for x in range(4)] + [B[6] + x for x in range(3)], {}, {}
    def free_quad(r): wfree.extend([r, r + 1, r + 2]); pfree.append(r + 3)
    def place(g):
        I, O = LAND[g]
        if I in Q: free_quad(I)
        PS_[g] = [pfree.pop(0) for _ in range(2)]
        if O in Q: free_quad(O)
        WS_[g] = [wfree.pop(0) for _ in range(4)]
    for it in range(6):
        free_quad(Q[it])
        for g in tsch[it]:
            assert g < NPF + it
            place(g)
    for g in trest: place(g)
    assert not wfree and not pfree
    Wr = lambda j: WS_[j // 4][j & 3]
    Pr = lambda j: PS_[j // 4][(j >> 1) & 1]
    M9 = f"s_mov_b64 exec, s[{sM9}:{sM9+1}]"
    end = "L_p1_end"
    k(f"s_cmp_ge_u32 s2, 256\ns_cbranch_scc1 {end}")
    if flip: k(f"s_xor_b32 s2, s2, {flip}")
    k.ldptr(sWS, "ws"); k.ldptr(sIN, "idx_in"); k.ldptr(sOUT, "idx_out"); k.ldptr(sANG, "angle"); k.ldptr(sM, "m")
    k.ldptr(6, "ang_freq"); k.ldptr(sDBG, "dbg")
    if dpf: k.ldptr(76, "dist")
    if wpf: k(f"s_load_dwordx2 s[76:77], s[0:1], {KA['centers']}\ns_load_dwordx8 s[84:91], s[0:1], {KA['w_rbf']}")
    if cpf:
        k("v_cmp_gt_u32 vcc, 256, v0\ns_nop 1\ns_cbranch_vccz L_p1_nopf")
        code_prefetch(k, 72, 14, 15, "L_p1_nopf", "L_p2_end-L_p1_nopf" if cpf == 2 else "L_p1_end-L_p1_nopf")
        k("L_p1_nopf:")
    k(f"""v_lshlrev_b32 v{vA16}, 4, v0
    v_lshlrev_b32 v{vA8}, 3, v0
    v_lshrrev_b32 v6, 6, v0
    v_and_b32 v{vTR}, 1023, v{vA16}
    v_mov_b32 v{vONE}, 1
    v_mov_b32 v{vNAN}, 0
    v_readfirstlane_b32 s{sWAVE}, v6
    v_cmp_gt_u32 vcc, 784, v0
    """)
    def regroup(d, n):
        k(f"""s_and_b32 s{d}, s2, 7
        s_lshl_b32 s{d}, s{d}, {n}
        s_bfe_u32 s{sT0}, s2, {3 | (n << 16)}
        s_add_u32 s{d}, s{d}, s{sT0}
        s_and_b32 s{sT0}, s2, {255 & ~((8 << n) - 1)}
        s_add_u32 s{d}, s{d}, s{sT0}""")
    regroup(51, rsw)
    nfull = 784 >> rb; part = 784 - (nfull << rb)
    k(f"""s_lshr_b32 s{sT0}, s{sWAVE}, {rb-6}
    s_mul_i32 s{sT1}, s{sT0}, {255*(16 << rb)}
    s_lshl_b32 s{sOI}, s51, {4+rb}
    s_add_u32 s{sOI}, s{sOI}, s{sT1}
    s_lshr_b32 s{sOA}, s{sOI}, 1
    s_mul_i32 s{sF4}, s51, {((1 << rb) - part)*16}
    s_cmp_ge_u32 s{sT0}, {nfull}
    s_cselect_b32 s{sF4}, s{sF4}, 0
    s_lshr_b32 s{sF2}, s{sF4}, 1
    """)
    if contig:
        k(f"""s_mul_i32 s{sOI}, s51, {C*4*(4 if contig == 2 else 1)}
        s_lshr_b32 s{sOA}, s{sOI}, 1
        s_mov_b32 s{sF4}, 0
        s_mov_b32 s{sF2}, 0""")
    GS = 1 if contig else 256
    RS = 1 if contig == 2 else 256
    k(f"""
    s_mov_b64 s[{sM9}:{sM9+1}], vcc
    s_waitcnt lgkmcnt(0)
    s_load_dword s3, s[6:7], 0""")
    k.srd_finish(sIN, T*4); k.srd_finish(sOUT, T*4); k.srd_finish(sANG, T*2)
    if contig == 2: k(f"s_add_u32 s{sIN+2}, s{sOI}, {C*16}\ns_mov_b32 s{sOUT+2}, s{sIN+2}")
    if diag is not None:
        stamp(k, 0, 80, v=5); stamp(k, 60, 80, v=5, real=True)

    def load_idx(g, which, nxt=False):
        srd = (sIN, sOUT)[which]; d = LAND[g][which]
        k(f"s_add_u32 s{sT0}, s{sOI}, {g*16384*GS + (RS*C*4 if nxt else 0)}")
        a = vA16
        if g == 9:
            a = d
            k(f"s_sub_u32 s{sT0}, s{sT0}, s{sF4}\nv_cndmask_b32 v{a}, 2.0, v{vA16}, s[{sM9}:{sM9+1}]")
        k(f"buffer_load_dwordx4 v[{d}:{d+3}], v{a}, s[{srd}:{srd+3}], s{sT0} offen nt"); vm.issue(f"g{g}")
    ISS = set()
    def load_ang(g):
        d = Cr(4*g)
        k(f"s_add_u32 s{sT0}, s{sOA}, {g*8192*GS}")
        a = vA8
        if g == 9:
            a = d
            k(f"s_sub_u32 s{sT0}, s{sT0}, s{sF2}\nv_cndmask_b32 v{a}, 2.0, v{vA8}, s[{sM9}:{sM9+1}]")
        k(f"buffer_load_dwordx2 v[{d}:{d+1}], v{a}, s[{sANG}:{sANG+3}], s{sT0} offen nt"); vm.issue(f"a{g}"); ISS.add(f"a{g}")

    k.srd_finish(sDBG, 256)
    def probe():
        k.c("--- placement vote: pairs of scalar loads 8 KB apart sit on different I/O dies; which one answers first tells the near die.")
        k.c("    Loaded values are never used.  The agreed word (d_debug) only permutes chunk slots: speed, not results.")
        k(f"""s_cmp_lg_u32 s{sWAVE}, {pwave}
        s_cbranch_scc1 L_p1_noprobe
        s_cmp_ge_u32 s2, {nvote}
        s_cbranch_scc1 L_p1_noprobe
        s_andn2_b32 s88, s2, 1
        s_mul_i32 s88, s88, {52*256//nvote}
        s_lshr_b32 s88, s88, 8
        s_lshl_b32 s88, s88, 22
        s_and_b32 s90, s2, 62
        s_lshl_b32 s90, s90, 14
        s_add_u32 s88, s88, s90
        s_add_u32 s88, s{sWS}, s88
        s_addc_u32 s89, s{sWS+1}, 0
        s_and_b32 s95, s2, 1
        s_lshl_b32 s95, s95, 14""")
        k(f"s_xor_b32 s94, s95, {0x4000 if warm else 0x800}")
        for n in range(2*nrace if warm else 1):
            k(f"s_load_dword s91, s[88:89], s94\ns_xor_b32 s94, s94, {0x2000 if n % 2 == 0 else 0x1100}")
        k(f"""s_getreg_b32 s77, hwreg(HW_REG_XCC_ID, 2, 1)
        s_bfe_u32 s90, s2, {3 | (1 << 16)}
        s_xor_b32 s77, s77, s90
        s_lshl_b32 s90, s90, 13
        s_or_b32 s95, s95, s90
        s_mov_b32 s90, 0x10000
        s_waitcnt lgkmcnt(0)""")
        for n in range(nrace):
            k(f"""s_xor_b32 s94, s95, 0x2000
            s_load_dword s91, s[88:89], s95
            s_load_dwordx2 s[92:93], s[88:89], s94
            s_waitcnt lgkmcnt(2)
            s_getreg_b32 s{sT0}, hwreg(HW_REG_IB_STS, 9, 1)
            s_waitcnt lgkmcnt(0)
            s_xor_b32 s{sT0}, s{sT0}, s77
            s_add_u32 s90, s90, s{sT0}
            s_xor_b32 s77, s77, 1
            s_xor_b32 s95, s95, 0x3100""")
        k(f"""s_getreg_b32 s91, hwreg(HW_REG_XCC_ID, 0, 3)
        v_mov_b32 v8, s90
        s_mov_b64 exec, 1
        buffer_atomic_add v8, off, s[{sDBG}:{sDBG+3}], 0 offset:128 sc0
        s_sub_u32 s91, s91, s2
        s_and_b32 s91, s91, 7
        s_or_b32 s92, s91, 8
        s_waitcnt vmcnt(0)
        v_readfirstlane_b32 s93, v8""")
        nq = nvote*3//4
        k(f"""s_nop 0
        s_add_u32 s90, s90, s93
        s_cmp_le_u32 s90, {(nq << 16) + nq*nrace//2 - vmin}
        s_cselect_b32 s92, s92, 16
        s_cmp_ge_u32 s90, {(nq << 16) + nq*nrace//2 + vmin}
        s_cselect_b32 s92, s91, s92
        s_or_b32 s92, s92, 32
        {"" if force is None else "s_mov_b32 s92, %d" % (32 | force)}
        v_mov_b32 v8, s92
        v_mov_b32 v9, 0
        s_lshr_b32 s90, s90, 16
        s_cmp_lg_u32 s90, {nq}
        s_cbranch_scc1 L_p1_voted
        buffer_atomic_cmpswap v[8:9], off, s[{sDBG}:{sDBG+3}], 0
        L_p1_voted:
        s_mov_b64 exec, -1
        L_p1_noprobe:""")
    for g in range(pre + 1):
        if g == ppos: probe()
        if g == mpos:
            k(f"""s_mul_i32 s{sT1}, s2, 20000
            s_add_u32 s{sM+2}, s{sT1}, 20000
            s_mov_b32 s{sM+3}, 0x00020000
            s_add_u32 s{sT0}, s{sT1}, 16384
            buffer_load_dwordx4 v[{RB}:{RB+3}], v{vA16}, s[{sM}:{sM+3}], s{sT1} offen {"nt" if mcopy else ""}
            buffer_load_dwordx4 v[{RB+4}:{RB+7}], v{vA16}, s[{sM}:{sM+3}], s{sT0} offen {"nt" if mcopy else ""}""")
            vm.issue("m"); vm.issue("m")
            if wpf:
                k(f"s_lshr_b32 s{sT0}, s2, 3\ns_or_b32 s{sT0}, s{sT0}, s{sWAVE}\ns_cbranch_scc1 L_p1_nowpf\nv_mov_b32 v13, 0")
                for p in (76, 84, 86, 88, 90): k(f"global_load_dword v14, v13, s[{p}:{p+1}]")
                k("L_p1_nowpf:")
            if dpf:
                k(f"""s_mul_i32 s{sT1}, s2, 5000
                s_add_u32 s78, s{sT1}, 5000
                s_mov_b32 s79, 0x00020000
                v_lshlrev_b32 v13, 6, v0
                buffer_load_dword v13, v13, s[76:79], s{sT1} offen"""); vm.issue("d")
        if g < pre: load_idx(g, 0); load_idx(g, 1)
    k(f"""s_mov_b32 s{sREC}, s{sWS}
    s_mov_b32 s{sREC+1}, s{sWS+1}
    s_mov_b32 s{sREC+2}, 0
    s_mov_b32 s{sREC+3}, 0x00020000
    s_add_u32 s{sTAB}, s{sWS}, {OFF_TAB}
    s_addc_u32 s{sTAB+1}, s{sWS+1}, 0
    s_mov_b32 s{sTAB+2}, {OFF_MC - OFF_TAB}
    s_mov_b32 s{sTAB+3}, 0x00020000
    s_mov_b32 s{sNEG}, {((-R) & 0xffff) | ((0x8000 - R) << 16)}
    s_mov_b32 s{sBAD}, 0
    s_mov_b64 s[{sSL0}:{sSL0+1}], 0
    s_mul_i32 s{sW13}, s{sWAVE}, 13
    s_mov_b64 s[72:73], s[{sWS}:{sWS+1}]
    s_mov_b32 s74, 0
    s_mov_b32 s75, 0x00020000
    s_mov_b32 s{sD3}, 21845
    s_mov_b32 s52, 0x8000
    s_mov_b32 s{sKC}, {256 | (4 << 16)}
    s_mov_b32 s{sPERM}, 0x05040100
    s_mov_b32 s{sIT}, 0
    v_mov_b32 v8, 0
    v_mov_b32 v9, 0
    v_mov_b32 v10, 0
    v_mov_b32 v11, 0
    ds_write_b128 v{vA16}, v[8:11] offset:{H}
    v_min_u32 v7, 16, v0
    v_lshlrev_b32 v7, 2, v7
    v_add_u32 v7, {PRE}, v7
    ds_write_b32 v7, v8
    s_waitcnt lgkmcnt(0)
    s_lshl_b32 s3, s3, 16
    v_mov_b32 v12, s3
    v_mul_f32 v12, 0.15915494, v12
    s_nop 0
    v_readfirstlane_b32 s{sKF}, v12""")
    k.c("--- max|m| and sum|m| of this workgroup's slice (scale of the integer sums in pass 2)")
    vm.wait("m")
    if mcopy:
        k(f"""s_add_u32 s{sM}, s{sWS}, {OFF_MC}
        s_addc_u32 s{sM+1}, s{sWS+1}, 0
        s_mul_i32 s{sT1}, s2, 20000
        s_add_u32 s{sT0}, s{sT1}, 16384
        buffer_store_dwordx4 v[{RB}:{RB+3}], v{vA16}, s[{sM}:{sM+3}], s{sT1} offen
        buffer_store_dwordx4 v[{RB+4}:{RB+7}], v{vA16}, s[{sM}:{sM+3}], s{sT0} offen
        s_nop 0""")
        vm.issue("mc"); vm.issue("mc")
    k("v_mov_b32 v12, 0x3f803f80")
    for i in range(8):
        k(f"v_and_b32 v{RB+i}, 0x7fff7fff, v{RB+i}")
    for i in range(8):
        k(f"v_pk_max_u16 v8, v8, v{RB+i}\nv_dot2c_f32_bf16 v9, v{RB+i}, v12")
    k(f"v_lshrrev_b32 v10, 16, v8\nv_and_b32 v8, 0xffff, v8\nv_max_u32 v8, v8, v10\ns_nop 0")
    scan64(k, 8, "v_max_u32"); scan64(k, 9, "v_add_f32")
    k(f"""s_lshl_b32 s{sT0}, s{sWAVE}, 4
    s_add_u32 s{sT0}, s{sT0}, {SP+64}
    v_mov_b32 v10, s{sT0}
    s_mov_b32 exec_lo, 0
    s_brev_b32 exec_hi, 1
    ds_write_b64 v10, v[8:9]
    s_mov_b64 exec, -1""")
    k(f"""s_waitcnt lgkmcnt(0)
    s_barrier
    s_cmp_lg_u32 s{sWAVE}, 0
    s_cbranch_scc1 L_p1_first
    v_and_b32 v6, 15, v0
    v_lshlrev_b32 v6, 4, v6
    v_add_u32 v6, {SP+64}, v6
    ds_read_b64 v[8:9], v6
    s_waitcnt lgkmcnt(0)""")
    scan16(k, 8, "v_max_u32"); scan16(k, 9, "v_add_f32")
    k(f"""s_lshl_b32 s{sT0}, s2, 3
    s_add_u32 s{sT0}, s{sT0}, {TAB_BYTES}
    v_mov_b32 v6, 0
    s_mov_b64 exec, 0x8000
    buffer_store_dwordx2 v[8:9], v6, s[{sTAB}:{sTAB+3}], s{sT0} offen sc1
    s_lshl_b32 s{sT0}, s2, 8
    s_add_u32 s{sT0}, s{sT0}, {OFF_CNT - OFF_TAB}
    buffer_store_dword v6, v6, s[{sTAB}:{sTAB+3}], s{sT0} offen sc1
    s_mov_b64 exec, -1
    s_branch L_p1_first""")

    QORD = [13, 6, 7, 0, 8, 1, 9, 2, 10, 3, 11, 4, 12, 5]
    STG = [6, 8, 10, 12] + [B[b] + 2*x for b in range(5) for x in range(2)]
    A01 = [B[n] + 3 for n in range(4)] + STG[4:]
    A2 = [B[4] + 3, B[4] + 3, 11, 11] + [B[b] + 1 for b in range(5) for x in range(2)]
    def compress():
        for b in range(5): k(f"v_perm_b32 v{B[b]+1}, v{B[b]+3}, v{B[b]+1}, s{sPERM}")
        k(f"v_perm_b32 v{A2[0]}, v9, v7, s{sPERM}\nv_perm_b32 v11, v13, v11, s{sPERM}")
        for n in range(4): k(f"v_mov_b32 v{A01[n]}, v{STG[n]}")
    def goff(q):
        return f"""s_add_u32 s{sT1}, s{sW13}, {PN(q)}
        s_and_b32 s{sT0}, s{sT1}, 3
        s_mul_i32 s{sT0}, s{sT0}, {(1 << 20) - 1024}
        s_lshl_b32 s{sT1}, s{sT1}, 20
        s_sub_u32 s{sT1}, s{sT1}, s{sT0}"""
    PN = lambda q: (QORD.index(q) - 1) % 14
    def cread(n):
        pn = PN(QORD[n])
        k(f"ds_read_b64 v[{STG[n]}:{STG[n]+1}], v12 offset:{CA + pn*512}")
    DQ = [1, 2, 10, 3, 11, 4, 12, 5] if dfr else []
    assert not dfr or tsch == [[0], [], [1], [2], [3], []]
    sOLD = 72
    def store_quad(q, defer=False):
        r = Q[q] if q < 13 else XQ
        n = QORD.index(q); d = A01[n]; e = 9; x = r + 3
        if q == 13:
            lab = k.lab("nox"); k(f"s_cmp_lg_u32 s{sWAVE}, 15\ns_cbranch_scc1 {lab}")
        k(f"v_lshlrev_b32 v{x}, 16, v{d}\nv_and_b32 v{d}, 0xffff0000, v{d}")
        k(f"v_and_b32 v{e}, 0xffff0000, v{A2[n]}" if n & 1 else f"v_lshlrev_b32 v{e}, 16, v{A2[n]}")
        for y in (x, d, e): k(f"v_mul_f32 v{y}, s{sKF}, v{y}")
        for y in (x, d, e): k(f"v_fract_f32 v{y}, v{y}")
        for y in (x, d, e): k(f"v_cos_f32 v{y}, v{y}")
        for y in (x, d, e): k(f"v_fmaak_f32 v{y}, v10, v{y}, {0x4b400000 + 512}")
        k(f"""v_lshlrev_b32 v{x}, 22, v{x}
        v_alignbit_b32 v{x}, v{d}, v{x}, 10
        v_alignbit_b32 v{x}, v{e}, v{x}, 10
        v_xor_b32 v{x}, 0x80200800, v{x}""")
        if n < 4: k(f"s_waitcnt lgkmcnt({15 if n < 3 else 0})")
        if defer and xplan and f"s{DQ.index(q)}" in xplan:
            h = SLOT[0] + 4*DQ.index(q)
            k(f"v_mov_b64 v[{h}:{h+1}], v[{r}:{r+1}]\nv_mov_b64 v[{h+2}:{h+3}], v[{r+2}:{r+3}]")
            return
        if defer:
            l0, l1 = k.lab("now"), k.lab("held"); h = SLOT[0] + 4*DQ.index(q)
            k(f"""s_cmp_lg_u32 s{sIT}, 3
            s_cbranch_scc1 {l0}
            v_mov_b64 v[{h}:{h+1}], v[{r}:{r+1}]
            v_mov_b64 v[{h+2}:{h+3}], v[{r+2}:{r+3}]
            s_branch {l1}
            {l0}:""")
        k(goff(q) + f"\nbuffer_store_dwordx4 v[{r}:{r+3}], v{vTR}, s[{sREC}:{sREC+3}], s{sT1} offen {stflag}")
        if defer: k(f"{l1}:")
        if q == 13: k(f"{lab}:")

    def transform(g):
        I, O = LAND[g]
        t = TMP[0:4]
        for j in range(4): k(f"v_perm_b32 v{t[j]}, v{O+j}, v{I+j}, s{sPERM}")
        for j in range(4): k(f"v_mul_hi_u32_u24 v{I+j}, {MAGIC_DIV}, v{I+j}\nv_mul_hi_u32_u24 v{O+j}, {MAGIC_DIV}, v{O+j}")
        for j in range(4): k(f"v_lshl_or_b32 v{I+j}, v{O+j}, 16, v{I+j}")
        for j in range(4): k(f"v_dot2_u32_u16 v{O+j}, v{I+j}, s{sKC}, 0")
        for j in range(4): k(f"v_pk_mad_u16 v{t[j]}, v{I+j}, s{sNEG}, v{t[j]}")
        for j in range(4): k(f"ds_add_u32 v{O+j}, v{vONE} offset:{H}")
        if INTAG:
            for j in range(4): k(f"v_pk_mad_u16 v{t[j]}, v{I+j}, s52, v{t[j]} op_sel:[1,0,0] op_sel_hi:[1,1,1]")
        k(f"v_perm_b32 v{Pr(4*g+2)}, v{O+3}, v{O+2}, s{sPERM}\nv_perm_b32 v{Pr(4*g)}, v{O+1}, v{O}, s{sPERM}")
        for j in range(4): k(f"v_or_b32 v{Wr(4*g+j)}, 0x40000000, v{t[j]}")

    def cosines(g, t, vq):
        assert f"a{g}" in ISS
        vm.wait(f"a{g}")
        A = Cr(4*g)
        if late:
            if diag is None: k(f"v_pk_maximum3_f16 v{vNAN}, v{A}, v{A+1}, v{vNAN}")
            return
        k(f"""v_lshlrev_b32 v{t[0]}, 16, v{A}
        v_lshlrev_b32 v{t[1]}, 16, v{A+1}
        v_and_b32 v{A}, 0xffff0000, v{A}
        v_and_b32 v{A+1}, 0xffff0000, v{A+1}""")
        r = [t[0], A, t[1], A+1]
        for x in r: k(f"v_mul_f32 v{x}, s{sKF}, v{x}")
        for x in r: k(f"v_fract_f32 v{x}, v{x}")
        for x in r: k(f"v_cos_f32 v{x}, v{x}")
        for x in r: k(f"v_fmaak_f32 v{x}, v{vq}, v{x}, {0x4b400000 + 512}")
        if diag is None: k(f"v_or3_b32 v{vNAN}, v{r[0]}, v{r[1]}, v{vNAN}\nv_or3_b32 v{vNAN}, v{r[2]}, v{r[3]}, v{vNAN}")
        k(f"v_perm_b32 v{A}, v{A}, v{t[0]}, s{sPERM}\nv_perm_b32 v{A+1}, v{A+1}, v{t[1]}, s{sPERM}")

    cplan = (cplan or "r10 r11 r13 r14 r16 r17 r19 r21 r24 r27").split()
    if late: cplan = [f"r2{g}" for g in range(10)]
    def cos_at(site, t, vq, masked=False):
        for g in range(10):
            if cplan[g] == site:
                if g == 9 and not masked: k(M9)
                if g != 9 and masked: k("s_mov_b64 exec, -1")
                cosines(g, t, vq)
                if g == 9 and not masked: k("s_mov_b64 exec, -1")
                if g != 9 and masked: k(M9)

    loop = "L_p1_loop"
    k(f"{loop}:")
    plan0 = plan
    def body():
        save = list(vm.q)
        def throttle(n):
            if n is None: return
            lab = k.lab("thr")
            k(f"s_cbranch_vccz {lab}\ns_waitcnt vmcnt({n})\n{lab}:")
            if thro is not None: k(f"s_waitcnt vmcnt({thro})")
        if dfr: k(f"s_mov_b64 s[{sOLD}:{sOLD+1}], s[{sREC}:{sREC+1}]\ns_mov_b32 s{sOLD+2}, s{sREC+2}")
        def sq(q):
            store_quad(q, q in DQ)
            if q != 13 and q not in DQ: vm.issue("st")
            if thrs: throttle(thr)
        if thr is not None: k("s_getreg_b32 s51, hwreg(HW_REG_XCC_ID, 0, 1)\ns_cmp_eq_u32 s51, 0\ns_cselect_b64 vcc, -1, 0")
        def ingest(g, live=True):
            if live: vm.wait(f"g{g}")
            else: vm.wait("none")
            if g == 9: k(M9)
            transform(g)
            if g == 9: k("s_mov_b64 exec, -1")
        k.c("--- previous chunk: cosines of the sorted angles, stores; index loads and histogram of this chunk")
        sq(13); sq(6)
        for g in range(NPF, 10):
            sq(g + 3)
            if str(g) in thrx: throttle(0)
            sq(g - NPF)
            if str(g) in thrx + thrh: throttle(0)
            if g == NPF and byat == 3: k("s_barrier")
            load_idx(g, 0)
            if thrs: throttle(thr)
            if str(g) in thrx: throttle(0)
            load_idx(g, 1)
            throttle(thr)
            if g == NPF and byat == 4: k("s_barrier")
            for x in tsch[g - NPF]: ingest(x, not k.first)
        if k.first: vm.q = save
        else: save = list(vm.q)
        k("s_branch L_p1_join\nL_p1_first:")
        for g in range(pre, 10): load_idx(g, 0); load_idx(g, 1)
        k(f"""s_cmp_lg_u32 s{sWAVE}, 15
        s_cbranch_scc1 L_p1_nofetch
        buffer_load_dword v12, off, s[{sDBG}:{sDBG+3}], 0 sc1
        L_p1_nofetch:""")
        for p in tsch:
            for x in p: ingest(x, k.first)
        if not k.first: vm.q = save
        k("L_p1_join:")
        st_(0)
        plan = list(plan0.split() if plan0 else "pre b1 b2 po1 po2 po3 po5 po6 po7 po8 r10 r13 r16 r19 rb1 r22 r25 r28".split())
        pend = [("a", g) for g in range(10)] + [(g, w) for g in range(NPF) for w in range(2)]
        xp = [t.split("=") for t in xplan.split()] if xplan else []
        done = set()
        def pf(site):
            for st0, items in xp:
                if st0 != site: continue
                for it in items.split(","):
                    n = int(it[1:]); done.add(it)
                    if it[0] == "a": load_ang(n)
                    if it[0] == "s":
                        assert site not in ("b2",)
                        h = SLOT[0] + 4*n
                        k(goff(DQ[n]) + f"\nbuffer_store_dwordx4 v[{h}:{h+3}], v{vTR}, s[{sOLD}:{sOLD+3}], s{sT1} offen {stflag}"); vm.issue("st")
                    if it[0] == "l":
                        assert (f"s{n}" in done or f"s{n}" not in xplan) and (n == 0 or f"l{n-1}" in done)
                        if f"s{n}" in done: k("s_nop 0"); load_idx(n >> 1, n & 1, nxt=True)
                        else:
                            l0, l1 = k.lab("ld"), k.lab("st"); h = SLOT[0] + 4*n
                            k(f"""s_cmp_lg_u32 s{sIT}, 3
                            s_cbranch_scc1 {l0}
                            {goff(DQ[n])}
                            buffer_store_dwordx4 v[{h}:{h+3}], v{vTR}, s[{sOLD}:{sOLD+3}], s{sT1} offen {stflag}
                            s_branch {l1}
                            {l0}:""")
                            load_idx(n >> 1, n & 1, nxt=True)
                            k(f"{l1}:")
            if xplan: return
            while plan and plan[0] == site:
                plan.pop(0)
                a, b = pend.pop(0)
                if a == "a": load_ang(b)
                else:
                    assert a < NPF or site == "rb2" or (site[:2] == "r2" and int(site[2]) >= 2*(a - 5) + 1), site
                    if dfr:
                        l0, l1 = k.lab("ld"), k.lab("st"); h = LAND[a][b]
                        k(f"""s_cmp_lg_u32 s{sIT}, 3
                        s_cbranch_scc1 {l0}
                        {goff(DQ[2*a + b])}
                        buffer_store_dwordx4 v[{h}:{h+3}], v{vTR}, s[{sOLD}:{sOLD+3}], s{sT1} offen {stflag}
                        s_branch {l1}
                        {l0}:""")
                    load_idx(a, b, nxt=True)
                    if dfr: k(f"{l1}:")
        for g in trest:
            ingest(g)
            pf(f"in{g}")
        k(f"""s_xor_b32 s{sT0}, s{sWAVE}, 15
        s_or_b32 s{sT0}, s{sT0}, s{sIT}
        s_cbranch_scc1 L_p1_nodec
        s_mov_b64 exec, 1
        s_waitcnt vmcnt(0)
        v_cmp_eq_u32 vcc, 0, v12
        v_mov_b32 v6, {DEC}
        s_nop 0
        s_cbranch_vccz L_p1_dec
        v_mov_b32 v12, 48
        v_mov_b32 v13, 0
        buffer_atomic_cmpswap v[12:13], off, s[{sDBG}:{sDBG+3}], 0 sc0
        s_waitcnt vmcnt(0)
        v_cmp_eq_u32 vcc, 0, v12
        s_nop 1
        v_cndmask_b32 v12, v12, 48, vcc
        L_p1_dec:
        ds_write_b32 v6, v12
        s_mov_b64 exec, -1
        L_p1_nodec:""")
        pf("pre")
        st_(1)
        k(f"""s_lshl2_add_u32 s{sT0}, s{sWAVE}, {PRE}
        v_mov_b32 v13, s{sT0}
        v_mov_b32 v7, 2.0
        v_and_b32 v6, 63, v0
        s_mov_b32 s{sT1}, {PRE}
        s_lshl_b32 s{sT0}, 0x1fffe, s{sWAVE}
        s_and_b32 s{sT0}, s{sT0}, 0x1ffff
        s_mov_b32 exec_hi, 0
        s_mov_b32 exec_lo, s{sT0}
        v_lshl_add_u32 v7, v6, 2, s{sT1}
        s_mov_b64 exec, -1
        v_mov_b32 v14, {PRE + 64}
        s_mov_b32 s{sPAD}, 2
        s_waitcnt lgkmcnt(0)
        s_barrier""")
        st_(2)
        k.c("--- prefix sum over the 4096 cells (cells shorter than two records get null fillers)")
        k(f"ds_read_b128 v[8:11], v{vA16} offset:{H}")
        pf("b1")
        lab = k.lab("nomask")
        k(f"""L_p1_redo:
        s_waitcnt lgkmcnt(0)
        v_min3_u32 v12, v8, v9, v10
        v_min_u32 v12, v12, v11
        v_cmp_gt_u32 vcc, s{sPAD}, v12
        s_nop 0
        s_mov_b64 s[{sNUL}:{sNUL+1}], vcc
        s_cbranch_vccz {lab}""")
        for i in range(4):
            k(f"""v_cmp_eq_u32 s[{sE0+2*i}:{sE0+2*i+1}], 0, v{8+i}
            v_cmp_ge_u32 s[{sE1+2*i}:{sE1+2*i+1}], 1, v{8+i}
            v_max_u32 v{8+i}, 2, v{8+i}""")
        k(f"""{lab}:
        v_add_u32 v9, v8, v9
        v_add_u32 v10, v9, v10
        v_add_u32 v11, v10, v11
        s_nop 1
        v_add_u32_dpp v6, v11, v11 row_shr:1 row_mask:0xf bank_mask:0xf bound_ctrl:0""")
        for d in ("row_shr:2 row_mask:0xf bank_mask:0xf bound_ctrl:0", "row_shr:4 row_mask:0xf bank_mask:0xf bound_ctrl:0",
                  "row_shr:8 row_mask:0xf bank_mask:0xf bound_ctrl:0", "row_bcast:15 row_mask:0xa bank_mask:0xf", "row_bcast:31 row_mask:0xc bank_mask:0xf"):
            k(f"s_nop 1\nv_add_u32_dpp v6, v6, v6 {d}")
        k(f"""s_nop 0
        v_readlane_b32 s{sT0}, v6, 63
        v_sub_u32 v6, v6, v11
        v_add_u32 v8, v8, v6
        v_mov_b32 v12, s{sT0}
        ds_add_u32 v7, v12
        v_add_u32 v9, v9, v6
        v_add_u32 v10, v10, v6
        s_waitcnt lgkmcnt(0)
        s_barrier
        ds_read_b32 v12, v14
        ds_read_b32 v11, v13""")
        pf("b2")
        k(f"""s_waitcnt lgkmcnt(1)
        v_readfirstlane_b32 s{sTOTAL}, v12
        s_waitcnt lgkmcnt(0)
        s_cmp_ge_u32 s{sTOTAL}, {CMAX-1}
        s_cbranch_scc0 L_p1_fits
        s_barrier
        v_mov_b32 v12, 0
        ds_write_b32 v7, v12
        s_mov_b32 s{sPAD}, 0
        s_mov_b32 s{sBAD}, 1
        s_waitcnt lgkmcnt(0)
        s_barrier
        ds_read_b128 v[8:11], v{vA16} offset:{H}
        s_branch L_p1_redo
        L_p1_fits:
        s_mov_b64 exec, 1
        v_mov_b32 v7, {H2 + 8192}
        ds_write_b16 v7, v12
        s_mov_b64 exec, -1
        v_add_u32 v12, v11, v6
        v_add_u32 v13, v11, v8
        v_add_u32 v14, v11, v9
        v_add_u32 v15, v11, v10
        ds_write_b128 v{vA16}, v[12:15] offset:{H}
        s_add_u32 s{sT0}, s{sTOTAL}, 2
        s_mul_hi_u32 s{sT0}, s{sT0}, {(2**32 + 2)//3}
        v_perm_b32 v15, v15, v14, s{sPERM}
        v_perm_b32 v14, v13, v12, s{sPERM}
        ds_write_b64 v{vA8}, v[14:15] offset:{H2}
        s_lshl_b32 s{sT0}, s{sT0}, 4
        s_add_u32 s{sT0}, s{sT0}, {(13 << 24) - 13*16384 + 127}
        s_andn2_b32 s{sT0}, s{sT0}, 127
        s_min_u32 s{sREC+2}, s{sT0}, {(13 << 24) + 1024}
        s_waitcnt lgkmcnt(0)
        s_barrier""")
        st_(3)
        k(f"""s_cmp_lg_u32 s{sIT}, 0
        s_cbranch_scc1 L_p1_slot
        v_mov_b32 v6, {DEC}
        ds_read_b32 v6, v6
        s_waitcnt lgkmcnt(0)
        v_readfirstlane_b32 s90, v6
        s_lshr_b32 s92, s2, 3
        s_add_u32 s91, s2, s90
        s_and_b32 s{sT0}, s91, 3
        s_lshl_b32 s{sT0}, s{sT0}, 5
        s_or_b32 s{sT0}, s{sT0}, s92
        s_andn2_b32 s{sT1}, s{sT0}, 1
        s_add_u32 s{sSL0}, s{sT0}, s{sT1}
        s_lshr_b32 s91, s91, 2
        s_lshr_b32 s{sT0}, s90, 3
        s_xor_b32 s91, s91, s{sT0}
        s_lshr_b32 s{sT0}, s90, 4
        s_and_b32 s{sT0}, s{sT0}, s92
        s_xor_b32 s91, s91, s{sT0}
        s_and_b32 s91, s91, 1
        s_lshl1_add_u32 s{sSL0}, s91, s{sSL0}
        s_lshr_b32 s{sSL0+1}, s90, 3
        L_p1_slot:
        s_lshl_b32 s{sT0}, s{sIT}, 8
        s_lshl_b32 s{sT1}, s{sIT}, 1
        s_and_b32 s{sT1}, s{sT1}, s{sSL0+1}
        s_xor_b32 s{sT1}, s{sT1}, s{sIT}
        s_and_b32 s{sT1}, s{sT1}, 2
        s_or_b32 s{sT0}, s{sT0}, s{sT1}
        s_xor_b32 s{sCI}, s{sSL0}, s{sT0}
        s_and_b32 s{sCI}, s{sCI}, 1023
        s_lshl_b32 s{sT0}, s{sCI}, 12
        s_add_u32 s{sREC}, s{sWS}, s{sT0}
        s_addc_u32 s{sREC+1}, s{sWS+1}, 0""")
        pf("b3")
        def lin_table():
            lab = k.lab("notab")
            k(f"""s_cmp_gt_u32 s{sWAVE}, 8
            s_cbranch_scc1 {lab}
            v_lshrrev_b32 v6, 1, v0
            v_mul_u32_u24 v7, 1009, v6
            v_lshrrev_b32 v7, 16, v7
            v_mul_u32_u24 v7, {1024 - 65}, v7
            v_and_b32 v8, 1, v0
            v_lshl_add_u32 v7, v8, 9, v7
            v_add_lshl_u32 v13, v7, v6, 1""")
            for x in range(8): k(f"ds_read_u16 v{6+x}, v13 offset:{H2 + 128*x}")
            k(f"s_mul_i32 s{sT0}, s{sCI}, {TAB_ROW}\ns_add_u32 s{sTAB+2}, s{sT0}, {TAB_ROW}")
            for x in range(4): k(f"s_waitcnt lgkmcnt({6-2*x})\nv_perm_b32 v{6+x}, v{7+2*x}, v{6+2*x}, s{sPERM}")
            k(f"buffer_store_dwordx4 v[6:9], v{vA16}, s[{sTAB}:{sTAB+3}], s{sT0} offen {tabflag}\ns_nop 1\n{lab}:")
        if ltabat == "b3": lin_table()
        def pos_issue(g):
            t = TMP[(g % 2)*4:]
            if g == 9: k(M9)
            for i in range(2): k(f"v_and_b32 v{t[2*i]}, 0xffff, v{Pr(4*g+2*i)}\nv_lshrrev_b32 v{t[2*i+1]}, 16, v{Pr(4*g+2*i)}")
            for i in range(4): k(f"ds_add_rtn_u32 v{t[i]}, v{t[i]}, v{vONE} offset:{H}")
            if g == 9: k("s_mov_b64 exec, -1")
        k.c("--- positions, offsets table")
        k("s_nop 0")
        pos_issue(0)
        for g in range(10):
            if g < 9:
                pos_issue(g+1)
                k("s_waitcnt lgkmcnt(4)")
            else:
                k("s_waitcnt lgkmcnt(0)")
            t = TMP[(g % 2)*4:]
            for i in range(2): k(f"v_perm_b32 v{Pr(4*g+2*i)}, v{t[2*i+1]}, v{t[2*i]}, s{sPERM}")
            pf(f"po{g}")
        if ltabat == "pe": lin_table()
        st_(4)
        if pbar: k("s_barrier")
        k.c("--- scatter / read back the angles")
        k("v_mov_b32 v10, 16384")
        for g in range(10):
            if g == 9: k(M9)
            for i in range(4): k(f"v_mad_u32_u16 v{6+i}, v{Pr(4*g+i)}, s{sD3}, v10 op_sel:[{i & 1},0,0,0]")
            for i in range(4): k(f"v_add_u32_sdwa v{6+i}, v{6+i}, v{Pr(4*g+i)} dst_sel:DWORD dst_unused:UNUSED_PAD src0_sel:WORD_1 src1_sel:WORD_{i & 1}")
            for i in range(4): k(f"v_add_u32 v{6+i}, v{6+i}, v{6+i}")
            cosines(g, None, None)
            for i in range(4): k(f"ds_write_b16{'_d16_hi' if i & 1 else ''} v{6+i}, v{Cr(4*g+i)} offset:{CA}")
            if g == 9: k("s_mov_b64 exec, -1")
            pf(f"r1{g}")
        k(f"""s_mul_i32 s{sT0}, s{sWAVE}, {(832-64)*8}
        v_add_u32 v12, s{sT0}, v{vA8}
        s_waitcnt lgkmcnt(0)
        s_barrier""")
        st_(6)
        for n in list(range(4, 14)) + [0, 1, 2, 3]: cread(n)
        pf("rb1")
        k("s_waitcnt lgkmcnt(0)\ns_barrier")
        st_(7)
        k.c("--- scatter / read back the index words")
        compress()
        lab = k.lab("nonull")
        k(f"""s_lshl_b32 s{sT0}, s{sTOTAL}, 2
        v_mov_b32 v6, s{sT0}
        v_mov_b32 v7, 0
        v_mov_b32 v10, {f2u(float(CQ))}
        s_mov_b64 exec, 1
        ds_write2_b32 v6, v7, v7 offset0:0 offset1:1
        s_cmp_eq_u64 s[{sNUL}:{sNUL+1}], 0
        s_cbranch_scc1 {lab}""")
        for i in range(4):
            k(f"""s_mov_b64 exec, s[{sE1+2*i}:{sE1+2*i+1}]
            v_lshlrev_b32_sdwa v6, 2, v{14+i//2} {SD} src1_sel:WORD_{i & 1}
            ds_write_b32 v6, v7 offset:4
            s_mov_b64 exec, s[{sE0+2*i}:{sE0+2*i+1}]
            ds_write_b32 v6, v7""")
        k(f"{lab}:\ns_mov_b64 exec, -1")
        for g in range(10):
            if g == 9: k(M9)
            for i in range(4): k(f"v_lshlrev_b32_sdwa v{6+i}, 2, v{Pr(4*g+i)} {SD} src1_sel:WORD_{i & 1}")
            for i in range(4): k(f"ds_write_b32 v{6+i}, v{Wr(4*g+i)}")
            if g == 9: k("s_mov_b64 exec, -1")
            pf(f"r2{g}")
        k(f"""s_mul_i32 s{sT0}, s{sWAVE}, {(832-64)*12}
        v_mad_u32_u24 v6, v0, 12, s{sT0}
        s_waitcnt lgkmcnt(0)
        s_barrier""")
        st_(8)
        lab = k.lab("nox")
        k(f"s_cmp_lg_u32 s{sWAVE}, 15\ns_cbranch_scc1 {lab}")
        for x in range(3): k(f"ds_read_b32 v{XQ+x}, v6 offset:{13*768 + 4*x}")
        k(f"{lab}:")
        for q in QORD[1:]:
            for x in range(3): k(f"ds_read_b32 v{Q[q]+x}, v6 offset:{PN(q)*768 + 4*x}")
        lab = k.lab("nozero"); Z = B[5]
        k(f"""s_cmp_gt_u32 s{sWAVE}, 1
        s_cbranch_scc1 {lab}
        s_mul_i32 s{sT0}, s{sWAVE}, 9984
        v_add_u32 v7, s{sT0}, v{vTR}
        v_min_u32 v8, 16, v0
        v_lshlrev_b32 v8, 2, v8
        v_add_u32 v8, {PRE}, v8""")
        for x in range(4): k(f"v_mov_b32 v{Z+x}, 0")
        for x in range(10): k(f"ds_write_b128 v7, v[{Z}:{Z+3}] offset:{min(1024*x, 9984 - 1024)}")
        k(f"ds_write_b32 v8, v{Z}\n{lab}:")
        pf("rb2")
        assert len([x for x in done if x[0] != "s"]) == 18 if xplan else not plan and not pend, (plan, pend, done)
    i0 = len(k.L)
    emit_loop(k, [vm], body)
    if abl:
        L = k.L[i0:]
        if "r2h" in abl: L = [l for l in L if "ds_write_b16_d16_hi" not in l]
        if "rb1" in abl:
            n = [i for i, l in enumerate(L) if "ds_read_b32" in l and ", v6 offset" in l]
            L = [l for i, l in enumerate(L) if i not in n[1::2]]
        if "cos" in abl: L = [l for l in L if not any(x in l for x in ("v_fract", "v_cos", "v_mul_f32"))]
        if "fract" in abl: L = [l for l in L if "v_fract" not in l]
        k.L[i0:] = L
    k(f"""s_add_u32 s{sOI}, s{sOI}, {RS*C*4}
    s_add_u32 s{sOA}, s{sOA}, {RS*C*2}
    s_add_u32 s{sIT}, s{sIT}, 1
    s_cmp_lt_u32 s{sIT}, 4
    s_cbranch_scc1 {loop}""")
    if diag is not None: stamp(k, 56, 80, v=5)
    if thre is not None: k("s_getreg_b32 s51, hwreg(HW_REG_XCC_ID, 0, 1)\ns_cmp_eq_u32 s51, 0\ns_cselect_b64 vcc, -1, 0")
    for q in QORD:
        store_quad(q)
        if thre is not None:
            lab = k.lab("thr"); k(f"s_cbranch_vccz {lab}\ns_waitcnt vmcnt({thre})\n{lab}:")
    if diag is not None:
        stamp(k, 57, 80, v=5); k("s_waitcnt vmcnt(0)"); stamp(k, 58, 80, v=5); stamp(k, 61, 80, v=5, real=True)
        stamp_dump(k, f"s_lshl_b32 s82, s2, 4\ns_or_b32 s82, s82, s{sWAVE}\ns_cmp_eq_u32 s82, {diag}", 84, v=5, vt=6)
        k("v_mov_b32 v5, 0")
    if late: k(f"v_and_b32 v6, 0x7c007c00, v{vNAN}\nv_add_u32 v6, 0x04000400, v6\nv_and_b32 v6, 0x80008000, v6")
    else: k(f"v_and_b32 v6, 0x34800000, v{vNAN}")
    k(f"""v_cmp_ne_u32 vcc, 0, v6
    s_lshl_b32 s{sT0}, s2, 3
    s_add_u32 s{sT0}, s{sT0}, {TAB_BYTES + 2}
    s_mov_b32 s{sTAB+2}, {OFF_MC - OFF_TAB}
    s_cmp_lg_u64 vcc, 0
    s_cselect_b32 s{sBAD}, 1, s{sBAD}
    s_cmp_eq_u32 s{sBAD}, 0
    s_cbranch_scc1 {end}
    s_mov_b64 exec, 1
    buffer_store_short v{vONE}, off, s[{sTAB}:{sTAB+3}], s{sT0} sc1
    {end}:
    s_endpgm""")
    return k


BIAS = 0x4000
NW = 4
CAP = 64 * (NW + 1)


def pass2(force_slow=False, opts=None):
    o = dict(na=2, stamp=0)
    o.update(opts or {})
    k = K("p2_kernel", 256, 1024, LDS_ALL, 128, sgpr=102)
    vm = Cnt(k, "vmcnt", 63); lg = Cnt(k, "lgkmcnt", 15)
    sREC, sM = 4, 8
    sOB, sQ, sWAVE, sT0, sT1, sMAG, sPERM, sTILE, sSCR, sFAIL = 3, 12, 13, 14, 15, 16, 17, 18, 19, 2
    sMG2 = 20
    MF = o.get("mf", 1); vID = 58
    sMOFF, sK10, sIT, sTB, sSO, sWOFF = 22, 23, 24, 25, 26, 27
    sTOT, sTOTC = 28, 51
    sMM = 30
    sK1, sK2 = 40, 41
    sRW = 44
    sUNIT, sJ, sACC, sTOTN = 48, 49, 50, 29
    sWR, sWS_, sWD, sWU = 52, 68, 84, 28
    GH = [72, 112]
    CEN = [53, 54, 56, 57]
    DD = [60, 61]
    vST = 52
    sDI = 100
    SQ = 3.798282560733770
    TILE, SP = 80000, 160000
    SLB = o.get("slb", 156*128)
    N2L = (R*8 - 3*SLB)//16 - 1024
    MOFF = 136
    vBM = 127
    R2 = o.get("r2", 1)
    RAW = [8 + 4*j for j in range(NW + 1)]
    OS, OE = 28, 36
    RT = 44
    vK3 = 50
    GD = 64
    MP = 88
    TM = list(range(108, 122))
    vA16, vL16, vWA, vCHK, vZ, vSC, vMK = 1, 2, 3, 4, 5, 6, 7
    vWA2, vS2 = 124, 126
    end = "L_p2_end"
    k(f"s_cmp_ge_u32 s2, 256\ns_cbranch_scc1 {end}")
    if o["stamp"]:
        k("v_mov_b32 v125, 0"); stamp(k, 0, 42); stamp(k, 60, 42, real=True)
    k.ldptr(sREC, "ws")
    k.ldptr(sDI, "dist")
    mcopy = o.get("mcopy", 0)
    if not mcopy: k.ldptr(sM, "m")
    if o.get("cpf"):
        k("v_cmp_gt_u32 vcc, 128, v0\ns_nop 1\ns_cbranch_vccz L_p2_nopf")
        code_prefetch(k, 52, 122, 123, "L_p2_nopf", "L_p2_slow-L_p2_nopf")
        k("L_p2_nopf:")
    k("""s_load_dwordx2 s[30:31], s[0:1], 40
    s_load_dwordx4 s[32:35], s[0:1], 56
    s_load_dwordx4 s[36:39], s[0:1], 72""")
    k(f"""s_and_b32 s{sT0}, s2, 7
    s_lshr_b32 s{sJ}, s2, 3
    {"s_lshr_b32 s%d, s%d, 2" % (sOB, sT0) if o.get("hs", 0) else "s_and_b32 s%d, s%d, 1" % (sOB, sT0)}
    s_lshl_b32 s{sOB}, s{sOB}, 5
    s_add_u32 s{sOB}, s{sOB}, s{sJ}
    {"s_and_b32 s%d, s%d, 3" % (sQ, sT0) if o.get("hs", 0) else "s_lshr_b32 s%d, s%d, 1" % (sQ, sT0)}
    v_lshrrev_b32 v{TM[0]}, 6, v0
    v_lshlrev_b32 v{vA16}, 4, v0
    v_and_b32 v{TM[1]}, 63, v0
    v_readfirstlane_b32 s{sWAVE}, v{TM[0]}
    v_lshlrev_b32 v{TM[3]}, 4, v{TM[1]}
    v_lshrrev_b32 v{TM[2]}, 2, v{TM[1]}
    v_mul_u32_u24 v{TM[2]}, {TAB_ROW - 64}, v{TM[2]}
    v_add_u32 v{TM[2]}, v{TM[2]}, v{TM[3]}
    s_mul_i32 s{sT0}, s{sQ}, 65
    s_add_u32 s{sT0}, s{sT0}, s{sOB}
    s_lshl_b32 s{sT0}, s{sT0}, 5
    s_mul_i32 s{sT1}, s{sWAVE}, {64*TAB_ROW}
    s_add_u32 s{sT0}, s{sT0}, s{sT1}
    s_add_u32 s{sTB}, s{sT0}, {OFF_TAB}
    s_mul_i32 s{sMOFF}, s{sQ}, {16*R*8}
    s_mov_b32 s{sFAIL}, {1 if force_slow else 0}
    s_waitcnt lgkmcnt(0)""")
    k.srd_finish(sREC, WS_BYTES)
    if mcopy: k(f"s_add_u32 s{sM}, s{sREC}, {OFF_MC}\ns_addc_u32 s{sM+1}, s{sREC+1}, 0")
    k(f"s_add_u32 s{sM+2}, s{sMOFF}, {16*R*8}\ns_mov_b32 s{sM+3}, 0x00020000")
    for i in range(4):
        k(f"s_add_u32 s{sT1}, s{sTB}, {16*i*TAB_ROW}\nbuffer_load_dwordx4 v[{OS+4*i}:{OS+4*i+3}], v{TM[2]}, s[{sREC}:{sREC+3}], s{sT1} offen"); vm.issue(f"tab{i}")
    k(f"""s_load_dwordx4 s[40:43], s[30:31], 0
    s_load_dwordx16 s[{sWR}:{sWR+15}], s[32:33], 0
    s_load_dwordx16 s[{sWS_}:{sWS_+15}], s[34:35], 0
    s_load_dwordx8 s[{sWD}:{sWD+7}], s[36:37], 0
    s_load_dwordx8 s[92:99], s[38:39], 0""")
    def cnt_add(v, rtn):
        k(f"""s_lshl_b32 s{sT0}, s{sOB}, 8
        s_add_u32 s{sT0}, s{sT0}, {OFF_CNT}
        s_mov_b64 exec, 1
        buffer_atomic_add v{v}, off, s[{sREC}:{sREC+3}], s{sT0} {'sc0' if rtn else ''}
        s_mov_b64 exec, -1""")
    k(f"""v_mov_b32 v{vST}, 0x100
    s_cmp_lg_u32 s{sWAVE}, 0
    s_cbranch_scc1 L_p2_noann""")
    cnt_add(vST, False)
    k("L_p2_noann:")

    mplan = o.get("mplan", ["a3", "a9", "g0", "g1", "a0"])
    def mload(only=None, ahead=False):
        for u in range(5):
            if only is not None and u not in only: continue
            if u == 4 and only is not None and o.get("mt", 1):
                k(f"s_sub_u32 s{sT0}, s{sMOFF}, {0 if ahead else TILE}\nbuffer_load_dwordx4 v[{MP+16}:{MP+19}], v{vWA2}, s[{sM}:{sM+3}], s{sT0} offen"); vm.issue("m")
                continue
            k(f"s_add_u32 s{sT0}, s{sMOFF}, {u*16384 + (R*8 if ahead else 0)}\nbuffer_load_dwordx4 v[{MP+4*u}:{MP+4*u+3}], v{vA16}, s[{sM}:{sM+3}], s{sT0} offen {o.get('mflag', '')}"); vm.issue("m")
    def mwrite(us=range(5)):
        for u in us:
            k(f"ds_write_b128 v{vWA if u < 4 else vWA2}, v[{MP+4*u}:{MP+4*u+3}] offset:{(u & 3)*16384}"); lg.issue("w")
    def dist_loads(sl):
        k(f"""s_mul_i32 s{sT0}, s{sOB}, {R*2}
        s_mul_i32 s{sT1}, s{sl}, {SLB//4}
        s_add_u32 s{sT0}, s{sT0}, s{sT1}
        s_add_u32 s{sT1}, s{sT0}, 4096
        v_min_u32 v{DD[1]}, {N2L - 1}, v0
        v_lshl_add_u32 v{DD[0]}, v0, 2, s{sT0}
        v_lshl_add_u32 v{DD[1]}, v{DD[1]}, 2, s{sT1}
        global_load_dword v{DD[0]}, v{DD[0]}, s[{sDI}:{sDI+1}] {o.get("dflag", "nt")}
        global_load_dword v{DD[1]}, v{DD[1]}, s[{sDI}:{sDI+1}] {o.get("dflag", "nt")}""")
    def gates(i):
        T = [14 + 2*r for r in range(8)]
        CA_, Gf, dd, tmp = 36, GH[i], 30, 32
        rnd = o.get("rnd", 1)
        k(f"v_lshlrev_b32 v{dd}, 16, v{DD[i]}\nv_and_b32 v{dd+1}, 0xffff0000, v{DD[i]}")
        if i == 0:
            for x in range(4): k(f"v_lshlrev_b32 v{CA_+2*x}, 16, v{CEN[x]}\nv_and_b32 v{CA_+2*x+1}, 0xffff0000, v{CEN[x]}")
        def rounds():
            if rnd:
                for r in range(8): rnd2(k, T[r], T[r]+1, tmp)
        for r in range(8):
            c0 = CA_ + (r & ~1)
            k(f"v_pk_add_f32 v[{T[r]}:{T[r]+1}], v[{dd}:{dd+1}], v[{c0}:{c0+1}] op_sel:[0,{r & 1}] op_sel_hi:[1,{r & 1}] neg_lo:[0,1] neg_hi:[0,1]")
        rounds()
        for r in range(8): k(f"v_pk_mul_f32 v[{T[r]}:{T[r]+1}], v[{T[r]}:{T[r]+1}], v[{T[r]}:{T[r]+1}]")
        rounds()
        k(f"v_mov_b32 v{dd}, {f2u(10.0 if rnd else SQ*SQ)}\nv_mov_b32 v{dd+1}, 0x3fb8aa3b")
        for r in range(8): k(f"v_pk_mul_f32 v[{T[r]}:{T[r]+1}], v[{T[r]}:{T[r]+1}], v[{dd}:{dd+1}] op_sel:[0,0] op_sel_hi:[1,0]")
        if rnd:
            rounds()
            for r in range(8): k(f"v_pk_mul_f32 v[{T[r]}:{T[r]+1}], v[{T[r]}:{T[r]+1}], v[{dd}:{dd+1}] op_sel:[0,1] op_sel_hi:[1,1]")
        for r in range(8): k(f"v_exp_f32 v{T[r]}, -v{T[r]}\nv_exp_f32 v{T[r]+1}, -v{T[r]+1}")
        for p in range(4):
            for e in range(2): k(f"v_cvt_pk_bf16_f32 v{T[2*p]+e}, v{T[2*p]+e}, v{T[2*p+1]+e}")
        for p in range(4):
            for dst, base in ((Gf, sWS_), (Gf + 8, sWR)):
                for c in range(4):
                    for e in range(2):
                        k(f"v_dot2_f32_bf16 v{dst+2*c+e}, v{T[2*p]+e}, s{base+4*p+c}, {'0' if p == 0 else 'v%d' % (dst+2*c+e)}")
    def gates2():
        lab = k.lab("g1")
        gates(0)
        k(f"s_cmp_ge_u32 s{sWAVE}, 4\ns_cbranch_scc1 {lab}")
        gates(1)
        k(f"{lab}:")
    mload()
    k(f"s_mov_b32 s{sT1}, {OFF_INFO1}")
    for i in range(2):
        k(f"buffer_load_dwordx4 v[{GD+16+4*i}:{GD+19+4*i}], v{TM[3]}, s[{sREC}:{sREC+3}], s{sT1} offen offset:{1024*i}"); vm.issue("info")
    assert CAP % 64 == 0
    k(f"""v_mov_b32 v{vL16}, v{TM[1]}
    v_mov_b32 v{vK3}, 21845
    v_add_u32 v{vWA}, {TILE}, v{vA16}
    v_add_u32 v{vWA2}, {TILE + 65536}, v{vA16}
    v_add_u32 v{TM[5]}, 65536, v{vA16}
    v_mov_b32 v{TM[4]}, 0x7f000000
    v_cmp_gt_u32 vcc, 904, v0
    s_mul_i32 s{sSCR}, s{sWAVE}, 240
    s_add_u32 s{sSCR}, s{sSCR}, {SP}
    v_cndmask_b32 v{vWA2}, v{TM[4]}, v{vWA2}, vcc
    v_cndmask_b32 v{TM[5]}, v{TM[4]}, v{TM[5]}, vcc
    v_lshl_add_u32 v{vSC}, v{TM[1]}, 2, s{sSCR}
    v_lshl_add_u32 v{vS2}, v{TM[1]}, 1, s{sSCR}
    v_cmp_gt_u32 vcc, {2*NW + 2}, v{TM[1]}
    s_lshl_b32 s{sWOFF}, s{sWAVE}, 18
    s_mov_b32 s{sK10}, {(1 << 18) - 256}
    v_cndmask_b32 v{vSC}, v{TM[4]}, v{vSC}, vcc
    s_mov_b32 s{sRW}, s{sREC}
    s_add_u32 s{sRW+1}, s{sREC+1}, {16 << 16}
    s_mov_b32 s{sRW+2}, {NBLK << 18}
    s_mov_b32 s{sRW+3}, 0x00020000
    s_mov_b32 s{sTILE}, {TILE}
    s_and_b32 s{sACC}, s{sOB}, 1
    s_lshl_b32 s{sACC}, s{sACC}, 18
    {"s_sub_u32 s%d, s%d, s%d" % (sTILE, sTILE, sACC) if INTAG else ""}
    s_sub_u32 s{sACC}, {(-0x4000*8) & 0xffffffff}, s{sACC}
    v_lshlrev_b32 v{TM[8]}, 3, v0
    v_and_b32 v{TM[8]}, 16, v{TM[8]}
    v_and_b32 v{TM[9]}, 1, v0
    v_lshl_or_b32 v{TM[8]}, v{TM[9]}, 5, v{TM[8]}
    v_mov_b32 v{vID}, 0x3f80
    v_mov_b32 v{vID+1}, 0
    v_lshlrev_b64 v[{vID}:{vID+1}], v{TM[8]}, v[{vID}:{vID+1}]
    v_mov_b32 v{vCHK}, 0
    v_mov_b32 v{vZ}, 0
    v_mov_b32 v{TM[6]}, 0xff00
    v_bfe_u32 v{vBM}, v0, {1 if o.get("dm") else 0}, 1
    v_mul_u32_u24 v{vBM}, {40*R2}, v{vBM}
    v_add_u32 v{vBM}, s{sSCR}, v{vBM}
    ds_write2_b32 v{vSC}, v{vZ}, v{vZ} offset0:{MOFF//4} offset1:{MOFF//4 + 10}
    ds_write_b16 v{vS2}, v{TM[6]} offset:2""")
    for i in range(6): k(f"v_mov_b32 v{RT+i}, {BIAS*0x10001}")
    if o.get("rt2"):
        for i in (58, 59, 62, 63, 122, 123): k(f"v_mov_b32 v{i}, 0")
    k(f"""ds_write_b128 v{TM[5]}, v[{RT}:{RT+3}]
    v_lshrrev_b32 v{TM[7]}, 4, v{TM[1]}
    v_mul_u32_u24 v{TM[7]}, {16384 - 1024}, v{TM[7]}
    v_lshl_add_u32 v{TM[7]}, v{TM[1]}, 6, v{TM[7]}
    v_lshl_add_u32 v{TM[7]}, v{TM[0]}, 10, v{TM[7]}""")
    k("s_waitcnt lgkmcnt(0)")
    for i in range(4): k(f"v_mov_b32 v{CEN[i]}, s{40+i}")
    k(f"s_mov_b32 s{sK1}, {16384 + (CAP << 16)}\ns_mov_b32 s{sK2}, {16384 + 2*21845 + (CAP << 16)}")
    for base in (sWR, sWS_):
        for p in range(4):
            b = base + 4*p
            k(f"""s_pack_ll_b32_b16 s{sT0}, s{b}, s{b+2}
            s_pack_hh_b32_b16 s{sT1}, s{b}, s{b+2}
            s_pack_ll_b32_b16 s{b+2}, s{b+1}, s{b+3}
            s_pack_hh_b32_b16 s{b+3}, s{b+1}, s{b+3}
            s_mov_b32 s{b}, s{sT0}
            s_mov_b32 s{b+1}, s{sT1}""")
    for i in range(4):
        vm.wait(f"tab{i}")
        k(f"ds_write_b128 v{vA16}, v[{OS+4*i}:{OS+4*i+3}] offset:{i*16384}")
    for x in (0, 2, 1, 3): k(f"ds_read_b128 v[{OS+4*x}:{OS+4*x+3}], v{TM[7]} offset:{16*x}"); lg.issue(f"t{x}")
    for u in range(4): k(f"ds_write_b128 v{vA16}, v[{RT}:{RT+3}] offset:{u*16384}"); lg.issue("x")
    lg.wait("t2")

    GI = o.get("gi", 1); LS = o.get("ls", 1); EM = 1
    def setup(half, idx=False):
        a, b, c, d = TM[0:4]
        if idx: k(f"s_add_u32 s{sT0}, s{sIT}, 1\ns_min_u32 s{sT0}, s{sT0}, 7\ns_set_gpr_idx_on s{sT0}, gpr_idx(SRC0)")
        k(f"""v_mad_u32_u16 v{a}, v{OS}, v{vK3}, s{sK1} op_sel:[{half},0,0,0]
        v_mad_u32_u16 v{b}, v{OE}, v{vK3}, s{sK2} op_sel:[{half},0,0,0]
        {"s_set_gpr_idx_off" if idx else ""}
        v_sub_u32_sdwa v{c}, v{b}, v{a} dst_sel:DWORD dst_unused:UNUSED_PAD src0_sel:WORD_1 src1_sel:WORD_1
        s_nop 1
        v_add_u32_dpp v{c}, v{c}, v{c} row_shr:1 row_mask:0xf bank_mask:0xf bound_ctrl:0
        s_nop 1
        v_add_u32_dpp v{c}, v{c}, v{c} row_shr:2 row_mask:0xf bank_mask:0xf bound_ctrl:0
        s_nop 1
        v_add_u32_dpp v{c}, v{c}, v{c} row_shr:4 row_mask:0xf bank_mask:0xf bound_ctrl:0
        s_nop 1
        v_add_u32_dpp v{c}, v{c}, v{c} row_shr:8 row_mask:0xf bank_mask:0xf bound_ctrl:0
        s_nop 1
        v_add_u32_dpp v{c}, v{c}, v{c} row_bcast:15 row_mask:0xa bank_mask:0xf
        s_nop 1
        v_add_u32_dpp v{c}, v{c}, v{c} row_bcast:31 row_mask:0xc bank_mask:0xf
        v_sub_u32_sdwa v{b}, v{b}, v{c} dst_sel:DWORD dst_unused:UNUSED_PAD src0_sel:WORD_1 src1_sel:DWORD
        v_readlane_b32 s{sTOTN}, v{c}, 63
        v_add_u32 v{c}, -1, v{c}
        ds_write_b16 v{vS2}, v{b}
        v_lshlrev_b32_e64 v{d}, v{c}, 1
        v_lshrrev_b32 v{c}, 5, v{c}
        s_cmp_gt_u32 s{sTOTN}, {CAP}
        s_cselect_b32 s{sFAIL}, 1, s{sFAIL}""")
        if o.get("dm"):
            k(f"""s_cselect_b32 s{sT0}, 0, -1
            v_xor_b32_dpp v{a}, v{c}, v{c} quad_perm:[1,0,3,2] row_mask:0xf bank_mask:0xf
            v_cmp_eq_u32 vcc, 0, v{a}
            v_lshl_add_u32 v{c}, v{c}, 2, v{vBM}
            s_mov_b64 exec, vcc
            v_or_b32_dpp v{d}, v{d}, v{d} quad_perm:[1,0,3,2] row_mask:0xf bank_mask:0xf
            s_orn2_b32 vcc_lo, 0xaaaaaaaa, vcc_lo
            s_orn2_b32 vcc_hi, 0xaaaaaaaa, vcc_hi
            s_and_b32 exec_lo, vcc_lo, s{sT0}
            s_and_b32 exec_hi, vcc_hi, s{sT0}""")
        else:
            k(f"v_lshl_add_u32 v{c}, v{c}, 2, v{vBM}\ns_cselect_b64 exec, 0, -1")
        k(f"ds_or_b32 v{c}, v{d} offset:{MOFF}\ns_mov_b64 exec, -1")
        if R2: k(f"ds_wrxchg2_rtn_b32 v[{a}:{b}], v{vSC}, v{vZ}, v{vZ} offset0:{MOFF//4} offset1:{MOFF//4 + 10}")
        else: k(f"ds_wrxchg_rtn_b32 v{vMK}, v{vSC}, v{vZ} offset:{MOFF}")
        for t in ("x", "x", "mk"): lg.issue(t)
    def setup2():
        lg.wait("mk")
        if R2: k(f"v_or_b32 v{vMK}, v{TM[0]}, v{TM[1]}\ns_nop 0")
        for j in range(NW):
            k(f"v_readlane_b32 s{sMM+2*j}, v{vMK}, {2*j}\nv_readlane_b32 s{sMM+2*j+1}, v{vMK}, {2*j+1}")
        k(f"s_mov_b32 s{sTB}, s{sSCR}\ns_mov_b32 s{sSO}, s{sWOFF}\ns_mov_b32 s{sTOTC}, s{sTOT}\ns_mov_b32 s{sTOT}, s{sTOTN}")
    def agen1(j, ta, tb):
        k(f"""v_mbcnt_lo_u32_b32 v{ta}, s{sMM+2*j}, 0
        v_mbcnt_hi_u32_b32 v{ta}, s{sMM+2*j+1}, v{ta}
        s_bcnt1_i32_b64 s{sT0}, s[{sMM+2*j}:{sMM+2*j+1}]
        v_lshl_add_u32 v{tb}, v{ta}, 1, s{sTB}
        ds_read_u16 v{tb}, v{tb}
        s_mov_b32 s{sMM+2*j}, s{sSO}
        s_movk_i32 s{sMM+2*j+1}, {64*j - CAP}
        s_lshl1_add_u32 s{sTB}, s{sT0}, s{sTB}
        s_lshl_b32 s{sT0}, s{sT0}, 12
        s_add_u32 s{sSO}, s{sSO}, s{sT0}""")
        lg.issue(f"d{j}")
    def agen2(j, st, ta, tb, track=True):
        r = RAW[j]
        lg.wait(f"d{j}")
        k(f"""v_add3_u32 v{tb}, v{tb}, v{vL16}, s{sMM+2*j+1}
        v_lshl_add_u32 v{ta}, v{ta}, 8, v{tb}
        v_lshrrev_b32 v{tb}, 8, v{tb}
        v_mad_u32_u24 v{ta}, v{tb}, s{sK10}, v{ta}
        buffer_load_dwordx4 v[{r}:{r+3}], v{ta}, s[{sRW}:{sRW+3}], s{sMM+2*j} idxen {o.get("rflag", "")}""")
        if track: vm.issue(f"r{st}_{j}")
    TA, TB_ = 51, 55
    def agen_opt(st):
        assert vm.q[-1] == f"r{st}_{NW-1}" or f"r{st}_{NW-1}" not in vm.q
        lab = k.lab("noopt")
        k(f"s_cmp_le_u32 s{sTOT}, {64*NW}\ns_cbranch_scc1 {lab}")
        j = NW
        k(f"v_readlane_b32 s{sMM+2*j}, v{vMK}, {2*j}\nv_readlane_b32 s{sMM+2*j+1}, v{vMK}, {2*j+1}\ns_nop 1")
        save = list(lg.q)
        agen1(j, TA, TB_); agen2(j, st, TA, TB_, track=False)
        lg.q = save
        k(f"{lab}:")
    def gather(j, g):
        r = RAW[j]
        for x in range(3): k(f"v_mad_u32_u16 v{g+2*x}, v{r+x}, 8, s{sTILE}")
        for x in range(3): k(f"ds_read_b64 v[{g+2*x}:{g+2*x+1}], v{g+2*x}"); lg.issue(f"g{j}")
    RTS = [[RT, RT+2, RT+4], None] if o.get("rt2") else [[RT, RT+2, RT+4]]*2
    def check(p=None):
        for p in ((0, 1) if p is None and o.get("rt2") else (p or 0,)):
            lg.wait(f"rt{p}" if o.get("rt2") else "rt0")
            for x in RTS[p]: k(f"v_or3_b32 v{vCHK}, v{x}, v{x+1}, v{vCHK}")
    def accum(j, g, p=None):
        r = RAW[j]
        p = ((j & 1) if p is None else p) if o.get("rt2") else 0
        t = TM
        def cdec():
            if o.get("abl") == "noc": return
            k(f"""v_bfe_i32 v{t[0]}, v{r+3}, 2, 10
            v_bfe_i32 v{t[1]}, v{r+3}, 12, 10
            v_ashrrev_i32 v{t[2]}, 22, v{r+3}""")
            for x in range(3): k(f"v_cvt_f32_i32 v{t[x]}, v{t[x]}")
        def oaddr():
            for x in range(3): k(f"v_mad_u32_u16 v{r+x}, v{r+x}, 8, s{sACC} op_sel:[1,0,0,0]")
        if MF:
            cdec()
            lg.wait(f"g{j}")
            D = [t[4] + 4*x for x in range(3)]
            for x in range(3): k(f"v_mfma_f32_4x4x4_16b_bf16 v[{D[x]}:{D[x]+3}], v[{vID}:{vID+1}], v[{g+2*x}:{g+2*x+1}], 0")
            oaddr()
            A = [D[x] for x in range(3)]; B = [D[x] + 2 for x in range(3)]
        else:
            cdec(); oaddr()
            lg.wait(f"g{j}")
            A = [t[4 + 2*x] for x in range(3)]; B = [g + 2*x for x in range(3)]
            for x in range(3):
                for y in range(2): k(f"v_lshlrev_b32 v{A[x]+y}, 16, v{B[x]+y}\nv_and_b32 v{B[x]+y}, 0xffff0000, v{B[x]+y}")
        for x in range(3):
            c = t[x & ~1]; h = x & 1
            for a, mg in ((B[x], sMG2), (A[x], sMAG)):
                k(f"v_pk_fma_f32 v[{a}:{a+1}], v[{a}:{a+1}], v[{c}:{c+1}], s[{mg}:{mg+1}] op_sel:[0,{h},0] op_sel_hi:[1,{h},1]")
        for x in range(3): k(f"v_lshlrev_b64 v[{B[x]}:{B[x]+1}], 16, v[{B[x]}:{B[x]+1}]")
        for x in range(3): k(f"v_lshl_add_u64 v[{g+2*x}:{g+2*x+1}], v[{A[x]}:{A[x]+1}], 0, v[{B[x]}:{B[x]+1}]")
        if j == NW and o.get("oex"): k("s_mov_b64 vcc, exec\ns_mov_b64 exec, -1")
        check(p)
        if j == NW and o.get("oex"): k("s_mov_b64 exec, vcc")
        for x in range(3): k(f"ds_add_rtn_u64 v[{RTS[p][x]}:{RTS[p][x]+1}], v{r+x}, v[{g+2*x}:{g+2*x+1}]"); lg.issue(f"rt{p}")
    def optional(st):
        assert lg.q[-1][:2] == "rt" and f"r{st}_{NW-1}" not in vm.q
        p = int(lg.q[-1][2])
        lab = k.lab("noopt2")
        k(f"s_cmp_le_u32 s{sTOTC}, {64*NW}\ns_cbranch_scc1 {lab}")
        save = list(lg.q)
        gather(NW, GD); accum(NW, GD, p)
        lg.q = save
        k(f"{lab}:")

    def opt_part(tot, fn):
        lab = k.lab("noopt3")
        k(f"s_cmp_le_u32 s{tot}, {64*NW}\ns_cbranch_scc1 {lab}")
        save = list(lg.q)
        if o.get("oex"):
            k(f"s_sub_u32 s{sT1}, {CAP}, s{tot}\ns_and_b32 s{sT1}, s{sT1}, 60\ns_lshr_b64 exec, -1, s{sT1}")
        fn()
        if o.get("oex"): k("s_mov_b64 exec, -1")
        lg.q = save
        k(f"{lab}:")

    def rotate():
        for b in (OS, OE):
            for i in range(0, 6, 2): k(f"v_pk_mov_b32 v[{b+i}:{b+i+1}], v[{b+i}:{b+i+1}], v[{b+i+2}:{b+i+3}] op_sel:[1,0]")
            k(f"v_pk_mov_b32 v[{b+6}:{b+7}], v[{b+6}:{b+7}], v[{vCHK}:{vZ}] op_sel:[1,1]")
    early = o.get("early", 0)
    def first_loads():
        for j in range(NW): agen2(j, 0, RAW[j], RAW[j]+1)
        agen_opt(0)
    setup(0); setup2()
    for j in range(NW): agen1(j, RAW[j], RAW[j]+1)
    if not early: first_loads()
    vm.wait("m")
    mwrite()
    if early == 1:
        lg.wait("w"); k("s_barrier"); first_loads()
    vm.wait("info")
    k.c("--- scale from the statistics; unusable statistics select the f32 path")
    I = GD + 16
    k(f"""v_max3_u32 v64, v{I}, v{I+2}, v{I+4}
    v_add_f32 v65, v{I+1}, v{I+3}
    v_add_f32 v66, v{I+5}, v{I+7}
    v_max_u32 v64, v64, v{I+6}
    v_add_f32 v65, v65, v66
    v_cmp_lt_u32 vcc, 0xffff, v64""")
    scan64(k, 64, "v_max_u32"); scan64(k, 65, "v_add_f32")
    k(f"""s_cmp_lg_u64 vcc, 0
    s_cselect_b32 s{sFAIL}, 1, s{sFAIL}
    v_lshlrev_b32 v64, 16, v64
    v_mul_f32 v66, {f2u(64.0/(4*E))}, v65
    v_mul_f32 v65, {f2u(33.0/(4*E))}, v65
    v_cmp_nle_f32 vcc, v64, v66
    v_max_u32 v64, v64, v65
    s_nop 0
    v_readlane_b32 s{sT0}, v64, 63
    s_bitcmp1_b32 vcc_hi, 31
    s_cselect_b32 s{sFAIL}, 1, s{sFAIL}
    s_lshr_b32 s{sT0}, s{sT0}, 23
    s_add_u32 s{sT0}, s{sT0}, 1
    s_cmp_lt_u32 s{sT0}, 40
    s_cselect_b32 s{sFAIL}, 1, s{sFAIL}
    s_cmp_gt_u32 s{sT0}, 230
    s_cselect_b32 s{sFAIL}, 1, s{sFAIL}
    s_sub_u32 s{sUNIT}, s{sT0}, 14
    s_lshl_b32 s{sUNIT}, s{sUNIT}, 23
    s_add_u32 s{sMAG}, s{sUNIT}, {((23 + 9) << 23) + 0x400000}
    s_lshr_b32 s{sT1}, s{sMAG}, 16
    s_sub_u32 s{sT1}, 0x10000, s{sT1}
    s_add_u32 s{sMG2}, s{sMAG}, s{sT1}
    s_sub_u32 s{sMAG+1}, s{sMG2}, 1
    s_mov_b32 s{sMG2+1}, s{sMAG+1}
    s_or_b32 s{sUNIT}, s{sUNIT}, {f2u(512.0/CQ) & 0x7fffff}
    s_sub_u32 s{sT0}, s{sT0}, 40
    s_cmp_gt_u32 s{sT0}, 190
    s_cselect_b32 s{sUNIT}, 0, s{sUNIT}""")
    if early != 1:
        lg.wait("w"); k("s_barrier")
    if early == 2: first_loads()
    mload([u for u in range(5) if mplan[u][0] == "a" and int(mplan[u][1]) >= o["na"]], ahead=True)
    setup(1)
    k(f"s_mov_b32 s{sIT}, 0")
    if o.get("prio"):
        for p in (1, 2, 3):
            lab = k.lab("pr")
            k(f"s_cmp_lt_u32 s{sWAVE}, {o['prio'][p-1]}\ns_cbranch_scc1 {lab}\ns_setprio {p}\n{lab}:")
    k.c("--- main loop, two tiles per iteration: gather rows from the LDS tile, scale, add 4 x 16 bit with one 64-bit LDS atomic")
    k.c("    (records of neighbouring cells and fillers get out-of-range LDS addresses); returns are range-checked")
    loop = "L_p2_loop"
    k(f"{loop}:")
    def body():
        for st in (0, 1):
            def st_(n):
                if o["stamp"] == 1 and n == 0:
                    k(f"s_lshl_b32 s{sT0}, s{sIT}, 1\ns_add_u32 s{sT0}, s{sT0}, {1+st}"); stamp(k, f"s{sT0}", 42)
            st_(0)
            k(f"s_add_u32 s{sMOFF}, s{sMOFF}, {R*8}")
            if st == 0:
                k(f"""s_lshl_b32 s{sT0}, s{sWAVE}, 4
                s_or_b32 s{sT0}, s{sT0}, s{sIT}
                s_cmp_lg_u32 s{sT0}, 5
                s_cbranch_scc1 L_p2_nost
                v_mov_b32 v{vST}, 0""")
                cnt_add(vST, True)
                k("L_p2_nost:")
            else:
                k(f"s_cmp_eq_u32 s{sIT}, 7\ns_cselect_b32 s{sRW+2}, 0, s{sRW+2}")
            def final_loads():
                dist_loads(sQ)
                k(f"""s_lshl_b32 s{sT0}, s{sT0}, 2
                s_lshl_b32 s{sT1}, s{sT1}, 2
                v_min_u32 v{OE}, {N2L - 1}, v0
                v_add_u32 v{OS}, s{sT0}, v{vA16}
                v_lshl_add_u32 v{OE}, v{OE}, 4, s{sT1}
                global_load_dwordx4 v[{OS}:{OS+3}], v{OS}, s[{sM}:{sM+1}]
                global_load_dwordx4 v[{OE}:{OE+3}], v{OE}, s[{sM}:{sM+1}]""")
            fl = o.get("fl", "m14")
            def final_at(site):
                if fl == site + str(14 + st) and fl != "m15":
                    k(f"s_cmp_lg_u32 s{sIT}, {o.get('fit', 7)}\ns_cbranch_scc1 L_p2_nofin"); final_loads(); k("L_p2_nofin:")
            final_at("s")
            na = o["na"]
            gplan = o.get("gplan", [2, 2])
            gq = list(range(NW))
            def gathers(n):
                for _ in range(n):
                    j = gq.pop(0)
                    vm.wait(f"r{st}_{j}")
                    gather(j, GD + 6*j)
                    mload([u for u in range(5) if mplan[u] == f"g{j}"])
            gathers(gplan[0])
            setup2()
            osp = o.get("osp", 3)
            optat = o.get("optat", 2)
            for j in range(NW):
                if j == na:
                    assert not gq
                    if not osp & 1: optional(st)
                    lg.wait(f"g{NW-1}")
                    if st == 1 and LS:
                        k(f"s_cmp_lg_u32 s{sIT}, 7\ns_cbranch_scc1 L_p2_stage")
                        if fl == "m15": final_loads()
                        k("s_waitcnt lgkmcnt(0)\ns_branch L_p2_staged\nL_p2_stage:")
                    k("s_barrier")
                    vm.wait("m")
                    mwrite()
                    if st == 1 and LS: k("L_p2_staged:")
                    final_at("m")
                if 0 < j < len(gplan):
                    gathers(gplan[j])
                    final_at("g")
                    if osp & 1 and j == len(gplan) - 1:
                        assert not gq and j < na
                        opt_part(sTOTC, lambda: gather(NW, GD))
                agen1(j, TA, TB_)
                if osp & 2 and j == NW - 1:
                    def f():
                        k(f"v_readlane_b32 s{sMM+2*NW}, v{vMK}, {2*NW}\nv_readlane_b32 s{sMM+2*NW+1}, v{vMK}, {2*NW+1}\ns_nop 1")
                        agen1(NW, 62, 63)
                    opt_part(sTOT, f)
                accum(j, GD + 6*j)
                agen2(j, 1 - st, TA, TB_)
                if osp & 1 and j == optat:
                    assert lg.q[-1] == "rt0" and j >= len(gplan) - 1
                    opt_part(sTOTC, lambda: accum(NW, GD))
                if j == NW - 1:
                    if osp & 2: opt_part(sTOT, lambda: agen2(NW, 1 - st, 62, 63, track=False))
                    else: agen_opt(1 - st)
                mload([u for u in range(5) if mplan[u] == f"a{j}"], ahead=(j >= na))
            if st == 0 and not GI: rotate()
            if st == 1 and LS: k(f"s_cmp_eq_u32 s{sIT}, 7\ns_cbranch_scc1 L_p2_exit")
            setup(st, GI)
            mload([u for u in range(5) if mplan[u] == "a9"], ahead=True)
            final_at("e")
            lg.wait("w")
            if st == 1:
                k(f"s_add_u32 s{sIT}, s{sIT}, 1\ns_cmp_lt_u32 s{sIT}, 8")
            k("s_barrier")
    i0 = len(k.L)
    emit_loop(k, [vm, lg], body)
    abl = o.get("abl", "").split("+")
    if abl != [""]:
        import re
        L = k.L[i0:]
        dummy = f"    ds_read_b32 v56, v{vZ}"
        if "nortn" in abl: L = [re.sub(r"ds_add_rtn_u64 v\[\d+:\d+\], ", "ds_add_u64 ", l) for l in L if "v_or3" not in l]
        if "now" in abl: L = [dummy if "ds_write_b128" in l else l for l in L]
        if "noat" in abl: L = [dummy if "ds_add_rtn" in l else l for l in L]
        if "ling" in abl: L = [re.sub(r"(ds_read_b64 v\[\d+:\d+\]), v\d+", r"\1, v57", l) for l in L]
        if "nom" in abl: L = [l.replace(f"s[{sM}:{sM+3}], s{sT0} offen", f"s[{sM}:{sM+3}], s{sT0} offen").replace(f"v{vA16}, s[{sM}", f"v125, s[{sM}") if "v[88:91]" in l or "v[96:99]" in l or "v[100:103]" in l else l for l in L]
        if "nopack" in abl: L = [l for l in L if "v_lshlrev_b64" not in l]
        if "nomf" in abl: L = [l for l in L if "v_mfma" not in l]
        if "noopt" in abl: L = [l.replace("s_cbranch_scc1", "s_branch") if "noopt" in l and "cbranch" in l else l for l in L]
        k.L[i0:] = L
        k.L[i0-1:i0-1] = [f"    v_lshrrev_b32 v57, 1, v{vA16}", f"    v_add_u32 v57, {TILE}, v57", "    v_mov_b32 v125, 2.0"]
    k(f"s_cbranch_scc1 {loop}")
    if LS: k("L_p2_exit:\ns_waitcnt lgkmcnt(0)"); lg.q = []
    k.c("--- publish the partial sums of the three slices other workgroups finish; range check of all sums")
    if o["stamp"]: stamp(k, 40, 42)
    sOU, sU = 16, 44
    sSL, sTODO, sWORD, sDEL, sSC2 = 49, 51, 20, 21, 27
    vP = [vA16, 2]
    MM = [64, 68]
    PP = [8, 88]
    check()
    k(f"""s_mov_b32 s{sSC2}, s{sSCR}
    s_waitcnt vmcnt(0)""")
    if EM:
        for i, src in enumerate((OS, OE)):
            k(f"v_mov_b64 v[{MM[i]}:{MM[i]+1}], v[{src}:{src+1}]\nv_mov_b64 v[{MM[i]+2}:{MM[i]+3}], v[{src+2}:{src+3}]")
    k(f"""v_mov_b32 v8, {SP + 232}
    s_cmp_lg_u32 s{sWAVE}, 0
    s_cselect_b64 exec, 0, 1
    ds_write_b32 v8, v{vST}
    s_mov_b64 exec, -1
    v_subrev_u32 v6, {TILE}, v{vWA2}
    s_mul_i32 s{sIT}, s{sQ}, {SLB}
    v_subrev_u32 v10, s{sIT}, v{vA16}
    v_mov_b32 v11, 0x7f000000
    s_waitcnt vmcnt(0) lgkmcnt(0)
    s_barrier""")
    if o["stamp"]: stamp(k, 41, 14)
    gw = o.get("gw", 12)
    gpos = o.get("gpos", 2)
    k(f"s_cmp_lt_u32 s{sWAVE}, {gw}\ns_cbranch_scc1 L_p2_ga")
    if gpos == 0: gates(0)
    k("L_p2_ga:\nds_read_b32 v9, v8")
    for u in range(4): k(f"ds_read_b128 v[{MP+4*u}:{MP+4*u+3}], v{vA16} offset:{u*16384}")
    k(f"""ds_read_b128 v[{MP+16}:{MP+19}], v6
    s_mul_i32 s{sT0}, s{sQ}, {E*8}
    s_mul_i32 s{sT1}, s{sOB}, {R*8}
    s_add_u32 s{sTB}, s{sT0}, s{sT1}
    s_add_u32 s{sTB}, s{sTB}, {OFF_P16}
    s_cmp_eq_u32 s{sQ}, 3
    s_cselect_b32 s{sT1}, {R*8 - 4*SLB}, 0
    s_add_u32 s{sT1}, s{sT1}, {SLB}
    s_waitcnt lgkmcnt(5)
    v_readfirstlane_b32 s{sDEL}, v9
    s_nop 0
    s_bfe_u32 s{sDEL}, s{sDEL}, {8 | (8 << 16)}
    s_cmp_lg_u32 s{sDEL}, {99 if o.get('deleg') else 4}
    s_cselect_b32 s{sDEL}, 1, 0
    s_cselect_b32 s{sIT}, 0, s{sT1}""")
    for u in range(5):
        k(f"""v_cmp_le_u32 vcc, s{sIT}, v10
        v_add_u32 v10, 16384, v10
        s_add_u32 s{sT0}, s{sTB}, {u*16384 if u < 4 else 0}
        v_cndmask_b32 v12, v11, v{vA16 if u < 4 else 6}, vcc
        s_waitcnt lgkmcnt({4-u})
        buffer_store_dwordx4 v[{MP+4*u}:{MP+4*u+3}], v12, s[{sREC}:{sREC+3}], s{sT0} offen sc1
        v_or3_b32 v{vCHK}, v{MP+4*u}, v{MP+4*u+1}, v{vCHK}
        v_or3_b32 v{vCHK}, v{MP+4*u+2}, v{MP+4*u+3}, v{vCHK}""")
    if o["stamp"]: stamp(k, 42, 14)
    k(f"s_load_dwordx2 s[{sOU}:{sOU+1}], s[0:1], {KA['out']}\ns_cmp_ge_u32 s{sWAVE}, {gw}\ns_cbranch_scc1 L_p2_gb")
    if gpos == 0: gates2()
    if gpos == 2: gates(0)
    k(f"""L_p2_gb:
    v_and_b32 v{vCHK}, 0x80008000, v{vCHK}
    v_cmp_ne_u32 vcc, 0, v{vCHK}
    v_mov_b32 v8, s{sSC2}
    v_and_b32 v10, 15, v0
    v_mul_u32_u24 v10, 240, v10
    v_add_u32 v10, {SP}, v10
    s_cmp_lg_u64 vcc, 0
    s_cselect_b32 s{sFAIL}, 1, s{sFAIL}
    v_mov_b32 v9, s{sFAIL}
    s_mov_b64 exec, 1
    ds_write_b32 v8, v9
    s_mov_b64 exec, -1
    s_mov_b32 s{sSL}, s{sQ}
    s_mov_b32 s{sTODO}, 0
    s_waitcnt vmcnt(0) lgkmcnt(0)""")
    if o["stamp"]: stamp(k, 43, 14)
    k("s_barrier\nds_read_b32 v9, v10")
    k.srd_finish(sOU, E*8)
    def slice_loads(rows=True):
        k(f"""s_cmp_eq_u32 s{sSL}, 3
        s_cselect_b32 s{sT1}, {(R*8 - 4*SLB)//16}, 0
        s_add_u32 s{sT1}, s{sT1}, {SLB//16 - 1024}
        v_add_u32 v{vP[1]}, 16384, v{vA16}
        v_cmp_gt_u32 vcc, s{sT1}, v0
        s_mul_i32 s{sT0}, s{sOB}, {R*8}
        s_mul_i32 s{sSO}, s{sSL}, {SLB}
        s_add_u32 s{sSO}, s{sSO}, s{sT0}
        v_cndmask_b32 v{vP[1]}, 0.5, v{vP[1]}, vcc
        s_mov_b32 s{sM+2}, {E*8}""")
        for i in range(2 if rows else 0): k(f"buffer_load_dwordx4 v[{MM[i]}:{MM[i]+3}], v{vP[i]}, s[{sM}:{sM+3}], s{sSO} offen")
    k(f"""s_waitcnt lgkmcnt(0)
    v_cmp_ne_u32 vcc, 0, v9
    s_nop 1
    s_cmp_lg_u64 vcc, 0
    s_cselect_b32 s{sFAIL}, {0 if o.get("abl") else 1}, 0
    {"" if o.get("abl") else "s_cbranch_scc1 L_p2_slow"}
    L_p2_signal:""")
    if o["stamp"]: stamp(k, 44, 14)
    k(f"""v_mov_b32 v8, {SP + 228}
    s_lshl_b32 s{sT1}, s{sFAIL}, 4
    s_or_b32 s{sT1}, s{sT1}, s{sDEL}
    s_add_u32 s{sT0}, s{sQ}, 16
    s_lshl_b32 s{sWORD}, s{sT1}, s{sT0}
    s_add_u32 s{sWORD}, s{sWORD}, 1
    v_mov_b32 v9, s{sWORD}
    s_cmp_lg_u32 s{sWAVE}, 15
    s_cbranch_scc1 L_p2_nosig0""")
    k.c("--- hand-off word: a workgroup waits only if all four partners were seen running, otherwise the last one finishes its slice")
    cnt_add(9, True)
    k("L_p2_nosig0:")
    slice_loads(not EM)
    for i in range(8): k(f"s_lshl_b32 s{sWU+2*i}, s{92+i}, 16\ns_and_b32 s{sWU+2*i+1}, s{92+i}, 0xffff0000")
    for i in range(7, -1, -1): k(f"s_and_b32 s{sWD+2*i+1}, s{sWD+i}, 0xffff0000\ns_lshl_b32 s{sWD+2*i}, s{sWD+i}, 16")
    k(f"""s_mov_b32 s{sU}, s{sUNIT}
    s_add_u32 s{sU+1}, s{sUNIT}, {0x80000000 + (16 << 23)}
    s_cmp_eq_u32 s{sUNIT}, 0
    s_cselect_b32 s{sU+1}, 0, s{sU+1}""")
    if gpos == 1: gates2()
    if gpos == 2:
        k(f"s_cmp_lt_u32 s{sWAVE}, {gw}\ns_cbranch_scc1 L_p2_gc")
        gates(0)
        k(f"L_p2_gc:\ns_cmp_ge_u32 s{sWAVE}, 4\ns_cbranch_scc1 L_p2_gd")
        gates(1)
        k("L_p2_gd:")
    k(f"""s_cmp_lg_u32 s{sWAVE}, 15
    s_cbranch_scc1 L_p2_nosig
    s_waitcnt vmcnt({0 if EM else 2})
    v_readfirstlane_b32 s{sT1}, v9
    s_lshl_b32 s{sTODO}, 1, s{sQ}
    s_add_u32 s{sWORD}, s{sWORD}, s{sT1}
    s_and_b32 s{sT1}, s{sWORD}, 0xff
    s_cmp_eq_u32 s{sT1}, 4
    s_cbranch_scc0 L_p2_notlast
    s_bfe_u32 s{sT1}, s{sWORD}, {16 | (4 << 16)}
    s_or_b32 s{sTODO}, s{sTODO}, s{sT1}
    s_branch L_p2_pub
    L_p2_notlast:
    s_cmp_lg_u32 s{sDEL}, 0
    s_cselect_b32 s{sTODO}, 0, s{sTODO}
    s_cbranch_scc1 L_p2_pub
    L_p2_poll:
    v_mov_b32 v9, 0""")
    cnt_add(9, True)
    k(f"""s_waitcnt vmcnt(0)
    v_readfirstlane_b32 s{sWORD}, v9
    s_nop 0
    s_and_b32 s{sT1}, s{sWORD}, 0xff
    s_cmp_lt_u32 s{sT1}, 4
    s_cbranch_scc1 L_p2_poll
    L_p2_pub:
    s_lshl_b32 s{sT1}, s{sTODO}, 24
    s_or_b32 s{sT1}, s{sT1}, s{sWORD}
    v_mov_b32 v9, s{sT1}
    s_mov_b64 exec, 1
    ds_write_b32 v8, v9
    s_mov_b64 exec, -1
    s_waitcnt lgkmcnt(0)
    L_p2_nosig:
    s_barrier
    ds_read_b32 v9, v8
    s_waitcnt lgkmcnt(0)
    v_readfirstlane_b32 s{sWORD}, v9
    s_nop 0
    s_lshr_b32 s{sTODO}, s{sWORD}, 24
    s_cbranch_scc0 {end}
    L_p2_fin:""")
    if o["stamp"]: stamp(k, 45, 14)
    k(f"s_mul_i32 s{sIT}, s{sSL}, {SLB}")
    qoff = lambda i, sz, base: f"""s_add_u32 s{sT0}, s{sQ}, {i}
        s_and_b32 s{sT0}, s{sT0}, 3
        s_mul_i32 s{sT1}, s{sT0}, {E*sz}
        s_add_u32 s{sT1}, s{sT1}, {base}"""
    for i in range(1, 4):
        k(qoff(i, 8, OFF_P16) + f"\ns_add_u32 s{sT1}, s{sT1}, s{sSO}")
        for h in range(2): k(f"buffer_load_dwordx4 v[{PP[h]+4*i}:{PP[h]+4*i+3}], v{vP[h]}, s[{sREC}:{sREC+3}], s{sT1} offen sc1")
    for h in range(2):
        k(f"v_add_u32 v{24+h}, s{sIT}, v{vP[h]}\nds_read_b128 v[{PP[h]}:{PP[h]+3}], v{24+h}")
    assert 4*BIAS == 1 << 16
    if o["stamp"]: stamp(k, 46, 14)
    def finish(h):
        P, S, D = PP[h], 24, PP[h]
        if h == 0:
            k("s_waitcnt vmcnt(0) lgkmcnt(0)")
            if o["stamp"]: stamp(k, 48, 14)
        lab = k.lab("nof32a")
        k(f"s_bfe_u32 s{sT0}, s{sWORD}, {20 | (4 << 16)}\ns_cbranch_scc0 {lab}")
        for i in range(4):
            l2 = k.lab("q")
            k(f"s_add_u32 s{sT0}, s{sQ}, {i}\ns_and_b32 s{sT0}, s{sT0}, 3\ns_add_u32 s{sT0}, s{sT0}, 20\ns_bitcmp1_b32 s{sWORD}, s{sT0}\ns_cbranch_scc0 {l2}")
            for x in range(4): k(f"v_mov_b32 v{P+4*i+x}, {BIAS*0x10001}")
            k(f"{l2}:")
        k(f"{lab}:")
        for x in range(4): k(f"v_pk_add_u16 v{P+x}, v{P+x}, v{P+4+x}\nv_pk_add_u16 v{P+8+x}, v{P+8+x}, v{P+12+x}")
        for j in range(4):
            for e in range(2):
                x = 2*e + j//2
                k(f"v_add_u32_sdwa v{S+2*j+e}, v{P+x}, v{P+8+x} dst_sel:DWORD dst_unused:UNUSED_PAD src0_sel:WORD_{j & 1} src1_sel:WORD_{j & 1}")
        for x in range(8): k(f"v_cvt_f32_u32 v{S+x}, v{S+x}")
        for j in range(4): k(f"v_pk_fma_f32 v[{S+2*j}:{S+2*j+1}], v[{S+2*j}:{S+2*j+1}], s[{sU}:{sU+1}], s[{sU}:{sU+1}] op_sel:[0,0,1] op_sel_hi:[1,0,1]")
        lab = k.lab("nof32b")
        k(f"s_bfe_u32 s{sT0}, s{sWORD}, {20 | (4 << 16)}\ns_cbranch_scc0 {lab}\nv_lshlrev_b32 v32, 1, v{vP[h]}")
        for q in range(4):
            l2 = k.lab("q")
            k(f"""s_bitcmp1_b32 s{sWORD}, {20+q}
            s_cbranch_scc0 {l2}
            s_lshl_b32 s{sT1}, s{sSO}, 1
            s_add_u32 s{sT1}, s{sT1}, {OFF_P32 + q*E*16}
            buffer_load_dwordx4 v[{P}:{P+3}], v32, s[{sREC}:{sREC+3}], s{sT1} offen sc1
            buffer_load_dwordx4 v[{P+4}:{P+7}], v32, s[{sREC}:{sREC+3}], s{sT1} offen offset:16 sc1
            s_waitcnt vmcnt(0)""")
            for j in range(4):
                for e in range(2): k(f"v_add_f32 v{S+2*j+e}, v{S+2*j+e}, v{P+4*e+j}")
            k(f"{l2}:")
        k(f"{lab}:")
        def matvec(dst, src, w):
            for j in range(4):
                for c in range(4):
                    b = w + 4*j + (c & ~1); x = c & 1
                    if j == 0: k(f"v_pk_mul_f32 v[{dst+2*c}:{dst+2*c+1}], v[{src}:{src+1}], s[{b}:{b+1}] op_sel:[0,{x}] op_sel_hi:[1,{x}]")
                    else: k(f"v_pk_fma_f32 v[{dst+2*c}:{dst+2*c+1}], v[{src+2*j}:{src+2*j+1}], s[{b}:{b+1}], v[{dst+2*c}:{dst+2*c+1}] op_sel:[0,{x},0] op_sel_hi:[1,{x},1]")
        matvec(D, S, sWD)
        for c in range(4): k(f"v_pk_mul_f32 v[{D+2*c}:{D+2*c+1}], v[{D+2*c}:{D+2*c+1}], v[{GH[h]+2*c}:{GH[h]+2*c+1}]")
        matvec(S, D, sWU)
        for e in range(2):
            for x in range(2):
                k(f"v_lshlrev_b32 v{D+4*x+e}, 16, v{MM[h]+2*e+x}\nv_and_b32 v{D+4*x+2+e}, 0xffff0000, v{MM[h]+2*e+x}")
        for c in range(4): k(f"v_pk_fma_f32 v[{D+2*c}:{D+2*c+1}], v[{S+2*c}:{S+2*c+1}], v[{GH[h]+8+2*c}:{GH[h]+9+2*c}], v[{D+2*c}:{D+2*c+1}]")
        for e in range(2):
            for x in range(2): k(f"v_cvt_pk_bf16_f32 v{D+8+2*e+x}, v{D+4*x+e}, v{D+4*x+2+e}")
        k(f"buffer_store_dwordx4 v[{D+8}:{D+11}], v{vP[h]}, s[{sOU}:{sOU+3}], s{sSO} offen {o.get('oflag', '')}")
    finish(0)
    k(f"s_cmp_ge_u32 s{sWAVE}, 4\ns_cbranch_scc1 L_p2_f1")
    finish(1)
    k(f"""L_p2_f1:
    s_bitset0_b32 s{sTODO}, s{sSL}
    s_cmp_eq_u32 s{sTODO}, 0
    s_cbranch_scc1 L_p2_done
    s_ff1_i32_b32 s{sSL}, s{sTODO}""")
    dist_loads(sSL)
    k("s_waitcnt vmcnt(0)")
    gates2()
    slice_loads()
    k("s_branch L_p2_fin\nL_p2_done:")
    if o["stamp"]:
        stamp(k, 49, 42); k("s_waitcnt vmcnt(0)"); stamp(k, 58, 42); stamp(k, 61, 42, real=True)
        stamp_dump(k, f"s_lshl_b32 s{sT0}, s{sOB}, 8\ns_lshl_b32 s{sT1}, s{sQ}, 4\ns_or_b32 s{sT0}, s{sT0}, s{sT1}\ns_or_b32 s{sT0}, s{sT0}, s{sWAVE}\ns_cmp_eq_u32 s{sT0}, {(o.get('dob', 5) << 8) | (o.get('dq', 1) << 4) | o.get('dw', 5)}", 52)
    k(f"s_branch {end}\nL_p2_slow:")
    k.c("--- any failed check: redo this workgroup's sums in f32, one segment per thread")
    k(f"""s_barrier
    v_mov_b32 v8, 0
    v_mov_b32 v9, 0
    v_mov_b32 v10, 0
    v_mov_b32 v11, 0
    v_mov_b32 v12, v{vA16}""")
    for u in range(10):
        k("ds_write_b128 v12, v[8:11]\nv_add_u32 v12, 16384, v12")
    k(f"""v_mul_u32_u24 v13, {TAB_ROW}, v0
    v_mov_b32 v29, 0x7fc00000
    v_add_u32 v28, 32, v13
    v_lshlrev_b32 v14, 12, v0
    v_add_u32 v14, {OFF_REC}, v14
    s_mul_i32 s{sTB}, s{sQ}, 65
    s_add_u32 s{sTB}, s{sTB}, s{sOB}
    s_lshl_b32 s{sTB}, s{sTB}, 5
    s_add_u32 s{sTB}, s{sTB}, {OFF_TAB}
    s_lshl_b32 s{sACC}, s{sACC}, 1
    s_mul_i32 s{sMOFF}, s{sQ}, {16*R*8}
    s_mov_b32 s{sIT}, 0
    s_waitcnt lgkmcnt(0)
    s_barrier
    L_p2_sstep:
    buffer_load_ushort v15, v13, s[{sREC}:{sREC+3}], s{sTB} offen
    buffer_load_ushort v16, v28, s[{sREC}:{sREC+3}], s{sTB} offen
    s_waitcnt vmcnt(0)
    L_p2_srec:
    v_cmp_lt_u32 vcc, v15, v16
    s_nop 1
    s_and_b64 exec, exec, vcc
    s_cbranch_execz L_p2_sdone
    v_mul_u32_u24 v17, 43691, v15
    v_lshrrev_b32 v17, 17, v17
    v_mad_i32_i24 v18, v17, -3, v15
    v_lshrrev_b32 v19, 8, v17
    v_lshl_add_u32 v19, v19, 22, v14
    v_and_b32 v17, 255, v17
    v_lshl_add_u32 v17, v17, 4, v19
    v_lshl_add_u32 v19, v18, 2, v17
    buffer_load_dword v20, v19, s[{sREC}:{sREC+3}], 0 offen
    buffer_load_dword v21, v17, s[{sREC}:{sREC+3}], 0 offen offset:12
    v_add_u32 v15, 1, v15
    v_mad_u32_u24 v18, v18, 10, 2
    s_waitcnt vmcnt(0)
    v_and_b32 v19, 0x3fff, v20
    v_lshlrev_b32 v19, 3, v19
    buffer_load_dwordx2 v[22:23], v19, s[{sM}:{sM+3}], s{sMOFF} offen
    v_mad_u32_u16 v20, v20, 16, s{sACC} op_sel:[1,0,0,0]
    v_bfe_i32 v21, v21, v18, 10
    v_cmp_eq_i32 vcc, -512, v21
    v_cvt_f32_i32 v21, v21
    v_mul_f32 v21, {f2u(1.0/CQ)}, v21
    v_cndmask_b32 v21, v21, v29, vcc
    s_waitcnt vmcnt(0)
    v_lshlrev_b32 v24, 16, v22
    v_and_b32 v25, 0xffff0000, v22
    v_lshlrev_b32 v26, 16, v23
    v_and_b32 v27, 0xffff0000, v23
    v_mul_f32 v24, v21, v24
    v_mul_f32 v25, v21, v25
    v_mul_f32 v26, v21, v26
    v_mul_f32 v27, v21, v27
    ds_add_f32 v20, v24
    ds_add_f32 v20, v25 offset:4
    ds_add_f32 v20, v26 offset:8
    ds_add_f32 v20, v27 offset:12
    s_branch L_p2_srec
    L_p2_sdone:
    s_mov_b64 exec, -1
    s_add_u32 s{sTB}, s{sTB}, 2
    s_add_u32 s{sMOFF}, s{sMOFF}, {R*8}
    s_add_u32 s{sIT}, s{sIT}, 1
    s_cmp_lt_u32 s{sIT}, 16
    s_cbranch_scc1 L_p2_sstep
    s_waitcnt lgkmcnt(0)
    s_barrier
    s_mul_i32 s{sT0}, s{sQ}, {E*16}
    s_mul_i32 s{sT1}, s{sOB}, {R*16}
    s_add_u32 s{sSO}, s{sT0}, s{sT1}
    s_add_u32 s{sSO}, s{sSO}, {OFF_P32}
    v_mov_b32 v12, v{vA16}
    s_mov_b32 s{sIT}, 0
    L_p2_sout:
    v_cmp_gt_u32 vcc, {R*16}, v12
    ds_read_b128 v[8:11], v12
    s_nop 0
    s_and_b64 exec, exec, vcc
    s_cbranch_execz L_p2_sfin
    s_waitcnt lgkmcnt(0)
    buffer_store_dwordx4 v[8:11], v12, s[{sREC}:{sREC+3}], s{sSO} offen sc1
    s_waitcnt vmcnt(0)
    v_add_u32 v12, 16384, v12
    s_branch L_p2_sout
    L_p2_sfin:
    s_mov_b64 exec, -1
    s_waitcnt vmcnt(0) lgkmcnt(0)
    s_barrier
    s_branch L_p2_signal
    {end}:
    s_endpgm""")
    return k


def rnd2(k, a, b, t):
    k(f"""v_cvt_pk_bf16_f32 v{t}, v{a}, v{b}
    v_lshlrev_b32 v{a}, 16, v{t}
    v_and_b32 v{b}, 0xffff0000, v{t}""")


NOTES = """
Generated by tools/gen.py (hand-written generator; edit that file, not this one).
S[e] = sum over triplets t with idx_out[t] = e of cos(freq * angle[t]) * m[idx_in[t]]
out  = m + (((S @ w_down) * (rbf @ w_sbf)) @ w_up) * (rbf @ w_rbf)
p1: counting sort of 1024 chunks of 40000 triplets by (idx_in / 10000, idx_out / 10000) through LDS.
    Chunks go to workspace pages on the writer's own I/O die.  Which pages those are is voted on by racing pairs of
    loads (their data is never used); the agreed word only permutes the chunk slots, so it affects speed alone.
p2: workgroup = (10000 output edges, quarter of the input rows): m tile and scaled-integer sums in LDS
    (scale from max|m| and mean|m|, every add range-checked); any failed check reruns the workgroup with
    f32 sums.  The four quarters exchange partial sums and each finishes 2500 edges.
"""

if __name__ == "__main__":
    if sys.argv[1] == "p2var":
        import json
        for n, oo in json.loads(sys.argv[2]).items():
            o1 = oo.pop("p1", {})
            only1 = oo.pop("only1", 0); tl = oo.pop("tl", 0); nempty = oo.pop("nempty", 0); stt = oo.pop("selftime", 0)
            if only1: o1.setdefault("cpf", 1)
            ks = [pass1(**o1)] if only1 else [pass1(**o1), pass2(opts=oo)]
            if tl: ks = [timeline(x, i) for i, x in enumerate(ks)]
            if stt: selftime(ks[0], ks[1])
            ls = list(ks)
            if nempty:
                e = K("e_kernel", 256, 64, 0, 8); e("s_endpgm"); ks.append(e)
                ls = ls[:1] + [e]*nempty + ls[1:]
            open(f"p2_{n}.s", "w").write(assemble_file(ks, ls))
    else:
        ks = [pass1(), pass2(force_slow=(len(sys.argv) > 2 and sys.argv[2] == "slow"))]
        open(sys.argv[1], "w").write(assemble_file(ks, notes=NOTES))
```
